```python
import torch

def _softmax(x, axis=-1):
    return torch.softmax(x, dim=axis)
def _gelu(x):
    return torch.nn.functional.gelu(x, approximate="tanh")
def _silu(x):
    return torch.nn.functional.silu(x)
def _sigmoid(x):
    return torch.sigmoid(x)
def _layernorm(x, axis=-1, eps=1e-5):
    m = x.mean(dim=axis, keepdim=True)
    v = x.var(dim=axis, keepdim=True, unbiased=False)
    return (x - m) / torch.sqrt(v + eps)
def _scatter_add(tgt, idx, src, axis=0):
    return tgt.clone().index_add_(axis, idx, src)
def _segment_sum(src, seg, n):
    out = torch.zeros((n,) + src.shape[1:], dtype=src.dtype)
    return out.index_add_(0, seg, src)
def _pad(x, pw):
    flat = tuple(v for pair in reversed(pw) for v in pair)
    return torch.nn.functional.pad(x, flat)

kernel_name = 'standalone__layernorm_linear__prompt'

def setup_inputs():

    _w = (lambda a: (lambda t: t.to(torch.bfloat16) if t.is_floating_point() else t)(torch.as_tensor(a)))
    B, S, D = 2, 2048, 1024
    return {
        "x": _w((lambda *s: torch.randn(*s, dtype=torch.bfloat16) * 0.05)(B, S, D)),
        "g": _w((lambda *s: torch.randn(*s, dtype=torch.bfloat16) * 0.05)(D) + 1.0),
        "b": _w((lambda *s: torch.randn(*s, dtype=torch.bfloat16) * 0.4)(D)),
        "w": _w((lambda *s: torch.randn(*s, dtype=torch.bfloat16) * 0.05)(D, D)),
    }

def reference(x, g, b, w):
    return (_layernorm(x, axis=-1) * g + b) @ w
```

```python
class Emitter:
    def __init__(self):
        self.lines = []
    def __call__(self, s):
        for ln in s.split('\n'):
            self.lines.append(ln)
    def label(self, name):
        self.lines.append(name + ':')
    def comment(self, s):
        self.lines.append('; ' + s)
    def text(self):
        return '\n'.join(self.lines) + '\n'


class Counter:
    def __init__(self, emit, kind, maxn):
        self.e = emit; self.kind = kind; self.maxn = maxn
        self.q = []
    def issue(self, tag):
        self.q.append(tag)
    def need(self, tags):
        if not isinstance(tags, (set, list, tuple)):
            tags = [tags]
        last = -1
        for i, t in enumerate(self.q):
            if t in tags:
                last = i
        if last < 0:
            return False
        n = len(self.q) - 1 - last
        assert n <= self.maxn, (self.kind, n)
        self.e(f's_waitcnt {self.kind}({n})')
        self.q = self.q[last + 1:]
        return True
    def drain(self):
        if self.q:
            self.e(f's_waitcnt {self.kind}(0)')
            self.q = []
```

```python
import sys
sys.path.insert(0, 'gen')
from asmlib import Emitter, Counter

KNAME = 'standalone__layernorm_linear__prompt_kernel'
AUXNAME = 'ln_aux_kernel'
WS_STATS = 0
WS_PART = 0x10000
WS_STAMP = 0x80000

HEADER = '''; Kernarg layout for this problem (56 bytes, ptrs only, base s[0:1]):
'''

class Cfg:
    NX = 6
    PRE = 3
    stamps = False
    cprio = 0
    xmap = 0
    scale = True
    wwrite = True
    epi = True
    extra_empty = 0
    P1 = 2; P2 = 8; P3 = 10
    vm_first = False
    def __init__(self, **kw):
        for k, v in kw.items():
            assert hasattr(self, k), k
            setattr(self, k, v)


def tile_coords(e, cfg):
    e('s_and_b32 s4, s2, 7')
    e('s_lshr_b32 s5, s2, 3')
    if cfg.xmap == 0:
        e('s_and_b32 s6, s5, 3')
        e('s_lshl_b32 s4, s4, 2')
        e('s_add_u32 s4, s4, s6')
        e('s_lshr_b32 s5, s5, 2')
    else:
        e('s_and_b32 s6, s5, 7')
        e('s_lshr_b32 s7, s4, 1')
        e('s_lshl_b32 s7, s7, 3')
        e('s_add_u32 s6, s6, s7')
        e('s_and_b32 s4, s4, 1')
        e('s_lshl_b32 s4, s4, 2')
        e('s_lshr_b32 s5, s5, 3')
        e('s_add_u32 s5, s5, s4')
        e('s_mov_b32 s4, s6')


def aux_body(e, vm, B):
    X = B; L = B + 32; T = B + 64
    e('s_mov_b32 s53, 0xffff0000')
    e(f'v_lshrrev_b32 v{T}, 4, v0')
    e(f'v_and_b32 v{T+1}, 15, v0')
    e('s_lshl_b32 s38, s4, 7\ns_lshl_b32 s39, s5, 4\ns_add_u32 s38, s38, s39\ns_lshl_b32 s39, s3, 2\ns_add_u32 s38, s38, s39')
    e(f'v_add_u32 v{T+2}, s38, v{T}')
    e(f'v_lshlrev_b32 v{T+3}, 11, v{T+2}')
    e(f'v_lshl_add_u32 v{T+3}, v{T+1}, 4, v{T+3}')
    for j in range(8):
        e(f'buffer_load_dwordx4 v[{X+4*j}:{X+4*j+3}], v{T+3}, s[8:11], 0 offen offset:{256*j}')
        vm.issue(('sx', j))
    PW = T + 8; PG = T + 16
    e(f'v_lshrrev_b32 v{T+4}, 2, v0')
    e('s_lshl_b32 s38, s4, 5')
    e(f'v_add_u32 v{T+4}, s38, v{T+4}')
    e(f'v_and_b32 v{T+5}, 3, v0')
    e(f'v_lshlrev_b32 v{T+6}, 11, v{T+4}')
    e(f'v_lshl_add_u32 v{T+6}, v{T+5}, 4, v{T+6}')
    e('s_lshl_b32 s38, s5, 8\ns_lshl_b32 s39, s3, 6\ns_add_u32 s38, s38, s39')
    e('s_add_u32 s39, s38, 0x8000')
    e(f'v_lshlrev_b32 v{T+7}, 1, v{T+4}')
    for r in range(4): e(f'v_mov_b32 v{PG+r}, 0')
    e(f'buffer_load_dwordx4 v[{PW}:{PW+3}], v{T+6}, s[12:15], s38 offen'); vm.issue('pw0')
    e(f'buffer_load_dwordx4 v[{PW+4}:{PW+7}], v{T+6}, s[12:15], s39 offen'); vm.issue('pw1')
    e(f'buffer_load_short_d16_hi v{PG}, v{T+7}, s[16:19], 0 offen'); vm.issue('pg')
    e(f'buffer_load_short_d16_hi v{PG+1}, v{T+7}, s[16:19], 0 offen offset:32'); vm.issue('pg')
    e(f'buffer_load_short_d16_hi v{PG+2}, v{T+7}, s[68:71], 0 offen'); vm.issue('pg')
    e(f'buffer_load_short_d16_hi v{PG+3}, v{T+7}, s[68:71], 0 offen offset:32'); vm.issue('pg')
    A = T + 20
    vm.need([('sx', 7)])
    for d in range(32):
        e(f'v_lshlrev_b32 v{L+d}, 16, v{X+d}')
        e(f'v_and_b32 v{X+d}, s53, v{X+d}')
    for a in range(4):
        e(f'v_pk_add_f32 v[{A+2*a}:{A+2*a+1}], v[{X+2*a}:{X+2*a+1}], v[{L+2*a}:{L+2*a+1}]')
    for d in range(8, 32, 2):
        a = (d // 2) % 4
        e(f'v_pk_add_f32 v[{A+2*a}:{A+2*a+1}], v[{A+2*a}:{A+2*a+1}], v[{X+d}:{X+d+1}]')
        e(f'v_pk_add_f32 v[{A+2*a}:{A+2*a+1}], v[{A+2*a}:{A+2*a+1}], v[{L+d}:{L+d+1}]')
    def fold(dst):
        e(f'v_pk_add_f32 v[{A}:{A+1}], v[{A}:{A+1}], v[{A+2}:{A+3}]')
        e(f'v_pk_add_f32 v[{A+4}:{A+5}], v[{A+4}:{A+5}], v[{A+6}:{A+7}]')
        e(f'v_pk_add_f32 v[{A}:{A+1}], v[{A}:{A+1}], v[{A+4}:{A+5}]')
        e(f'v_add_f32 v{dst}, v{A}, v{A+1}')
        for rot in (8, 4, 2, 1):
            e('s_nop 1')
            e(f'v_add_f32_dpp v{dst}, v{dst}, v{dst} row_ror:{rot} row_mask:0xf bank_mask:0xf')
    M = A + 8
    fold(M)
    e(f'v_mul_f32 v{M}, 0xba800000, v{M}')
    for d in range(0, 32, 2):
        e(f'v_pk_add_f32 v[{X+d}:{X+d+1}], v[{X+d}:{X+d+1}], v[{M}:{M+1}] op_sel_hi:[1,0]')
        e(f'v_pk_add_f32 v[{L+d}:{L+d+1}], v[{L+d}:{L+d+1}], v[{M}:{M+1}] op_sel_hi:[1,0]')
    for a in range(4):
        e(f'v_pk_mul_f32 v[{A+2*a}:{A+2*a+1}], v[{X+2*a}:{X+2*a+1}], v[{X+2*a}:{X+2*a+1}]')
    for d in range(8, 32, 2):
        a = (d // 2) % 4
        e(f'v_pk_fma_f32 v[{A+2*a}:{A+2*a+1}], v[{X+d}:{X+d+1}], v[{X+d}:{X+d+1}], v[{A+2*a}:{A+2*a+1}]')
    for d in range(0, 32, 2):
        a = (d // 2) % 4
        e(f'v_pk_fma_f32 v[{A+2*a}:{A+2*a+1}], v[{L+d}:{L+d+1}], v[{L+d}:{L+d+1}], v[{A+2*a}:{A+2*a+1}]')
    V = A + 10
    fold(V)
    e('s_mov_b32 s39, 0x3727c5ac')
    e(f'v_mov_b32 v{V+1}, s39')
    e(f'v_fmac_f32 v{V+1}, 0x3a800000, v{V}')
    e(f'v_rsq_f32 v{V}, v{V+1}')
    e('s_nop 0')
    e(f'v_mul_f32 v{V+1}, v{M}, v{V}')
    e(f'v_lshlrev_b32 v{T+2}, 3, v{T+2}')
    e(f'v_cmp_eq_u32 vcc, 0, v{T+1}')
    e('s_and_saveexec_b64 s[40:41], vcc')
    e(f'buffer_store_dwordx2 v[{V}:{V+1}], v{T+2}, s[60:63], 0 offen sc0 sc1'); vm.issue('st')
    e('s_mov_b64 exec, s[40:41]')
    vm.need(['pw0', 'pw1', 'pg'])
    U = L
    for t in range(2):
        w = PW + 4 * t
        gk = PG + t; bk = PG + 2 + t
        for i in range(4):
            e(f'v_lshlrev_b32 v{U+2*i}, 16, v{w+i}')
            e(f'v_and_b32 v{U+2*i+1}, s53, v{w+i}')
        for i in range(8):
            if t == 0: e(f'v_mul_f32 v{X+8+i}, v{bk}, v{U+i}')
            else: e(f'v_fmac_f32 v{X+8+i}, v{bk}, v{U+i}')
        for i in range(8): e(f'v_mul_f32 v{U+i}, v{gk}, v{U+i}')
        for i in range(4): e(f'v_cvt_pk_bf16_f32 v{U+8+i}, v{U+2*i}, v{U+2*i+1}')
        for i in range(4):
            if t == 0:
                e(f'v_lshlrev_b32 v{X+2*i}, 16, v{U+8+i}')
                e(f'v_and_b32 v{X+2*i+1}, s53, v{U+8+i}')
            else:
                e(f'v_lshlrev_b32 v{U+2*i}, 16, v{U+8+i}')
                e(f'v_and_b32 v{U+2*i+1}, s53, v{U+8+i}')
        if t == 1:
            for i in range(8): e(f'v_add_f32 v{X+i}, v{X+i}, v{U+i}')
    e('s_nop 1')
    for j in range(8): e(f'v_permlane32_swap_b32 v{X+j}, v{X+8+j}')
    e('s_nop 1')
    for j in range(8): e(f'v_add_f32 v{X+j}, v{X+j}, v{X+8+j}')
    e('s_nop 1')
    for j in range(4): e(f'v_permlane16_swap_b32 v{X+j}, v{X+4+j}')
    e('s_nop 1')
    for j in range(4): e(f'v_add_f32 v{X+j}, v{X+j}, v{X+4+j}')
    for rot in (8, 4):
        e('s_nop 1')
        for j in range(4): e(f'v_add_f32_dpp v{X+j}, v{X+j}, v{X+j} row_ror:{rot} row_mask:0xf bank_mask:0xf')
    e(f'v_lshrrev_b32 v{T}, 4, v0')
    e(f'v_lshrrev_b32 v{T+2}, 1, v{T}')
    e(f'v_lshlrev_b32 v{T+2}, 9, v{T+2}')
    e(f'v_and_b32 v{T}, 1, v{T}')
    e(f'v_lshl_add_u32 v{T+2}, v{T}, 4, v{T+2}')
    e(f'v_lshl_add_u32 v{T+2}, v{T+5}, 5, v{T+2}')
    e('s_lshl_b32 s38, s5, 5\ns_add_u32 s38, s38, s4\ns_lshl_b32 s38, s38, 10\ns_lshl_b32 s39, s3, 7\ns_add_u32 s38, s38, s39')
    e(f's_add_u32 s38, s38, {WS_PART}')
    e(f'v_cmp_gt_u32 vcc, 4, v{T+1}')
    e('s_and_saveexec_b64 s[40:41], vcc')
    e(f'buffer_store_dwordx4 v[{X}:{X+3}], v{T+2}, s[60:63], s38 offen sc0 sc1'); vm.issue('st')
    e('s_mov_b64 exec, s[40:41]')


def common_entry(e, cfg):
    e('s_cmp_ge_u32 s2, 0x100')
    e('s_cbranch_scc1 L_exit_PLACEHOLDER')
    e('s_load_dwordx2 s[8:9], s[0:1], 0')
    e('s_load_dwordx2 s[16:17], s[0:1], 8')
    e('s_load_dwordx2 s[68:69], s[0:1], 16')
    e('s_load_dwordx2 s[12:13], s[0:1], 24')
    e('s_load_dwordx2 s[20:21], s[0:1], 32')
    e('s_load_dwordx2 s[60:61], s[0:1], 48')
    e('s_mov_b32 s10, 0x800000\ns_mov_b32 s11, 0x20000')
    e('s_mov_b32 s14, 0x200000\ns_mov_b32 s15, 0x20000')
    e('s_mov_b32 s18, 0x800\ns_mov_b32 s19, 0x20000')
    e('s_mov_b32 s70, 0x800\ns_mov_b32 s71, 0x20000')
    e('s_mov_b32 s22, 0x800000\ns_mov_b32 s23, 0x20000')
    e('s_mov_b32 s62, 0x100000\ns_mov_b32 s63, 0x20000')
    e('v_lshrrev_b32 v1, 6, v0')
    e('v_and_b32 v0, 63, v0')
    e('v_readfirstlane_b32 s3, v1')
    tile_coords(e, cfg)


def descriptor(e, name, nv, ns=96):
    e(f'.p2align 6\n.amdhsa_kernel {name}')
    e(f'  .amdhsa_next_free_vgpr {nv}\n  .amdhsa_next_free_sgpr {ns}\n  .amdhsa_accum_offset {nv}')
    e('  .amdhsa_group_segment_fixed_size 0\n  .amdhsa_kernarg_size 56\n  .amdhsa_user_sgpr_count 2')
    e('  .amdhsa_user_sgpr_kernarg_segment_ptr 1\n  .amdhsa_system_sgpr_workgroup_id_x 1\n.end_amdhsa_kernel')


def gen_aux(e, cfg):
    e(f'.globl {AUXNAME}\n.p2align 8\n.type {AUXNAME},@function\n{AUXNAME}:')
    n0 = len(e.lines)
    common_entry(e, cfg)
    e.lines[n0:] = [l.replace('L_exit_PLACEHOLDER', 'L_aux_exit') for l in e.lines[n0:]]
    e('s_waitcnt lgkmcnt(0)')
    vm = Counter(e, 'vmcnt', 63)
    aux_body(e, vm, 4)
    e('L_aux_exit:')
    e('s_endpgm')


def gen_main(e, cfg):
    NX = cfg.NX; NST = 16
    WB = NX * 16384
    SCR = WB + 2 * 16384
    TAB = SCR + 8192
    LDS = TAB + 2048
    e(f'.globl {KNAME}\n.p2align 8\n.type {KNAME},@function\n{KNAME}:')
    n0 = len(e.lines)
    if cfg.stamps:
        e('s_memtime s[40:41]\ns_memrealtime s[48:49]')
    common_entry(e, cfg)
    e.lines[n0:] = [l.replace('L_exit_PLACEHOLDER', 'L_exit') for l in e.lines[n0:]]
    e('s_mov_b32 s66, s3')
    e('s_cmp_ge_u32 s3, 4')
    e('s_cbranch_scc1 L_loader')

    ACC = 0; FR = 64; XA = 96; XA2 = 100; WA = 104; LN = 106; T = 64
    GW = 108; BW = GW
    lg = Counter(e, 'lgkmcnt', 15)
    if cfg.cprio: e(f's_setprio {cfg.cprio}')
    e('s_and_b32 s6, s3, 1')
    e('s_lshr_b32 s7, s3, 1')
    e(f'v_mov_b32 v{LN}, v0')
    e(f'v_and_b32 v{T+1}, 31, v{LN}')
    e(f'v_lshrrev_b32 v{T+2}, 5, v{LN}')
    e(f'v_bfe_u32 v{T+3}, v{LN}, 1, 3')
    e(f'v_xor_b32 v{T+3}, v{T+3}, v{T+2}')
    e(f'v_lshlrev_b32 v{T+3}, 4, v{T+3}')
    e('s_lshl_b32 s38, s6, 13')
    e(f'v_lshl_add_u32 v{T+4}, v{T+1}, 7, v{T+3}')
    e(f'v_add_u32 v{XA}, s38, v{T+4}')
    for ks in range(1, 4): e(f'v_xor_b32 v{XA+ks}, {32*ks}, v{XA}')
    for ks in range(4): e(f'v_add_u32 v{XA2+ks}, 0x10000, v{XA+ks}')
    e(f'v_lshrrev_b32 v{T+1}, 4, v{LN}')
    e(f'v_bfe_u32 v{T+2}, v{LN}, 2, 2')
    e(f'v_and_b32 v{T+3}, 3, v{LN}')
    e(f'v_lshrrev_b32 v{T+4}, 1, v{T+1}')
    e(f'v_lshl_add_u32 v{T+4}, v{T+4}, 3, v{T+2}')
    e(f'v_lshlrev_b32 v{T+4}, 8, v{T+4}')
    e(f'v_and_b32 v{T+1}, 1, v{T+1}')
    e(f'v_lshlrev_b32 v{T+1}, 1, v{T+1}')
    e(f'v_lshrrev_b32 v{T+5}, 1, v{T+3}')
    e(f'v_add_u32 v{T+1}, v{T+1}, v{T+5}')
    e('s_lshl_b32 s38, s7, 3')
    e(f'v_add_u32 v{T+1}, s38, v{T+1}')
    e(f'v_lshlrev_b32 v{T+2}, 2, v{T+2}')
    e(f'v_xor_b32 v{T+1}, v{T+1}, v{T+2}')
    e(f'v_lshlrev_b32 v{T+1}, 4, v{T+1}')
    e(f'v_and_b32 v{T+3}, 1, v{T+3}')
    e(f'v_lshl_add_u32 v{T+1}, v{T+3}, 3, v{T+1}')
    e(f'v_add_u32 v{T+1}, v{T+1}, v{T+4}')
    e(f'v_add_u32 v{WA}, {WB}, v{T+1}')
    e(f'v_xor_b32 v{WA+1}, 64, v{WA}')
    TA_ = 107
    e(f'v_lshrrev_b32 v{T+1}, 5, v{LN}')
    e(f'v_lshlrev_b32 v{T+1}, 4, v{T+1}')
    e('s_lshl_b32 s38, s7, 8')
    e(f's_add_u32 s38, s38, {TAB}')
    e(f'v_add_u32 v{TA_}, s38, v{T+1}')

    def rd_list(p, ks):
        st = FR + 16 * (ks & 1)
        slot = p % NX
        xr = (XA if slot < 4 else XA2) + ks
        xo = (slot % 4) * 16384
        wo = (p & 1) * 16384 + ks * 4096
        return [
            (f'ds_read_b64_tr_b16 v[{st}:{st+1}], v{WA} offset:{wo}', ('W0', p, ks)),
            (f'ds_read_b64_tr_b16 v[{st+2}:{st+3}], v{WA} offset:{wo+1024}', ('W0', p, ks)),
            (f'ds_read_b128 v[{st+8}:{st+11}], v{xr} offset:{xo}', ('x0', p, ks)),
            (f'ds_read_b128 v[{st+12}:{st+15}], v{xr} offset:{xo+4096}', ('x1', p, ks)),
            (f'ds_read_b64_tr_b16 v[{st+4}:{st+5}], v{WA+1} offset:{wo}', ('W1', p, ks)),
            (f'ds_read_b64_tr_b16 v[{st+6}:{st+7}], v{WA+1} offset:{wo+1024}', ('W1', p, ks)),
        ]
    def group(p, ks, reads, extra=()):
        st = FR + 16 * (ks & 1)
        order = [(0, 0), (0, 1), (1, 1), (1, 0)]
        extra = list(extra)
        for i, (nb, mb) in enumerate(order):
            if p >= 0:
                lg.need([(f'W{nb}', p, ks), (f'x{mb}', p, ks)])
                a = ACC + 16 * (2 * nb + mb)
                c = '0' if (p == 0 and ks == 0) else f'v[{a}:{a+15}]'
                e(f'v_mfma_f32_32x32x16_bf16 v[{a}:{a+15}], v[{st+4*nb}:{st+4*nb+3}], v[{st+8+4*mb}:{st+8+4*mb+3}], {c}')
            for (ins, tag) in reads[2*i:2*i+2]:
                e(ins); lg.issue(tag)
            if i == 3 or not reads[2*i+2:]:
                k = 4 if i < 3 else len(extra)
                for (ins, tag) in extra[:k]:
                    e(ins); lg.issue(tag)
                extra = extra[k:]
    GWR = 104 + 4
    BWR = 136 + 4
    RS = 96
    e('s_barrier')
    if cfg.stamps: e('s_memtime s[42:43]')
    for p in range(NST):
        group(p - 1, 3, rd_list(p, 0))
        group(p, 0, rd_list(p, 1))
        group(p, 1, rd_list(p, 2))
        ex = []
        if p == NST - 1:
            for nb in range(2):
                for j in range(4):
                    r = GWR + 16 * nb + 4 * j
                    ex.append((f'ds_read_b128 v[{r}:{r+3}], v{TA_} offset:{(nb*32+8*j)*4}', 'gw'))
            for j in range(4):
                r = BWR + 4 * j
                ex.append((f'ds_read_b128 v[{r}:{r+3}], v{TA_} offset:{512+(8*j)*4}', 'bw'))
        group(p, 2, rd_list(p, 3), ex)
        if p < NST - 1:
            lg.drain()
            e('s_barrier')
    group(NST - 1, 3, [])
    if cfg.stamps: e('s_memtime s[44:45]')
    BW1 = 64
    SA = 80; SR = 81; GO = 82; Y = 84; D = 92
    STG = 0
    assert (NST - 1) % NX not in (0, 1)
    for j in range(4):
        e(f'ds_read_b128 v[{BW1+4*j}:{BW1+4*j+3}], v{TA_} offset:{512+(32+8*j)*4}'); lg.issue('bw1')
    e(f'v_and_b32 v{SA}, 31, v{LN}')
    e('s_lshl_b32 s38, s6, 9')
    e(f's_add_u32 s38, s38, {TAB+1024}')
    e(f'v_lshl_add_u32 v{SR}, v{SA}, 3, s38')
    e(f'ds_read_b64 v[{RS}:{RS+1}], v{SR}'); lg.issue('rs')
    e(f'ds_read_b64 v[{RS+2}:{RS+3}], v{SR} offset:256'); lg.issue('rs')
    e(f'v_and_b32 v{Y}, 7, v{LN}')
    e(f'v_lshlrev_b32 v{Y}, 4, v{Y}')
    e(f'v_lshrrev_b32 v{Y+1}, 5, v{LN}')
    e(f'v_lshl_add_u32 v{Y}, v{Y+1}, 3, v{Y}')
    e(f'v_lshl_add_u32 v{SA}, v{SA}, 7, v{Y}')
    e('s_lshl_b32 s38, s3, 13')
    e(f'v_add_u32 v{SA}, s38, v{SA}')
    e(f'v_lshrrev_b32 v{Y}, 3, v{LN}')
    e(f'v_and_b32 v{Y+1}, 7, v{LN}')
    e(f'v_xor_b32 v{Y+2}, v{Y+1}, v{Y}')
    e(f'v_lshlrev_b32 v{Y+2}, 4, v{Y+2}')
    e(f'v_lshl_add_u32 v{SR}, v{Y}, 7, v{Y+2}')
    e(f'v_add_u32 v{SR}, s38, v{SR}')
    e(f'v_lshlrev_b32 v{GO}, 11, v{Y}')
    e(f'v_lshl_add_u32 v{GO}, v{Y+1}, 4, v{GO}')
    e('s_lshl_b32 s38, s4, 18\ns_lshl_b32 s39, s6, 17\ns_add_u32 s38, s38, s39')
    e('s_lshl_b32 s39, s5, 8\ns_add_u32 s38, s38, s39\ns_lshl_b32 s39, s7, 7\ns_add_u32 s50, s38, s39')
    lg.need(['gw', 'bw', 'bw1', 'rs'])
    e('s_nop 4')
    vm = Counter(e, 'vmcnt', 63)
    XW = 100
    for mb in range(2):
        rs = RS + 2 * mb
        for nb in range(2):
            a = ACC + 16 * (2 * nb + mb)
            for j in range(4):
                gw = GWR + 16 * nb + 4 * j
                bw = (BWR if nb == 0 else BW1) + 4 * j
                y = Y + 4 * (j & 1)
                if cfg.epi:
                    for hh in range(2):
                        e(f'v_pk_fma_f32 v[{y+2*hh}:{y+2*hh+1}], v[{gw+2*hh}:{gw+2*hh+1}], v[{rs}:{rs+1}], v[{bw+2*hh}:{bw+2*hh+1}] op_sel:[0,1,0] op_sel_hi:[1,1,1]')
                    for hh in range(2):
                        e(f'v_pk_fma_f32 v[{y+2*hh}:{y+2*hh+1}], v[{a+4*j+2*hh}:{a+4*j+2*hh+1}], v[{rs}:{rs+1}], v[{y+2*hh}:{y+2*hh+1}] op_sel_hi:[1,0,1]')
                    src = [y, y + 1, y + 2, y + 3]
                else:
                    src = [a + 4 * j + i for i in range(4)]
                d = D + 2 * (j & 1)
                e(f'v_cvt_pk_bf16_f32 v{d}, v{src[0]}, v{src[1]}')
                e(f'v_cvt_pk_bf16_f32 v{d+1}, v{src[2]}, v{src[3]}')
                ch = nb * 4 + j
                e(f'v_xor_b32 v{XW+(j&1)}, {ch*16}, v{SA}')
                e(f'ds_write_b64 v{XW+(j&1)}, v[{d}:{d+1}] offset:{mb*4096}'); lg.issue(('sw', mb))
        lg.need([('sw', mb)])
        R = ACC + 16 * mb
        for q in range(4):
            r = 108 + 16 * 0 + 0
        RD = [ACC + 16 * (0 + mb), ACC + 16 * (2 + mb)]
        for q in range(4):
            r = RD[0] + 4 * q
            e(f'ds_read_b128 v[{r}:{r+3}], v{SR} offset:{mb*4096+q*1024}'); lg.issue(('sr', mb, q))
        for q in range(4):
            r = RD[0] + 4 * q
            lg.need([('sr', mb, q)])
            e(f's_add_u32 s51, s50, {(mb*32+8*q)*2048}')
            e(f'buffer_store_dwordx4 v[{r}:{r+3}], v{GO}, s[20:23], s51 offen')
    e('s_branch L_end')

    e('L_loader:')
    vm = Counter(e, 'vmcnt', 63)
    lg = Counter(e, 'lgkmcnt', 15)
    VXO = 2; VWO = 4; VGO = 5; VWA = 6; TMP = 8; GR = 16; GF = 32; WR = 40
    PR = 100
    RW = NX
    e('s_sub_u32 s3, s3, 4')
    e('v_lshrrev_b32 v8, 3, v0')
    e('v_lshlrev_b32 v8, 11, v8')
    e('v_and_b32 v9, 7, v0')
    e('v_lshrrev_b32 v10, 4, v0')
    e('v_xor_b32 v9, v9, v10')
    e(f'v_lshl_add_u32 v{VXO}, v9, 4, v8')
    e(f'v_xor_b32 v{VXO+1}, 64, v{VXO}')
    e(f'v_add_u32 v{VXO+1}, {16384-1024}, v{VXO+1}')
    e('s_lshl_b32 s38, s4, 18\ns_lshl_b32 s39, s3, 15\ns_add_u32 s50, s38, s39\ns_lshl_b32 s51, s3, 11')
    e('v_lshrrev_b32 v8, 4, v0')
    e('v_and_b32 v9, 15, v0')
    e('v_lshlrev_b32 v10, 1, v8')
    e('s_lshl_b32 s38, s3, 3')
    e('v_add_u32 v10, s38, v10')
    e(f'v_lshlrev_b32 v{VWO}, 11, v10')
    e(f'v_lshl_add_u32 v{VWO}, v9, 4, v{VWO}')
    e(f'v_lshlrev_b32 v{VGO}, 1, v10')
    e('s_lshl_b32 s52, s5, 8')
    e('s_mov_b32 s53, 0xffff0000')
    e('s_waitcnt lgkmcnt(0)')
    def issue_stage(q):
        slot = q % NX
        b = WR + 8 * (q % RW)
        return [
            (f's_add_u32 m0, s51, {slot*16384}', None),
            (f's_add_u32 s54, s50, {q*128}', None),
            (f'buffer_load_dwordx4 v{VXO}, s[8:11], s54 offen lds', ('x', q)),
            (f'buffer_load_dwordx4 v{VXO+1}, s[8:11], s54 offen offset:1024 lds', ('x', q)),
            (f's_add_u32 s55, s52, {q*131072}', None),
            (f'buffer_load_dwordx4 v[{b}:{b+3}], v{VWO}, s[12:15], s55 offen', ('w', q, 0)),
            (f'buffer_load_dwordx4 v[{b+4}:{b+7}], v{VWO}, s[12:15], s55 offen offset:2048', ('w', q, 1)),
        ]
    def emit_ops(ops):
        for ins, tag in ops:
            e(ins)
            if tag: vm.issue(tag)
    def gload(q):
        e(f'buffer_load_dword v{GR+q}, v{VGO}, s[16:19], 0 offen offset:{q*128}'); vm.issue(('g', q))
    gload(0)
    emit_ops(issue_stage(0))
    for j in range(2):
        e(f'v_add_u32 v11, {j}, v10')
        e('v_and_b32 v12, 3, v11')
        e('v_lshlrev_b32 v12, 2, v12')
        e('v_xor_b32 v12, v12, v9')
        e('v_lshlrev_b32 v12, 4, v12')
        e('v_lshl_add_u32 v12, v11, 8, v12')
        e(f'v_add_u32 v{VWA+j}, {WB}, v12')
    issued = 1
    for q in range(1, cfg.PRE):
        gload(q); emit_ops(issue_stage(q)); issued += 1
    for q in range(cfg.PRE, NST): gload(q)
    def scale(q, j):
        vm.need([('g', q), ('w', q, j)])
        r = WR + 8 * (q % RW) + 4 * j
        if j == 0:
            e(f'v_lshlrev_b32 v{GF}, 16, v{GR+q}')
            e(f'v_and_b32 v{GF+1}, s53, v{GR+q}')
        gj = GF + j
        if cfg.scale:
            for i in range(4): e(f'v_lshlrev_b32 v{TMP+i}, 16, v{r+i}')
            for i in range(4): e(f'v_and_b32 v{r+i}, s53, v{r+i}')
            for i in range(4): e(f'v_mul_f32 v{TMP+i}, v{gj}, v{TMP+i}')
            for i in range(4): e(f'v_mul_f32 v{r+i}, v{gj}, v{r+i}')
            for i in range(4): e(f'v_cvt_pk_bf16_f32 v{r+i}, v{TMP+i}, v{r+i}')
    def write(q, j):
        r = WR + 8 * (q % RW) + 4 * j
        if cfg.wwrite:
            e(f'ds_write_b128 v{VWA+j}, v[{r}:{r+3}] offset:{(q&1)*16384}'); lg.issue(('ww', q, j))
    scale(0, 0); write(0, 0); scale(0, 1); write(0, 1); scale(1, 0)
    lg.drain()
    e('s_barrier')
    if cfg.stamps: e('s_memtime s[42:43]')
    def aux_phase(p):
        if p == cfg.P1:
            e('s_lshl_b32 s38, s5, 5\ns_lshl_b32 s39, s3, 2\ns_add_u32 s38, s38, s39\ns_lshl_b32 s38, s38, 10')
            e(f's_add_u32 s38, s38, {WS_PART}')
            e(f'v_lshlrev_b32 v{PR+20}, 4, v0')
            for t in range(4):
                e(f'buffer_load_dwordx4 v[{PR+4*t}:{PR+4*t+3}], v{PR+20}, s[60:63], s38 offen offset:{1024*t} sc0 sc1'); vm.issue('pp')
            e('s_lshl_b32 s39, s4, 10')
            e(f'buffer_load_dwordx4 v[{PR+16}:{PR+19}], v{PR+20}, s[60:63], s39 offen sc0 sc1'); vm.issue('ps')
        if p == cfg.P2:
            vm.need(['pp', 'ps'])
            for i in range(4):
                e(f'v_add_f32 v{PR+i}, v{PR+i}, v{PR+4+i}')
                e(f'v_add_f32 v{PR+8+i}, v{PR+8+i}, v{PR+12+i}')
            for i in range(4): e(f'v_add_f32 v{PR+i}, v{PR+i}, v{PR+8+i}')
            e('s_lshl_b32 s38, s3, 10')
            e(f's_add_u32 s38, s38, {SCR}')
            e(f'v_add_u32 v{PR+21}, s38, v{PR+20}')
            e(f'ds_write_b128 v{PR+21}, v[{PR}:{PR+3}]'); lg.issue('scr')
            e(f'v_add_u32 v{PR+21}, {TAB+1024}, v{PR+20}')
            e(f'ds_write_b128 v{PR+21}, v[{PR+16}:{PR+19}]'); lg.issue('scr')
        if p == cfg.P3:
            e(f'v_and_b32 v{PR+20}, 31, v0')
            e(f'v_lshlrev_b32 v{PR+20}, 2, v{PR+20}')
            e('s_lshl_b32 s38, s3, 7')
            e(f'v_add_u32 v{PR+20}, s38, v{PR+20}')
            e(f'v_add_u32 v{PR+21}, {SCR}, v{PR+20}')
            for t in range(8):
                e(f'ds_read_b32 v{PR+t}, v{PR+21} offset:{1024*t}'); lg.issue('fin')
            lg.need(['fin'])
            for t in range(4): e(f'v_add_f32 v{PR+t}, v{PR+t}, v{PR+4+t}')
            e(f'v_add_f32 v{PR}, v{PR}, v{PR+1}\nv_add_f32 v{PR+2}, v{PR+2}, v{PR+3}\nv_add_f32 v{PR}, v{PR}, v{PR+2}')
            e(f'v_add_u32 v{PR+21}, {TAB}, v{PR+20}')
            e(f'ds_write_b32 v{PR+21}, v{PR}'); lg.issue('tab')
    for p in range(NST - 1):
        ops = []
        lim = min(NST - 1, p + NX - 1)
        n_new = 0
        while issued <= lim and n_new < 2:
            ops += issue_stage(issued); issued += 1; n_new += 1
        if cfg.vm_first: emit_ops(ops)
        write(p + 1, 0)
        scale(p + 1, 1)
        write(p + 1, 1)
        if p + 2 < NST: scale(p + 2, 0)
        if not cfg.vm_first: emit_ops(ops)
        aux_phase(p)
        vm.need([('x', p + 1)])
        lg.drain()
        e('s_barrier')
    assert issued == NST
    if cfg.stamps: e('s_memtime s[44:45]')
    e('L_end:')
    if cfg.stamps:
        e('s_waitcnt vmcnt(0) lgkmcnt(0)')
        e('s_memtime s[46:47]')
        e('s_memrealtime s[56:57]')
        e('s_waitcnt lgkmcnt(0)')
        e('s_sub_u32 s42, s42, s40\ns_sub_u32 s44, s44, s40\ns_sub_u32 s46, s46, s40')
        e('v_mov_b32 v4, s42\nv_mov_b32 v5, s44\nv_mov_b32 v6, s46\nv_mov_b32 v7, s48\nv_mov_b32 v8, s56\nv_mov_b32 v9, 0\nv_mov_b32 v10, 0\nv_mov_b32 v11, 0')
        e(f's_lshl_b32 s65, s2, 4\ns_add_u32 s65, s65, s66\ns_lshl_b32 s65, s65, 5\ns_add_u32 s65, s65, {WS_STAMP}')
        e('v_mov_b32 v12, s65')
        e('s_mov_b64 exec, 1')
        e('buffer_store_dwordx4 v[4:7], v12, s[60:63], 0 offen')
        e('buffer_store_dwordx4 v[8:11], v12, s[60:63], 0 offen offset:16')
    e('L_exit:')
    e('s_endpgm')
    return LDS


def gen(cfg):
    e = Emitter()
    body = Emitter()
    gen_aux(body, cfg)
    lds = gen_main(body, cfg)
    e(HEADER.rstrip())
    e(f'; @launch kernel={AUXNAME} grid=(256,1,1) block=(256,1,1) lds=0')
    for i in range(cfg.extra_empty):
        e('; @launch kernel=empty_kernel grid=(256,1,1) block=(64,1,1) lds=0')
    e(f'; @launch kernel={KNAME} grid=(256,1,1) block=(768,1,1) lds={lds}')
    e('.amdgcn_target "amdgcn-amd-amdhsa--gfx950"\n.text')
    e.lines += body.lines
    if cfg.extra_empty:
        e('.globl empty_kernel\n.p2align 8\n.type empty_kernel,@function\nempty_kernel:\ns_endpgm')
    e('.section .rodata,"a"')
    descriptor(e, AUXNAME, 128)
    descriptor(e, KNAME, 168)
    if cfg.extra_empty: descriptor(e, 'empty_kernel', 8, 16)
    return e.text()

if __name__ == '__main__':
    import ast
    kw = {}
    for a in sys.argv[1:]:
        k, v = a.split('=')
        kw[k] = ast.literal_eval(v)
    print(gen(Cfg(**kw)))
```

```python
class Emitter:
    def __init__(self):
        self.lines = []
    def __call__(self, s):
        for ln in s.split('\n'):
            self.lines.append(ln)
    def label(self, name):
        self.lines.append(name + ':')
    def comment(self, s):
        self.lines.append('; ' + s)
    def text(self):
        return '\n'.join(self.lines) + '\n'


class Counter:
    def __init__(self, emit, kind, maxn):
        self.e = emit; self.kind = kind; self.maxn = maxn
        self.q = []
        self.seen = set()
        self.strict = False
    def issue(self, tag):
        self.q.append(tag)
        self.seen.add(tag)
    def need(self, tags):
        if not isinstance(tags, (set, list, tuple)):
            tags = [tags]
        last = -1
        for i, t in enumerate(self.q):
            if t in tags:
                last = i
        if last < 0:
            if self.strict:
                for t in tags:
                    assert t in self.seen, ('never issued', t)
            return False
        n = len(self.q) - 1 - last
        assert n <= self.maxn, (self.kind, n)
        self.e(f's_waitcnt {self.kind}({n})')
        self.q = self.q[last + 1:]
        return True
    def drain(self):
        if self.q:
            self.e(f's_waitcnt {self.kind}(0)')
            self.q = []
```

```python
import sys
sys.path.insert(0, 'gen')
from asmlib import Emitter, Counter

KNAME = 'standalone__layernorm_linear__prompt_kernel'
WS_STATS = 0
WS_PART = 0x10000
WS_STAMP = 0x80000
WS_EPOCH = 0x8000
WS_FW = 0x9000
WS_FC = 0xA000
WS_FR = 0xB000
TAG_STEP = 0x9E3779B9
WS_W = 0x100000

HEADER = '''; LayerNorm(x)*g + b followed by @ w, fused in one launch.
'''

class Cfg:
    NS = 5
    PP = 5
    PC = 9
    PL = 10
    PS = 14
    stamps = False
    xmap = 0
    codepf = True
    mfma = True; reads = True; xdma = True; wdma = True
    wait_flags = True
    sc1dma = True
    earlywait = True
    sleep = 1
    spin = 40000
    rot = False
    prex = 2
    prex2 = 3
    prew = 3
    dmaflags = ' sc1'
    stflags = ' sc1'
    ldflags = ' sc1'
    inv = False
    delay = 0
    def __init__(self, **kw):
        for k, v in kw.items():
            assert hasattr(self, k), k
            setattr(self, k, v)


def gen(cfg):
    e = Emitter()
    def st(i):
        if cfg.stamps: e(f's_memtime s[{82+2*i}:{83+2*i}]')
    NS = cfg.NS; NST = 16
    LDS = NS * 32768
    TABSLOT = (NST - 1 - 4) % NS
    TAB = TABSLOT * 32768
    STGSLOT = (NST - 1 - 3) % NS
    if NS == 4:
        TABSLOT = (NST - 4) % NS; TAB = TABSLOT * 32768; STGSLOT = (NST - 3) % NS
    e(HEADER.rstrip())
    e(f'; @launch grid=(256,1,1) block=(512,1,1) lds={LDS}')
    e('.amdgcn_target "amdgcn-amd-amdhsa--gfx950"\n.text')
    e(f'.globl {KNAME}\n.p2align 8\n.type {KNAME},@function\n{KNAME}:')
    e('s_cmp_ge_u32 s2, 0x100')
    e('s_cbranch_scc1 L_exit')
    if cfg.stamps: e('s_memtime s[40:41]\ns_memrealtime s[48:49]')
    e('s_load_dwordx2 s[12:13], s[0:1], 24')
    e('s_load_dwordx2 s[16:17], s[0:1], 8')
    e('s_load_dwordx2 s[8:9], s[0:1], 0')
    e('s_load_dwordx2 s[68:69], s[0:1], 16')
    e('s_load_dwordx2 s[60:61], s[0:1], 48')
    e('s_load_dwordx2 s[20:21], s[0:1], 32')
    e('v_lshrrev_b32 v1, 6, v0')
    e('v_and_b32 v0, 63, v0')
    e('v_readfirstlane_b32 s3, v1')
    e('s_mov_b32 s10, 0x800000\ns_mov_b32 s11, 0x20000')
    e('s_mov_b32 s14, 0x200000\ns_mov_b32 s15, 0x20000')
    e('s_mov_b32 s18, 0x800\ns_mov_b32 s19, 0x20000')
    e('s_mov_b32 s70, 0x800\ns_mov_b32 s71, 0x20000')
    e('s_mov_b32 s22, 0x800000\ns_mov_b32 s23, 0x20000')
    e('s_mov_b32 s62, 0x300000\ns_mov_b32 s63, 0x20000')
    e('s_and_b32 s4, s2, 7')
    e('s_lshr_b32 s5, s2, 3')
    if cfg.xmap == 0:
        e('s_and_b32 s6, s5, 3\ns_lshl_b32 s4, s4, 2\ns_add_u32 s4, s4, s6\ns_lshr_b32 s5, s5, 2')
    else:
        e('s_and_b32 s6, s5, 7\ns_lshr_b32 s7, s4, 1\ns_lshl_b32 s7, s7, 3\ns_add_u32 s6, s6, s7')
        e('s_and_b32 s4, s4, 1\ns_lshl_b32 s4, s4, 2\ns_lshr_b32 s5, s5, 3\ns_add_u32 s5, s5, s4\ns_mov_b32 s4, s6')
    e('s_mov_b32 s66, s3')
    e('s_mov_b32 s53, 0xffff0000')
    e('s_cmp_ge_u32 s3, 4')
    e('s_cbranch_scc1 L_dma')

    ACC = 0; FR = 64; XA = 96; WA = 108; LN = 114; TA_ = 115
    lg = Counter(e, 'lgkmcnt', 15); vm = Counter(e, 'vmcnt', 63)
    T = 116
    e(f'v_mov_b32 v{LN}, v0')
    PW = 128; PG = 136; U = 140; GWv = 160; BWv = 168
    e(f'v_lshrrev_b32 v{T+4}, 2, v{LN}')
    e(f'v_and_b32 v{T+5}, 3, v{LN}')
    e(f'v_lshlrev_b32 v{T+6}, 11, v{T+4}')
    e(f'v_lshl_add_u32 v{T+6}, v{T+5}, 4, v{T+6}')
    e(f'v_lshlrev_b32 v{T+7}, 1, v{T+4}')
    for r in range(4): e(f'v_mov_b32 v{PG+r}, 0')
    e('s_lshl_b32 s38, s4, 16\ns_lshl_b32 s39, s5, 8\ns_add_u32 s38, s38, s39\ns_lshl_b32 s39, s3, 6\ns_add_u32 s38, s38, s39')
    e('s_add_u32 s39, s38, 0x8000')
    e('s_lshl_b32 s36, s4, 6')
    e('s_waitcnt lgkmcnt(0)')
    st(0)
    e(f's_load_dword s64, s[60:61], {WS_EPOCH}')
    e(f'buffer_load_dwordx4 v[{PW}:{PW+3}], v{T+6}, s[12:15], s38 offen'); vm.issue('pw0')
    e(f'buffer_load_short_d16_hi v{PG}, v{T+7}, s[16:19], s36 offen'); vm.issue('pg0')
    e(f'buffer_load_dwordx4 v[{PW+4}:{PW+7}], v{T+6}, s[12:15], s39 offen'); vm.issue('pw1')
    e(f'buffer_load_short_d16_hi v{PG+1}, v{T+7}, s[16:19], s36 offen offset:32'); vm.issue('pg1')
    e(f'buffer_load_short_d16_hi v{PG+2}, v{T+7}, s[68:71], s36 offen'); vm.issue('pb')
    e(f'buffer_load_short_d16_hi v{PG+3}, v{T+7}, s[68:71], s36 offen offset:32'); vm.issue('pb')
    WD = T + 8
    e(f'v_and_b32 v{T+1}, 3, v{T+4}')
    e(f'v_lshlrev_b32 v{T+1}, 2, v{T+1}')
    e('s_lshl_b32 s37, s3, 2')
    e(f'v_add_u32 v{T+2}, s37, v{T+5}')
    e(f'v_xor_b32 v{T+1}, v{T+1}, v{T+2}')
    e(f'v_lshlrev_b32 v{T+1}, 4, v{T+1}')
    e(f'v_lshl_add_u32 v{WD}, v{T+4}, 8, v{T+1}')
    e(f's_lshl_b32 s38, s5, 18\ns_lshl_b32 s39, s4, 13\ns_add_u32 s38, s38, s39\ns_add_u32 s38, s38, {WS_W}')
    e('s_add_u32 s39, s38, 0x1000')
    e('s_and_b32 s6, s3, 1')
    e('s_lshr_b32 s7, s3, 1')
    e(f'v_and_b32 v{T+1}, 31, v{LN}')
    e(f'v_lshrrev_b32 v{T+2}, 5, v{LN}')
    e(f'v_bfe_u32 v{T+3}, v{LN}, 1, 3')
    e(f'v_xor_b32 v{T+3}, v{T+3}, v{T+2}')
    e(f'v_lshlrev_b32 v{T+3}, 4, v{T+3}')
    e('s_lshl_b32 s37, s6, 13')
    e(f'v_lshl_add_u32 v{T+9}, v{T+1}, 7, v{T+3}')
    e(f'v_add_u32 v{XA}, s37, v{T+9}')
    for ks in range(1, 4): e(f'v_xor_b32 v{XA+ks}, {32*ks}, v{XA}')
    for w in range(1, 3):
        for ks in range(4): e(f'v_add_u32 v{XA+4*w+ks}, {0x10000*w}, v{XA+ks}')
    e(f'v_lshrrev_b32 v{T+1}, 4, v{LN}')
    e(f'v_bfe_u32 v{T+2}, v{LN}, 2, 2')
    e(f'v_and_b32 v{T+3}, 3, v{LN}')
    e(f'v_lshrrev_b32 v{T+9}, 1, v{T+1}')
    e(f'v_lshl_add_u32 v{T+9}, v{T+9}, 3, v{T+2}')
    e(f'v_lshlrev_b32 v{T+9}, 8, v{T+9}')
    e(f'v_and_b32 v{T+1}, 1, v{T+1}')
    e(f'v_lshlrev_b32 v{T+1}, 1, v{T+1}')
    e(f'v_lshrrev_b32 v{T+10}, 1, v{T+3}')
    e(f'v_add_u32 v{T+1}, v{T+1}, v{T+10}')
    e('s_lshl_b32 s37, s7, 3')
    e(f'v_add_u32 v{T+1}, s37, v{T+1}')
    e(f'v_lshlrev_b32 v{T+2}, 2, v{T+2}')
    e(f'v_xor_b32 v{T+1}, v{T+1}, v{T+2}')
    e(f'v_lshlrev_b32 v{T+1}, 4, v{T+1}')
    e(f'v_and_b32 v{T+3}, 1, v{T+3}')
    e(f'v_lshl_add_u32 v{T+1}, v{T+3}, 3, v{T+1}')
    e(f'v_add_u32 v{T+1}, v{T+1}, v{T+9}')
    e(f'v_add_u32 v{WA}, 0x4000, v{T+1}')
    e(f'v_xor_b32 v{WA+1}, 64, v{WA}')
    for w in range(1, 3):
        for nb in range(2): e(f'v_add_u32 v{WA+2*w+nb}, {0x10000*w}, v{WA+nb}')
    e(f'v_lshrrev_b32 v{T+1}, 5, v{LN}')
    e(f'v_lshlrev_b32 v{T+1}, 4, v{T+1}')
    e(f's_lshl_b32 s37, s7, 8\ns_add_u32 s37, s37, {TAB}')
    e(f'v_add_u32 v{TA_}, s37, v{T+1}')
    WPK = 148
    for t in range(2):
        vm.need([f'pw{t}', f'pg{t}'])
        if t == 0: st(1)
        w = PW + 4 * t; gk = PG + t; u = U
        for i in range(4):
            e(f'v_lshlrev_b32 v{u+2*i}, 16, v{w+i}')
            e(f'v_and_b32 v{u+2*i+1}, s53, v{w+i}')
        for i in range(8): e(f'v_mul_f32 v{u+i}, v{gk}, v{u+i}')
        for i in range(4): e(f'v_cvt_pk_bf16_f32 v{WPK+4*t+i}, v{u+2*i}, v{u+2*i+1}')
        e(f'buffer_store_dwordx4 v[{WPK+4*t}:{WPK+4*t+3}], v{WD}, s[60:63], s{38+t} offen{cfg.stflags}'); vm.issue('wst')
    e('s_barrier')
    st(2)
    vm.need(['wst'])
    st(3)
    e('s_waitcnt lgkmcnt(0)')
    e(f's_add_u32 s64, s64, {TAG_STEP}')
    e('s_barrier')
    st(4)
    e('s_cmp_lg_u32 s3, 0')
    e('s_cbranch_scc1 L_noflagw')
    e(f's_lshl_b32 s38, s5, 7\ns_lshl_b32 s39, s4, 2\ns_add_u32 s38, s38, s39\ns_add_u32 s38, s38, {WS_FW}')
    e(f'v_mov_b32 v{T+1}, s38')
    e(f'v_mov_b32 v{T+2}, s64')
    e('s_mov_b64 exec, 1')
    e(f'buffer_store_dword v{T+2}, v{T+1}, s[60:63], 0 offen sc1')
    e('s_mov_b64 exec, -1')
    e('L_noflagw:')
    X = GWv
    for t in range(2):
        w = PW + 4 * t; bk = PG + 2 + t
        for i in range(4):
            e(f'v_lshlrev_b32 v{U+2*i}, 16, v{w+i}')
            e(f'v_and_b32 v{U+2*i+1}, s53, v{w+i}')
        for i in range(8):
            if t == 0: e(f'v_mul_f32 v{X+8+i}, v{bk}, v{U+i}')
            else: e(f'v_fmac_f32 v{X+8+i}, v{bk}, v{U+i}')
        for i in range(4):
            if t == 0:
                e(f'v_lshlrev_b32 v{X+2*i}, 16, v{WPK+i}')
                e(f'v_and_b32 v{X+2*i+1}, s53, v{WPK+i}')
            else:
                e(f'v_lshlrev_b32 v{U+2*i}, 16, v{WPK+4+i}')
                e(f'v_and_b32 v{U+2*i+1}, s53, v{WPK+4+i}')
        if t == 1:
            for i in range(8): e(f'v_add_f32 v{X+i}, v{X+i}, v{U+i}')
    e('s_nop 1')
    for j in range(8): e(f'v_permlane32_swap_b32 v{X+j}, v{X+8+j}')
    e('s_nop 1')
    for j in range(8): e(f'v_add_f32 v{X+j}, v{X+j}, v{X+8+j}')
    e('s_nop 1')
    for j in range(4): e(f'v_permlane16_swap_b32 v{X+j}, v{X+4+j}')
    e('s_nop 1')
    for j in range(4): e(f'v_add_f32 v{X+j}, v{X+j}, v{X+4+j}')
    for rot in (8, 4):
        e('s_nop 1')
        for j in range(4): e(f'v_add_f32_dpp v{X+j}, v{X+j}, v{X+j} row_ror:{rot} row_mask:0xf bank_mask:0xf')
    e(f'v_lshrrev_b32 v{T+1}, 4, v{LN}')
    e(f'v_lshrrev_b32 v{T+2}, 1, v{T+1}')
    e(f'v_lshlrev_b32 v{T+2}, 9, v{T+2}')
    e(f'v_and_b32 v{T+1}, 1, v{T+1}')
    e(f'v_lshl_add_u32 v{T+2}, v{T+1}, 4, v{T+2}')
    e(f'v_lshl_add_u32 v{T+2}, v{T+5}, 5, v{T+2}')
    e('s_lshl_b32 s38, s5, 5\ns_add_u32 s38, s38, s4\ns_lshl_b32 s38, s38, 10\ns_lshl_b32 s39, s3, 7\ns_add_u32 s38, s38, s39')
    e(f's_add_u32 s38, s38, {WS_PART}')
    e(f'v_and_b32 v{T+1}, 15, v{LN}')
    e(f'v_cmp_gt_u32 vcc, 4, v{T+1}')
    e('s_and_saveexec_b64 s[76:77], vcc')
    e(f'buffer_store_dwordx4 v[{X}:{X+3}], v{T+2}, s[60:63], s38 offen{cfg.stflags}')
    e('s_mov_b64 exec, -1')
    if cfg.wait_flags:
        e('s_cmp_lg_u32 s3, 0')
        e('s_cbranch_scc1 L_ready_w')
        e(f'v_and_b32 v{T+1}, 31, v{LN}')
        e(f'v_lshlrev_b32 v{T+1}, 2, v{T+1}')
        e(f's_lshl_b32 s39, s5, 7\ns_add_u32 s39, s39, {WS_FW}')
        e(f's_mov_b32 s38, {cfg.spin}')
        e('L_spin_w:')
        e(f'buffer_load_dword v{T+2}, v{T+1}, s[60:63], s39 offen sc1')
        e('s_waitcnt vmcnt(0)')
        e(f'v_cmp_eq_u32 vcc, s64, v{T+2}')
        e('s_cmp_eq_u64 vcc, -1')
        e('s_cbranch_scc1 L_ready_w')
        if cfg.sleep: e(f's_sleep {cfg.sleep}')
        e('s_sub_u32 s38, s38, 1')
        e('s_cmp_lg_u32 s38, 0')
        e('s_cbranch_scc1 L_spin_w')
        e('L_ready_w:')
    if cfg.stamps: e('s_memtime s[58:59]')
    e('s_waitcnt vmcnt(0)')
    e('s_barrier')
    vm = Counter(e, 'vmcnt', 63)

    def rd_list(p, ks):
        st = FR + 16 * (ks & 1)
        slot = p % NS
        win = slot // 2
        xo = (slot % 2) * 32768
        wo = (slot % 2) * 32768 + ks * 4096
        xr = XA + 4 * win + ks; wr = WA + 2 * win
        return [
            (f'ds_read_b64_tr_b16 v[{st}:{st+1}], v{wr} offset:{wo}', ('W0', p, ks)),
            (f'ds_read_b64_tr_b16 v[{st+2}:{st+3}], v{wr} offset:{wo+1024}', ('W0', p, ks)),
            (f'ds_read_b128 v[{st+8}:{st+11}], v{xr} offset:{xo}', ('x0', p, ks)),
            (f'ds_read_b128 v[{st+12}:{st+15}], v{xr} offset:{xo+4096}', ('x1', p, ks)),
            (f'ds_read_b64_tr_b16 v[{st+4}:{st+5}], v{wr+1} offset:{wo}', ('W1', p, ks)),
            (f'ds_read_b64_tr_b16 v[{st+6}:{st+7}], v{wr+1} offset:{wo+1024}', ('W1', p, ks)),
        ]
    def group(p, ks, reads, last_in_phase=False):
        st = FR + 16 * (ks & 1)
        order = [(0, 0), (0, 1), (1, 1), (1, 0)]
        split = [(0, 3), (3, 6), (6, 6), (6, 6)] if last_in_phase else [(0, 2), (2, 4), (4, 6), (6, 6)]
        for i, (nb, mb) in enumerate(order):
            if p >= 0:
                lg.need([(f'W{nb}', p, ks), (f'x{mb}', p, ks)])
                if last_in_phase and i == 3 and cfg.earlywait: lg.drain()
                a = ACC + 16 * (2 * nb + mb)
                c = '0' if (p == 0 and ks == 0) else f'v[{a}:{a+15}]'
                if cfg.mfma: e(f'v_mfma_f32_32x32x16_bf16 v[{a}:{a+15}], v[{st+4*nb}:{st+4*nb+3}], v[{st+8+4*mb}:{st+8+4*mb+3}], {c}')
                else: e('s_nop 7')
            for (ins, tag) in reads[split[i][0]:split[i][1]]:
                if cfg.reads:
                    e(ins); lg.issue(tag)
    e('s_barrier')
    if cfg.stamps: e('s_memtime s[42:43]')
    GWR = 128; BWR = 160; RS = 192
    for p in range(NST):
        group(p - 1, 3, rd_list(p, 0))
        group(p, 0, rd_list(p, 1))
        group(p, 1, rd_list(p, 2))
        group(p, 2, rd_list(p, 3), last_in_phase=(p < NST - 1))
        if p < NST - 1: e('s_barrier')
    e(f'v_and_b32 v{T}, 31, v{LN}')
    e(f's_lshl_b32 s38, s6, 9\ns_add_u32 s38, s38, {TAB+1024}')
    e(f'v_lshl_add_u32 v{T+1}, v{T}, 3, s38')
    group(NST - 1, 3, [])
    e(f'ds_read_b64 v[{RS}:{RS+1}], v{T+1}'); lg.issue('rs')
    e(f'ds_read_b64 v[{RS+2}:{RS+3}], v{T+1} offset:256'); lg.issue('rs')
    for nb in range(2):
        for j in range(4):
            e(f'ds_read_b128 v[{GWR+16*nb+4*j}:{GWR+16*nb+4*j+3}], v{TA_} offset:{(nb*32+8*j)*4}'); lg.issue(('tg', nb, j))
            e(f'ds_read_b128 v[{BWR+16*nb+4*j}:{BWR+16*nb+4*j+3}], v{TA_} offset:{512+(nb*32+8*j)*4}'); lg.issue(('tg', nb, j))
        if nb == 0: pass
    if cfg.stamps: e('s_memtime s[44:45]')
    Y = 200; D = 208; SA = 212; SR = 213; GO = 214; XW = 216
    STG = STGSLOT * 32768
    e(f'v_and_b32 v{Y}, 7, v{LN}')
    e(f'v_lshlrev_b32 v{Y}, 4, v{Y}')
    e(f'v_lshrrev_b32 v{Y+1}, 5, v{LN}')
    e(f'v_lshl_add_u32 v{Y}, v{Y+1}, 3, v{Y}')
    e(f'v_lshl_add_u32 v{SA}, v{T}, 7, v{Y}')
    e(f's_lshl_b32 s38, s3, 13\ns_add_u32 s38, s38, {STG}')
    e(f'v_add_u32 v{SA}, s38, v{SA}')
    e(f'v_lshrrev_b32 v{Y}, 3, v{LN}')
    e(f'v_and_b32 v{Y+1}, 7, v{LN}')
    e(f'v_xor_b32 v{Y+2}, v{Y+1}, v{Y}')
    e(f'v_lshlrev_b32 v{Y+2}, 4, v{Y+2}')
    e(f'v_lshl_add_u32 v{SR}, v{Y}, 7, v{Y+2}')
    e(f'v_add_u32 v{SR}, s38, v{SR}')
    e(f'v_lshlrev_b32 v{GO}, 11, v{Y}')
    e(f'v_lshl_add_u32 v{GO}, v{Y+1}, 4, v{GO}')
    e('s_lshl_b32 s38, s4, 18\ns_lshl_b32 s39, s6, 17\ns_add_u32 s38, s38, s39')
    e('s_lshl_b32 s39, s5, 8\ns_add_u32 s38, s38, s39\ns_lshl_b32 s39, s7, 7\ns_add_u32 s50, s38, s39')
    for idx in range(16):
        mb, nb, j = idx >> 3, (idx >> 2) & 1, idx & 3
        rs = RS + 2 * mb
        a = ACC + 16 * (2 * nb + mb)
        gw = GWR + 16 * nb + 4 * j; bw = BWR + 16 * nb + 4 * j
        lg.need(['rs', ('tg', nb, j)])
        y = Y + 4 * (j & 1)
        for hh in range(2):
            e(f'v_pk_fma_f32 v[{y+2*hh}:{y+2*hh+1}], v[{gw+2*hh}:{gw+2*hh+1}], v[{rs}:{rs+1}], v[{bw+2*hh}:{bw+2*hh+1}] op_sel:[0,1,0] op_sel_hi:[1,1,1]')
        for hh in range(2):
            e(f'v_pk_fma_f32 v[{y+2*hh}:{y+2*hh+1}], v[{a+4*j+2*hh}:{a+4*j+2*hh+1}], v[{rs}:{rs+1}], v[{y+2*hh}:{y+2*hh+1}] op_sel_hi:[1,0,1]')
        d = D + 2 * (j & 1)
        e(f'v_xor_b32 v{XW+(j&1)}, {(nb*4+j)*16}, v{SA}')
        e(f'v_cvt_pk_bf16_f32 v{d}, v{y}, v{y+1}')
        e(f'v_cvt_pk_bf16_f32 v{d+1}, v{y+2}, v{y+3}')
        e(f'ds_write_b64 v{XW+(j&1)}, v[{d}:{d+1}] offset:{mb*4096}'); lg.issue(('sw', mb))
        if idx % 8 == 7:
            lg.need([('sw', mb)])
            r0 = ACC + 16 * mb
            for q in range(4):
                e(f'ds_read_b128 v[{r0+4*q}:{r0+4*q+3}], v{SR} offset:{mb*4096+q*1024}'); lg.issue(('sr', mb, q))
            for q in range(4):
                lg.need([('sr', mb, q)])
                e(f's_add_u32 s51, s50, {(mb*32+8*q)*2048}')
                e(f'buffer_store_dwordx4 v[{r0+4*q}:{r0+4*q+3}], v{GO}, s[20:23], s51 offen')
    e('s_branch L_end')

    e('L_dma:')
    vm = Counter(e, 'vmcnt', 63); lg = Counter(e, 'lgkmcnt', 15)
    VXO = 2; FL = 4; VL16 = 10; PR = 16
    e('s_sub_u32 s3, s3, 4')
    X = 32; L = 64; T = 96; A = 104
    e(f'v_lshrrev_b32 v{T}, 4, v0')
    e(f'v_and_b32 v{T+1}, 15, v0')
    e('s_lshl_b32 s38, s4, 7\ns_lshl_b32 s39, s5, 4\ns_add_u32 s38, s38, s39\ns_lshl_b32 s39, s3, 2\ns_add_u32 s38, s38, s39')
    e(f'v_add_u32 v{T+2}, s38, v{T}')
    e(f'v_lshlrev_b32 v{T+3}, 11, v{T+2}')
    e(f'v_lshl_add_u32 v{T+3}, v{T+1}, 4, v{T+3}')
    e('v_lshrrev_b32 v8, 3, v0')
    e('v_lshlrev_b32 v8, 11, v8')
    e('v_and_b32 v9, 7, v0')
    e('v_lshrrev_b32 v11, 4, v0')
    e('v_xor_b32 v9, v9, v11')
    e(f'v_lshl_add_u32 v{VXO}, v9, 4, v8')
    e(f'v_xor_b32 v{VXO+1}, 64, v{VXO}')
    e(f'v_add_u32 v{VXO+1}, {16384-1024}, v{VXO+1}')
    e(f'v_lshlrev_b32 v{VL16}, 4, v0')
    e('s_lshl_b32 s38, s4, 18\ns_lshl_b32 s39, s3, 16\ns_add_u32 s50, s38, s39\ns_lshl_b32 s51, s3, 12')
    e(f's_lshl_b32 s38, s5, 18\ns_add_u32 s52, s38, s51\ns_add_u32 s52, s52, {WS_W}')
    e('s_waitcnt lgkmcnt(0)')
    st(0)
    e(f's_load_dword s64, s[60:61], {WS_EPOCH}')
    def emit_ops(ops):
        for ins, tag in ops:
            e(ins)
            if tag: vm.issue(tag)
    def x_ops(q):
        slot = q % NS
        if not cfg.xdma: return []
        return [(f's_add_u32 m0, s51, {slot*32768}', None),
                (f's_add_u32 s54, s50, {q*128}', None),
                (f'buffer_load_dwordx4 v{VXO}, s[8:11], s54 offen lds', ('x', q)),
                (f'buffer_load_dwordx4 v{VXO+1}, s[8:11], s54 offen offset:1024 lds', ('x', q)),
                (f's_add_u32 m0, s51, {slot*32768+2048}', None),
                (f's_add_u32 s54, s50, {q*128+32768}', None),
                (f'buffer_load_dwordx4 v{VXO}, s[8:11], s54 offen lds', ('x', q)),
                (f'buffer_load_dwordx4 v{VXO+1}, s[8:11], s54 offen offset:1024 lds', ('x', q))]
    sc = cfg.dmaflags if cfg.sc1dma else ''
    def w_ops(q):
        slot = q % NS
        if not cfg.wdma: return []
        o = [(f's_add_u32 m0, s51, {slot*32768+16384}', None),
             (f's_add_u32 s55, s52, {q*16384}', None)]
        for j in range(4):
            o.append((f'buffer_load_dwordx4 v{VL16}, s[60:63], s55 offen offset:{1024*j}{sc} lds', ('w', q)))
        return o
    for q in range(cfg.prex): emit_ops(x_ops(q))
    if cfg.codepf:
        e('s_getpc_b64 s[78:79]')
        e('L_pc:')
        e('s_sub_u32 s78, s78, L_pc-' + KNAME)
        e('s_subb_u32 s79, s79, 0')
        e('v_lshlrev_b32 v12, 7, v0')
        e('s_lshl_b32 s38, s3, 13')
        e('v_add_u32 v12, s38, v12')
        e('CODEPF')
    e(f'v_lshlrev_b32 v{FL+2}, 2, v0')
    e('v_and_b32 v13, 31, v0')
    e('v_lshlrev_b32 v13, 2, v13')
    e(f's_lshl_b32 s38, s5, 7\ns_add_u32 s38, s38, {WS_FC}')
    e('v_add_u32 v14, s38, v13')
    e(f's_lshl_b32 s38, s4, 7\ns_add_u32 s38, s38, {WS_FR}')
    e('v_and_b32 v13, 7, v0')
    e('v_lshlrev_b32 v13, 2, v13')
    e('v_add_u32 v15, s38, v13')
    e('v_cmp_gt_u32 vcc, 32, v0')
    e('s_nop 1')
    e(f'v_cndmask_b32 v{FL+1}, v15, v14, vcc')
    e('s_cmp_eq_u32 s3, 0')
    e('s_cselect_b32 s38, 0, 0x7fff0000')
    e(f'v_add_u32 v{FL+3}, s38, v{FL+1}')
    e('s_waitcnt lgkmcnt(0)')
    e(f's_add_u32 s64, s64, {TAG_STEP}')
    e('s_barrier')
    for j in range(8):
        e(f'buffer_load_dwordx4 v[{X+4*j}:{X+4*j+3}], v{T+3}, s[8:11], 0 offen offset:{256*j}'); vm.issue(('sx', j))
    st(1)
    e('s_barrier')
    st(2)
    for q in range(cfg.prex, cfg.prex2): emit_ops(x_ops(q))
    vm.need([('sx', 7)])
    st(3)
    for d in range(32):
        e(f'v_lshlrev_b32 v{L+d}, 16, v{X+d}')
        e(f'v_and_b32 v{X+d}, s53, v{X+d}')
    for a in range(4):
        e(f'v_pk_add_f32 v[{A+2*a}:{A+2*a+1}], v[{X+2*a}:{X+2*a+1}], v[{L+2*a}:{L+2*a+1}]')
    for d in range(8, 32, 2):
        a = (d // 2) % 4
        e(f'v_pk_add_f32 v[{A+2*a}:{A+2*a+1}], v[{A+2*a}:{A+2*a+1}], v[{X+d}:{X+d+1}]')
        e(f'v_pk_add_f32 v[{A+2*a}:{A+2*a+1}], v[{A+2*a}:{A+2*a+1}], v[{L+d}:{L+d+1}]')
    def fold(dst):
        e(f'v_pk_add_f32 v[{A}:{A+1}], v[{A}:{A+1}], v[{A+2}:{A+3}]')
        e(f'v_pk_add_f32 v[{A+4}:{A+5}], v[{A+4}:{A+5}], v[{A+6}:{A+7}]')
        e(f'v_pk_add_f32 v[{A}:{A+1}], v[{A}:{A+1}], v[{A+4}:{A+5}]')
        e(f'v_add_f32 v{dst}, v{A}, v{A+1}')
        for rot in (8, 4, 2, 1):
            e('s_nop 1')
            e(f'v_add_f32_dpp v{dst}, v{dst}, v{dst} row_ror:{rot} row_mask:0xf bank_mask:0xf')
    M = A + 8
    fold(M)
    e(f'v_mul_f32 v{M}, 0xba800000, v{M}')
    for d in range(0, 32, 2):
        e(f'v_pk_add_f32 v[{X+d}:{X+d+1}], v[{X+d}:{X+d+1}], v[{M}:{M+1}] op_sel_hi:[1,0]')
        e(f'v_pk_add_f32 v[{L+d}:{L+d+1}], v[{L+d}:{L+d+1}], v[{M}:{M+1}] op_sel_hi:[1,0]')
    for a in range(4):
        e(f'v_pk_mul_f32 v[{A+2*a}:{A+2*a+1}], v[{X+2*a}:{X+2*a+1}], v[{X+2*a}:{X+2*a+1}]')
    for d in range(8, 32, 2):
        a = (d // 2) % 4
        e(f'v_pk_fma_f32 v[{A+2*a}:{A+2*a+1}], v[{X+d}:{X+d+1}], v[{X+d}:{X+d+1}], v[{A+2*a}:{A+2*a+1}]')
    for d in range(0, 32, 2):
        a = (d // 2) % 4
        e(f'v_pk_fma_f32 v[{A+2*a}:{A+2*a+1}], v[{L+d}:{L+d+1}], v[{L+d}:{L+d+1}], v[{A+2*a}:{A+2*a+1}]')
    V = A + 10
    fold(V)
    e('s_mov_b32 s39, 0x3727c5ac')
    e(f'v_mov_b32 v{V+1}, s39')
    e(f'v_fmac_f32 v{V+1}, 0x3a800000, v{V}')
    e(f'v_rsq_f32 v{V}, v{V+1}')
    e('s_nop 0')
    e(f'v_mul_f32 v{V+1}, v{M}, v{V}')
    e(f'v_lshlrev_b32 v{T+2}, 3, v{T+2}')
    e(f'v_cmp_eq_u32 vcc, 0, v{T+1}')
    e('s_and_saveexec_b64 s[76:77], vcc')
    e(f'buffer_store_dwordx2 v[{V}:{V+1}], v{T+2}, s[60:63], 0 offen{cfg.stflags}'); vm.issue('st')
    e('s_mov_b64 exec, -1')
    def poll(tagname, addr):
        e(f's_mov_b32 s38, {cfg.spin}')
        e(f'L_spin_{tagname}:')
        e(f'buffer_load_dword v{FL}, v{addr}, s[60:63], 0 offen sc1')
        e('s_waitcnt vmcnt(0)')
        e(f'v_cmp_eq_u32 vcc, s64, v{FL}')
        e('s_cmp_eq_u64 vcc, -1')
        e(f's_cbranch_scc1 L_ready_{tagname}')
        if cfg.sleep: e(f's_sleep {cfg.sleep}')
        e('s_sub_u32 s38, s38, 1')
        e('s_cmp_lg_u32 s38, 0')
        e(f's_cbranch_scc1 L_spin_{tagname}')
        e(f'L_ready_{tagname}:')
    st(4)
    vm.need(['st'])
    e('s_barrier')
    iw = 0; ix = cfg.prex2
    for q in range(cfg.prew):
        emit_ops(w_ops(q)); iw += 1
    vm.need([('w', 0)])
    e('s_barrier')
    if cfg.stamps: e('s_memtime s[42:43]')
    for p in range(NST - 1):
        if p == 0:
            e('s_cmp_lg_u32 s3, 0')
            e('s_cbranch_scc1 L_noflaga')
            e(f's_lshl_b32 s38, s5, 7\ns_lshl_b32 s39, s4, 2\ns_add_u32 s38, s38, s39\ns_add_u32 s38, s38, {WS_FC}')
            e(f's_lshl_b32 s39, s4, 7\ns_lshl_b32 s37, s5, 2\ns_add_u32 s39, s39, s37\ns_add_u32 s39, s39, {WS_FR}')
            e('v_mov_b32 v12, s38')
            e('v_writelane_b32 v12, s39, 1')
            e('v_mov_b32 v13, s64')
            e('s_mov_b64 exec, 3')
            e('buffer_store_dword v13, v12, s[60:63], 0 offen sc1')
            e('s_mov_b64 exec, -1')
            e('L_noflaga:')
        lim = min(NST - 1, p + NS - 1)
        for _ in range(2):
            if iw <= lim:
                emit_ops(w_ops(iw)); iw += 1
            if ix <= lim:
                emit_ops(x_ops(ix)); ix += 1
        if p == cfg.PP:
            e(f'buffer_load_dword v{FL}, v{FL+3}, s[60:63], 0 offen sc1'); vm.issue('poll')
        if p == cfg.PC:
            vm.need(['poll'])
            e('s_cmp_lg_u32 s3, 0')
            e('s_cbranch_scc1 L_ready_a')
            e('s_mov_b32 s76, -1\ns_mov_b32 s77, 0xff')
            e(f'v_cmp_eq_u32 vcc, s64, v{FL}')
            e('s_and_b64 vcc, vcc, s[76:77]')
            e('s_cmp_eq_u64 vcc, s[76:77]')
            e('s_cbranch_scc1 L_ready_a')
            if cfg.wait_flags:
                e(f's_mov_b32 s38, {cfg.spin}')
                e('L_spin_a:')
                e(f'buffer_load_dword v{FL}, v{FL+1}, s[60:63], 0 offen sc1')
                e('s_waitcnt vmcnt(0)')
                e(f'v_cmp_eq_u32 vcc, s64, v{FL}')
                e('s_and_b64 vcc, vcc, s[76:77]')
                e('s_cmp_eq_u64 vcc, s[76:77]')
                e('s_cbranch_scc1 L_ready_a')
                e('s_sub_u32 s38, s38, 1')
                e('s_cmp_lg_u32 s38, 0')
                e('s_cbranch_scc1 L_spin_a')
            e('L_ready_a:')
        if p == cfg.PL:
            e('v_lshrrev_b32 v12, 4, v0')
            e('v_lshlrev_b32 v12, 10, v12')
            e('v_and_b32 v13, 15, v0')
            e('v_lshl_add_u32 v12, v13, 4, v12')
            e(f's_lshl_b32 s38, s5, 15\ns_lshl_b32 s39, s3, 8\ns_add_u32 s38, s38, s39\ns_add_u32 s38, s38, {WS_PART}')
            for t in range(8):
                if t: e('s_add_u32 s38, s38, 0x1000')
                e(f'buffer_load_dwordx4 v[{PR+8+4*t}:{PR+8+4*t+3}], v12, s[60:63], s38 offen{cfg.ldflags}'); vm.issue('pp')
            e('s_lshl_b32 s38, s4, 10\ns_lshl_b32 s39, s3, 8\ns_add_u32 s38, s38, s39')
            e(f'buffer_load_dword v{PR+40}, v{FL+2}, s[60:63], s38 offen{cfg.ldflags}'); vm.issue('ps')
        if p == cfg.PS:
            vm.need(['pp', 'ps'])
            P = PR + 8
            for h in (16, 8, 4):
                for i in range(h): e(f'v_add_f32 v{P+i}, v{P+i}, v{P+h+i}')
            e('s_nop 1')
            e(f'v_permlane32_swap_b32 v{P}, v{P+2}\nv_permlane32_swap_b32 v{P+1}, v{P+3}')
            e('s_nop 1')
            e(f'v_add_f32 v{P}, v{P}, v{P+2}\nv_add_f32 v{P+1}, v{P+1}, v{P+3}')
            e('s_nop 1')
            e(f'v_permlane16_swap_b32 v{P}, v{P+1}')
            e('s_nop 1')
            e(f'v_add_f32 v{P}, v{P}, v{P+1}')
            e('v_lshrrev_b32 v12, 4, v0')
            e('v_and_b32 v13, 15, v0')
            e('v_lshlrev_b32 v13, 4, v13')
            e('v_lshl_add_u32 v12, v12, 2, v13')
            e(f's_lshl_b32 s38, s3, 8\ns_add_u32 s39, s38, {TAB}')
            e('v_add_u32 v12, s39, v12')
            e(f'ds_write_b32 v12, v{P}'); lg.issue('tab')
            e(f's_add_u32 s39, s38, {TAB+1024}')
            e(f'v_add_u32 v13, s39, v{FL+2}')
            e(f'ds_write_b32 v13, v{PR+40}'); lg.issue('tab')
            lg.drain()
        vm.need([('x', p + 1), ('w', p + 1)])
        e('s_barrier')
    assert ix == NST and iw == NST
    if cfg.stamps: e('s_memtime s[44:45]')
    e('s_or_b32 s38, s2, s3')
    e('s_cmp_lg_u32 s38, 0')
    e('s_cbranch_scc1 L_noepoch')
    e(f'v_lshlrev_b32 v12, 4, v0')
    e(f's_mov_b32 s38, {cfg.spin}')
    e('L_spin_e:')
    e(f's_mov_b32 s39, {WS_FW}')
    e('buffer_load_dwordx4 v[16:19], v12, s[60:63], s39 offen sc1')
    e('s_waitcnt vmcnt(0)')
    e('v_cmp_eq_u32 s[76:77], s64, v16')
    e('v_cmp_eq_u32 s[78:79], s64, v17')
    e('v_cmp_eq_u32 s[80:81], s64, v18')
    e('v_cmp_eq_u32 vcc, s64, v19')
    e('s_and_b64 s[76:77], s[76:77], s[78:79]')
    e('s_and_b64 s[80:81], s[80:81], vcc')
    e('s_and_b64 s[76:77], s[76:77], s[80:81]')
    e('s_cmp_eq_u64 s[76:77], -1')
    e('s_cbranch_scc1 L_doepoch')
    e('s_sub_u32 s38, s38, 1')
    e('s_cmp_lg_u32 s38, 0')
    e('s_cbranch_scc1 L_spin_e')
    e('L_doepoch:')
    e(f'v_mov_b32 v12, {WS_EPOCH}')
    e('v_mov_b32 v13, s64')
    e('s_mov_b64 exec, 1')
    e('buffer_store_dword v13, v12, s[60:63], 0 offen sc1')
    e('s_mov_b64 exec, -1')
    e('L_noepoch:')
    e('L_end:')
    if cfg.stamps:
        e('s_waitcnt vmcnt(0) lgkmcnt(0)')
        e('s_memtime s[46:47]')
        e('s_memrealtime s[56:57]')
        e('s_waitcnt lgkmcnt(0)')
        e('s_sub_u32 s42, s42, s40\ns_sub_u32 s44, s44, s40\ns_sub_u32 s46, s46, s40\ns_sub_u32 s58, s58, s40')
        e('v_mov_b32 v4, s42\nv_mov_b32 v5, s44\nv_mov_b32 v6, s46\nv_mov_b32 v7, s48\nv_mov_b32 v8, s56\nv_mov_b32 v9, s58\nv_mov_b32 v10, 0\nv_mov_b32 v11, 0')
        for i in range(5): e(f's_sub_u32 s{82+2*i}, s{82+2*i}, s40\nv_mov_b32 v{16+i}, s{82+2*i}')
        e(f's_lshl_b32 s65, s2, 3\ns_add_u32 s65, s65, s66\ns_lshl_b32 s65, s65, 6\ns_add_u32 s65, s65, {WS_STAMP}')
        e('v_mov_b32 v12, s65')
        e('s_mov_b64 exec, 1')
        e('buffer_store_dwordx4 v[4:7], v12, s[60:63], 0 offen')
        e('buffer_store_dwordx4 v[8:11], v12, s[60:63], 0 offen offset:16')
        e('buffer_store_dwordx4 v[16:19], v12, s[60:63], 0 offen offset:32')
        e('buffer_store_dwordx4 v[20:23], v12, s[60:63], 0 offen offset:48')
    e('L_exit:')
    e('s_endpgm')
    e('L_codeend:')
    e('.section .rodata,"a"')
    e(f'.p2align 6\n.amdhsa_kernel {KNAME}')
    e('  .amdhsa_next_free_vgpr 224\n  .amdhsa_next_free_sgpr 96\n  .amdhsa_accum_offset 224')
    e('  .amdhsa_group_segment_fixed_size 0\n  .amdhsa_kernarg_size 56\n  .amdhsa_user_sgpr_count 2')
    e('  .amdhsa_user_sgpr_kernarg_segment_ptr 1\n  .amdhsa_system_sgpr_workgroup_id_x 1\n.end_amdhsa_kernel')
    txt = e.text()
    pf = (f'v_cmp_gt_u32 vcc, L_codeend-{KNAME}, v12\n'
          's_and_saveexec_b64 s[80:81], vcc\n'
          's_cbranch_execz L_nopf\n'
          'global_load_dword v11, v12, s[78:79]\n'
          'L_nopf:\n'
          's_mov_b64 exec, -1')
    txt = txt.replace('CODEPF', pf)
    return txt

if __name__ == '__main__':
    import ast
    kw = {}
    for a in sys.argv[1:]:
        k, v = a.split('=')
        kw[k] = ast.literal_eval(v)
    print(gen(Cfg(**kw)))
```

```python
import sys
sys.path.insert(0, 'gen')
from asmlib import Emitter, Counter

KNAME = 'standalone__layernorm_linear__prompt_kernel'
WS_STATS = 0
WS_EPOCH = 0x8000
WS_FW = 0xC000
WS_FC = 0xA000
WS_FR = 0xB000
WS_PART = 0x10000
WS_STAMP = 0x80000
WS_W = 0x100000
TAG_STEP = 0x9E3779B9

HEADER = '''; LayerNorm(x)*g + b followed by @ w, fused in one launch.
'''

class Cfg:
    NS = 5
    PP = 5
    PC = 9
    PL = 10
    PS = 14
    prew = 3
    prex = 5
    statsplit = 8
    statwhen = 's'
    polldelay = 0
    ntstat = ' nt'; ntslab = ' nt'; ntx = ' nt'; ntout = ''; ntw = ''
    prex1 = 2
    statdelay0 = 0
    onepass = True
    xlate = False
    pipepoll = 3
    pollgap = 6
    stamps = False
    xmap = 0
    codepf = True
    mfma = True; reads = True; xdma = True; wdma = True
    wait_flags = True
    earlywait = True
    sleep = 1
    spin = 40000
    def __init__(self, **kw):
        for k, v in kw.items():
            assert hasattr(self, k), k
            setattr(self, k, v)


def gen(cfg):
    e = Emitter()
    def st(i):
        if cfg.stamps: e(f's_memtime s[{82+2*i}:{83+2*i}]')
    NS = cfg.NS; NST = 16
    LDS = NS * 32768
    assert NS == 5
    TAB = ((NST - 5) % NS) * 32768
    STG = ((NST - 4) % NS) * 32768
    e(HEADER.rstrip())
    e(f'; @launch grid=(256,1,1) block=(512,1,1) lds={LDS}')
    e('.amdgcn_target "amdgcn-amd-amdhsa--gfx950"\n.text')
    e(f'.globl {KNAME}\n.p2align 8\n.type {KNAME},@function\n{KNAME}:')
    e('s_cmp_ge_u32 s2, 0x100')
    e('s_cbranch_scc1 L_exit')
    if cfg.stamps: e('s_memtime s[40:41]\ns_memrealtime s[48:49]')
    e('s_load_dwordx2 s[12:13], s[0:1], 24')
    e('s_load_dwordx2 s[16:17], s[0:1], 8')
    e('s_load_dwordx2 s[8:9], s[0:1], 0')
    e('s_load_dwordx2 s[68:69], s[0:1], 16')
    e('s_load_dwordx2 s[60:61], s[0:1], 48')
    e('s_load_dwordx2 s[20:21], s[0:1], 32')
    e('v_lshrrev_b32 v1, 6, v0')
    e('v_and_b32 v0, 63, v0')
    e('v_readfirstlane_b32 s3, v1')
    e('s_mov_b32 s10, 0x800000\ns_mov_b32 s11, 0x20000')
    e('s_mov_b32 s14, 0x200000\ns_mov_b32 s15, 0x20000')
    e('s_mov_b32 s18, 0x800\ns_mov_b32 s19, 0x20000')
    e('s_mov_b32 s70, 0x800\ns_mov_b32 s71, 0x20000')
    e('s_mov_b32 s22, 0x800000\ns_mov_b32 s23, 0x20000')
    e('s_mov_b32 s62, 0x300000\ns_mov_b32 s63, 0x20000')
    e('s_and_b32 s4, s2, 7')
    e('s_lshr_b32 s5, s2, 3')
    if cfg.xmap == 0:
        e('s_and_b32 s6, s5, 3\ns_lshl_b32 s4, s4, 2\ns_add_u32 s4, s4, s6\ns_lshr_b32 s5, s5, 2')
    else:
        e('s_and_b32 s6, s5, 7\ns_lshr_b32 s7, s4, 1\ns_lshl_b32 s7, s7, 3\ns_add_u32 s6, s6, s7')
        e('s_and_b32 s4, s4, 1\ns_lshl_b32 s4, s4, 2\ns_lshr_b32 s5, s5, 3\ns_add_u32 s5, s5, s4\ns_mov_b32 s4, s6')
    e('s_mov_b32 s66, s3')
    e('s_mov_b32 s53, 0xffff0000')
    e('s_cmp_ge_u32 s3, 4')
    e('s_cbranch_scc1 L_dma')

    def tagstore(vtmp, addr_sgpr):
        e(f'v_mov_b32 v{vtmp}, s{addr_sgpr}')
        e(f'v_mov_b32 v{vtmp+1}, s64')
        e('s_mov_b64 exec, 1')
        e(f'buffer_store_dword v{vtmp+1}, v{vtmp}, s[60:63], 0 offen sc1')
        e('s_mov_b64 exec, -1')

    ACC = 0; FR = 64; XA = 96; WA = 108; LN = 114; TA_ = 115
    lg = Counter(e, 'lgkmcnt', 15); vm = Counter(e, 'vmcnt', 63)
    T = 116
    e(f'v_mov_b32 v{LN}, v0')
    X = 128; L = 160; A = 192; RW_ = 204; I16 = 205
    e(f'v_lshrrev_b32 v{T}, 4, v{LN}')
    e(f'v_and_b32 v{I16}, 15, v{LN}')
    e('s_lshl_b32 s38, s4, 7\ns_lshl_b32 s39, s5, 4\ns_add_u32 s38, s38, s39\ns_lshl_b32 s39, s3, 2\ns_add_u32 s38, s38, s39')
    e(f'v_add_u32 v{RW_}, s38, v{T}')
    e(f'v_lshlrev_b32 v{T+11}, 11, v{RW_}')
    e(f'v_lshl_add_u32 v{T+11}, v{I16}, 4, v{T+11}')
    e('s_and_b32 s6, s3, 1')
    e('s_lshr_b32 s7, s3, 1')
    e(f'v_and_b32 v{T+1}, 31, v{LN}')
    e(f'v_lshrrev_b32 v{T+2}, 5, v{LN}')
    e(f'v_bfe_u32 v{T+3}, v{LN}, 1, 3')
    e(f'v_xor_b32 v{T+3}, v{T+3}, v{T+2}')
    e(f'v_lshlrev_b32 v{T+3}, 4, v{T+3}')
    e('s_lshl_b32 s37, s6, 13')
    e(f'v_lshl_add_u32 v{T+9}, v{T+1}, 7, v{T+3}')
    e(f'v_add_u32 v{XA}, s37, v{T+9}')
    for ks in range(1, 4): e(f'v_xor_b32 v{XA+ks}, {32*ks}, v{XA}')
    for w in range(1, 3):
        for ks in range(4): e(f'v_add_u32 v{XA+4*w+ks}, {0x10000*w}, v{XA+ks}')
    e(f'v_lshrrev_b32 v{T+1}, 4, v{LN}')
    e(f'v_bfe_u32 v{T+2}, v{LN}, 2, 2')
    e(f'v_and_b32 v{T+3}, 3, v{LN}')
    e(f'v_lshrrev_b32 v{T+9}, 1, v{T+1}')
    e(f'v_lshl_add_u32 v{T+9}, v{T+9}, 3, v{T+2}')
    e(f'v_lshlrev_b32 v{T+9}, 8, v{T+9}')
    e(f'v_and_b32 v{T+1}, 1, v{T+1}')
    e(f'v_lshlrev_b32 v{T+1}, 1, v{T+1}')
    e(f'v_lshrrev_b32 v{T+10}, 1, v{T+3}')
    e(f'v_add_u32 v{T+1}, v{T+1}, v{T+10}')
    e('s_lshl_b32 s37, s7, 3')
    e(f'v_add_u32 v{T+1}, s37, v{T+1}')
    e(f'v_lshlrev_b32 v{T+2}, 2, v{T+2}')
    e(f'v_xor_b32 v{T+1}, v{T+1}, v{T+2}')
    e(f'v_lshlrev_b32 v{T+1}, 4, v{T+1}')
    e(f'v_and_b32 v{T+3}, 1, v{T+3}')
    e(f'v_lshl_add_u32 v{T+1}, v{T+3}, 3, v{T+1}')
    e(f'v_add_u32 v{T+1}, v{T+1}, v{T+9}')
    e(f'v_add_u32 v{WA}, 0x4000, v{T+1}')
    e(f'v_xor_b32 v{WA+1}, 64, v{WA}')
    for w in range(1, 3):
        for nb in range(2): e(f'v_add_u32 v{WA+2*w+nb}, {0x10000*w}, v{WA+nb}')
    e(f'v_lshrrev_b32 v{T+1}, 5, v{LN}')
    e(f'v_lshlrev_b32 v{T+1}, 4, v{T+1}')
    e(f's_lshl_b32 s37, s7, 8\ns_add_u32 s37, s37, {TAB}')
    e(f'v_add_u32 v{TA_}, s37, v{T+1}')
    e('s_waitcnt lgkmcnt(0)')
    st(0)
    e(f's_load_dword s64, s[60:61], {WS_EPOCH}')
    def sload(j):
        e(f'buffer_load_dwordx4 v[{X+4*j}:{X+4*j+3}], v{T+11}, s[8:11], 0 offen offset:{256*j}{cfg.ntstat}'); vm.issue(('sx', j))
    VX = 208
    e(f'v_lshrrev_b32 v{T+1}, 3, v{LN}')
    e(f'v_lshlrev_b32 v{T+1}, 11, v{T+1}')
    e(f'v_and_b32 v{T+2}, 7, v{LN}')
    e(f'v_lshrrev_b32 v{T+3}, 4, v{LN}')
    e(f'v_xor_b32 v{T+2}, v{T+2}, v{T+3}')
    e(f'v_lshl_add_u32 v{VX}, v{T+2}, 4, v{T+1}')
    e(f'v_xor_b32 v{VX+1}, 64, v{VX}')
    e(f'v_add_u32 v{VX+1}, {16384-1024}, v{VX+1}')
    e('s_lshl_b32 s37, s4, 18\ns_lshl_b32 s39, s3, 16\ns_add_u32 s50, s37, s39\ns_lshl_b32 s51, s3, 12')
    def cx(q):
        slot = q % NS
        e(f's_add_u32 m0, s51, {slot*32768}')
        e(f's_add_u32 s54, s50, {q*128}')
        e(f'buffer_load_dwordx4 v{VX}, s[8:11], s54 offen{cfg.ntx} lds'); vm.issue(('x', q))
        e(f'buffer_load_dwordx4 v{VX+1}, s[8:11], s54 offen offset:1024{cfg.ntx} lds'); vm.issue(('x', q))
        e(f's_add_u32 m0, s51, {slot*32768+2048}')
        e(f's_add_u32 s54, s50, {q*128+32768}')
        e(f'buffer_load_dwordx4 v{VX}, s[8:11], s54 offen{cfg.ntx} lds'); vm.issue(('x', q))
        e(f'buffer_load_dwordx4 v{VX+1}, s[8:11], s54 offen offset:1024{cfg.ntx} lds'); vm.issue(('x', q))
    if cfg.statwhen == '0':
        if cfg.statdelay0: e(f's_sleep {cfg.statdelay0}')
        for j in range(8): sload(j)
        e('s_barrier')
    else:
        if cfg.statwhen == 's': e('s_barrier')
        else: e('s_barrier')
        for j in range(cfg.statsplit): sload(j)
        if cfg.statwhen == 's': e('s_barrier')
        if cfg.statsplit < 8:
            vm.need([('sx', 0)])
            for j in range(cfg.statsplit, 8): sload(j)
    st(1)
    vm.need([('sx', 7)])
    st(2)
    for q in range(cfg.prex1): cx(q)
    M = A + 8; V = A + 10
    if cfg.onepass:
        e('s_mov_b32 s39, 0x3f803f80')
        for a in range(8): e(f'v_mov_b32 v{A+a}, 0')
        for j in range(8):
            for i in range(4): e(f'v_dot2c_f32_bf16 v{A+i}, s39, v{X+4*j+i}')
            for i in range(4): e(f'v_dot2c_f32_bf16 v{A+4+i}, v{X+4*j+i}, v{X+4*j+i}')
        e('s_nop 2')
        e(f'v_add_f32 v{A}, v{A}, v{A+1}\nv_add_f32 v{A+2}, v{A+2}, v{A+3}')
        e(f'v_add_f32 v{A+4}, v{A+4}, v{A+5}\nv_add_f32 v{A+6}, v{A+6}, v{A+7}')
        e(f'v_add_f32 v{M}, v{A}, v{A+2}\nv_add_f32 v{V+1}, v{A+4}, v{A+6}')
        for rot in (8, 4, 2, 1):
            e('s_nop 0')
            e(f'v_add_f32_dpp v{M}, v{M}, v{M} row_ror:{rot} row_mask:0xf bank_mask:0xf')
            e(f'v_add_f32_dpp v{V+1}, v{V+1}, v{V+1} row_ror:{rot} row_mask:0xf bank_mask:0xf')
            e('s_nop 0')
        e(f'v_mul_f32 v{M}, 0xba800000, v{M}')
        e(f'v_mul_f32 v{V+1}, 0x3a800000, v{V+1}')
        e(f'v_fma_f32 v{V+1}, -v{M}, v{M}, v{V+1}')
        e(f'v_max_f32 v{V+1}, 0, v{V+1}')
        e(f'v_add_f32 v{V+1}, 0x3727c5ac, v{V+1}')
    else:
        for d in range(32):
            e(f'v_lshlrev_b32 v{L+d}, 16, v{X+d}')
            e(f'v_and_b32 v{X+d}, s53, v{X+d}')
        for a in range(4):
            e(f'v_pk_add_f32 v[{A+2*a}:{A+2*a+1}], v[{X+2*a}:{X+2*a+1}], v[{L+2*a}:{L+2*a+1}]')
        for d in range(8, 32, 2):
            a = (d // 2) % 4
            e(f'v_pk_add_f32 v[{A+2*a}:{A+2*a+1}], v[{A+2*a}:{A+2*a+1}], v[{X+d}:{X+d+1}]')
            e(f'v_pk_add_f32 v[{A+2*a}:{A+2*a+1}], v[{A+2*a}:{A+2*a+1}], v[{L+d}:{L+d+1}]')
        def fold(dst):
            e(f'v_pk_add_f32 v[{A}:{A+1}], v[{A}:{A+1}], v[{A+2}:{A+3}]')
            e(f'v_pk_add_f32 v[{A+4}:{A+5}], v[{A+4}:{A+5}], v[{A+6}:{A+7}]')
            e(f'v_pk_add_f32 v[{A}:{A+1}], v[{A}:{A+1}], v[{A+4}:{A+5}]')
            e(f'v_add_f32 v{dst}, v{A}, v{A+1}')
            for rot in (8, 4, 2, 1):
                e('s_nop 1')
                e(f'v_add_f32_dpp v{dst}, v{dst}, v{dst} row_ror:{rot} row_mask:0xf bank_mask:0xf')
        M = A + 8
        fold(M)
        e(f'v_mul_f32 v{M}, 0xba800000, v{M}')
        for d in range(0, 32, 2):
            e(f'v_pk_add_f32 v[{X+d}:{X+d+1}], v[{X+d}:{X+d+1}], v[{M}:{M+1}] op_sel_hi:[1,0]')
            e(f'v_pk_add_f32 v[{L+d}:{L+d+1}], v[{L+d}:{L+d+1}], v[{M}:{M+1}] op_sel_hi:[1,0]')
        for a in range(4):
            e(f'v_pk_mul_f32 v[{A+2*a}:{A+2*a+1}], v[{X+2*a}:{X+2*a+1}], v[{X+2*a}:{X+2*a+1}]')
        for d in range(8, 32, 2):
            a = (d // 2) % 4
            e(f'v_pk_fma_f32 v[{A+2*a}:{A+2*a+1}], v[{X+d}:{X+d+1}], v[{X+d}:{X+d+1}], v[{A+2*a}:{A+2*a+1}]')
        for d in range(0, 32, 2):
            a = (d // 2) % 4
            e(f'v_pk_fma_f32 v[{A+2*a}:{A+2*a+1}], v[{L+d}:{L+d+1}], v[{L+d}:{L+d+1}], v[{A+2*a}:{A+2*a+1}]')
        V = A + 10
        fold(V)
        e('s_mov_b32 s39, 0x3727c5ac')
        e(f'v_mov_b32 v{V+1}, s39')
        e(f'v_fmac_f32 v{V+1}, 0x3a800000, v{V}')
    e(f'v_rsq_f32 v{V}, v{V+1}')
    e('s_nop 0')
    e(f'v_mul_f32 v{V+1}, v{M}, v{V}')
    e(f'v_lshlrev_b32 v{RW_}, 3, v{RW_}')
    e(f'v_cmp_eq_u32 vcc, 0, v{I16}')
    e('s_and_saveexec_b64 s[76:77], vcc')
    e(f'buffer_store_dwordx2 v[{V}:{V+1}], v{RW_}, s[60:63], 0 offen sc1')
    e('s_mov_b64 exec, -1')
    if not cfg.xlate:
        for q in range(cfg.prex1, cfg.prex): cx(q)
    e('s_waitcnt lgkmcnt(0)')
    e(f's_add_u32 s64, s64, {TAG_STEP}')
    st(3)
    e('s_barrier')
    if cfg.xlate:
        vm.q = []
        e('s_waitcnt vmcnt(0)')
        e(f's_lshl_b32 s38, s4, 7\ns_lshl_b32 s39, s5, 4\ns_add_u32 s38, s38, s39\ns_lshl_b32 s39, s3, 2\ns_add_u32 s38, s38, s39\ns_add_u32 s38, s38, {WS_FR}')
        tagstore(T + 1, 38)
        for q in range(cfg.prex1, cfg.prex): cx(q)
    if not cfg.xlate:
        e('s_waitcnt vmcnt(0)')
        e(f's_lshl_b32 s38, s4, 7\ns_lshl_b32 s39, s5, 4\ns_add_u32 s38, s38, s39\ns_lshl_b32 s39, s3, 2\ns_add_u32 s38, s38, s39\ns_add_u32 s38, s38, {WS_FR}')
        tagstore(T + 1, 38)
        vm.q = []

    def rd_list(p, ks):
        st_ = FR + 16 * (ks & 1)
        slot = p % NS
        win = slot // 2
        xo = (slot % 2) * 32768
        wo = (slot % 2) * 32768 + ks * 4096
        xr = XA + 4 * win + ks; wr = WA + 2 * win
        return [
            (f'ds_read_b64_tr_b16 v[{st_}:{st_+1}], v{wr} offset:{wo}', ('W0', p, ks)),
            (f'ds_read_b64_tr_b16 v[{st_+2}:{st_+3}], v{wr} offset:{wo+1024}', ('W0', p, ks)),
            (f'ds_read_b128 v[{st_+8}:{st_+11}], v{xr} offset:{xo}', ('x0', p, ks)),
            (f'ds_read_b128 v[{st_+12}:{st_+15}], v{xr} offset:{xo+4096}', ('x1', p, ks)),
            (f'ds_read_b64_tr_b16 v[{st_+4}:{st_+5}], v{wr+1} offset:{wo}', ('W1', p, ks)),
            (f'ds_read_b64_tr_b16 v[{st_+6}:{st_+7}], v{wr+1} offset:{wo+1024}', ('W1', p, ks)),
        ]
    def group(p, ks, reads, last_in_phase=False):
        st_ = FR + 16 * (ks & 1)
        order = [(0, 0), (0, 1), (1, 1), (1, 0)]
        split = [(0, 3), (3, 6), (6, 6), (6, 6)] if last_in_phase else [(0, 2), (2, 4), (4, 6), (6, 6)]
        for i, (nb, mb) in enumerate(order):
            if p >= 0:
                lg.need([(f'W{nb}', p, ks), (f'x{mb}', p, ks)])
                if last_in_phase and i == 3 and cfg.earlywait: lg.drain()
                a = ACC + 16 * (2 * nb + mb)
                c = '0' if (p == 0 and ks == 0) else f'v[{a}:{a+15}]'
                if cfg.mfma: e(f'v_mfma_f32_32x32x16_bf16 v[{a}:{a+15}], v[{st_+4*nb}:{st_+4*nb+3}], v[{st_+8+4*mb}:{st_+8+4*mb+3}], {c}')
                else: e('s_nop 7')
            for (ins, tag) in reads[split[i][0]:split[i][1]]:
                if cfg.reads:
                    e(ins); lg.issue(tag)
    e('s_barrier')
    if cfg.stamps: e('s_memtime s[42:43]')
    GWR = 128; BWR = 160; RS = 192
    for p in range(NST):
        group(p - 1, 3, rd_list(p, 0))
        group(p, 0, rd_list(p, 1))
        group(p, 1, rd_list(p, 2))
        group(p, 2, rd_list(p, 3), last_in_phase=(p < NST - 1))
        if cfg.xlate and cfg.prex1 <= p + 1 < cfg.prex: vm.need([('x', p + 1)])
        if p < NST - 1: e('s_barrier')
    e(f'v_and_b32 v{T}, 31, v{LN}')
    e(f's_lshl_b32 s38, s6, 9\ns_add_u32 s38, s38, {TAB+1024}')
    e(f'v_lshl_add_u32 v{T+1}, v{T}, 3, s38')
    group(NST - 1, 3, [])
    e(f'ds_read_b64 v[{RS}:{RS+1}], v{T+1}'); lg.issue('rs')
    e(f'ds_read_b64 v[{RS+2}:{RS+3}], v{T+1} offset:256'); lg.issue('rs')
    for nb in range(2):
        for j in range(4):
            e(f'ds_read_b128 v[{GWR+16*nb+4*j}:{GWR+16*nb+4*j+3}], v{TA_} offset:{(nb*32+8*j)*4}'); lg.issue(('tg', nb, j))
            e(f'ds_read_b128 v[{BWR+16*nb+4*j}:{BWR+16*nb+4*j+3}], v{TA_} offset:{512+(nb*32+8*j)*4}'); lg.issue(('tg', nb, j))
    if cfg.stamps: e('s_memtime s[44:45]')
    Y = 200; D = 208; SA = 212; SR = 213; GO = 214; XW = 216
    e(f'v_and_b32 v{Y}, 7, v{LN}')
    e(f'v_lshlrev_b32 v{Y}, 4, v{Y}')
    e(f'v_lshrrev_b32 v{Y+1}, 5, v{LN}')
    e(f'v_lshl_add_u32 v{Y}, v{Y+1}, 3, v{Y}')
    e(f'v_lshl_add_u32 v{SA}, v{T}, 7, v{Y}')
    e(f's_lshl_b32 s38, s3, 13\ns_add_u32 s38, s38, {STG}')
    e(f'v_add_u32 v{SA}, s38, v{SA}')
    e(f'v_lshrrev_b32 v{Y}, 3, v{LN}')
    e(f'v_and_b32 v{Y+1}, 7, v{LN}')
    e(f'v_xor_b32 v{Y+2}, v{Y+1}, v{Y}')
    e(f'v_lshlrev_b32 v{Y+2}, 4, v{Y+2}')
    e(f'v_lshl_add_u32 v{SR}, v{Y}, 7, v{Y+2}')
    e(f'v_add_u32 v{SR}, s38, v{SR}')
    e(f'v_lshlrev_b32 v{GO}, 11, v{Y}')
    e(f'v_lshl_add_u32 v{GO}, v{Y+1}, 4, v{GO}')
    e('s_lshl_b32 s38, s4, 18\ns_lshl_b32 s39, s6, 17\ns_add_u32 s38, s38, s39')
    e('s_lshl_b32 s39, s5, 8\ns_add_u32 s38, s38, s39\ns_lshl_b32 s39, s7, 7\ns_add_u32 s50, s38, s39')
    for idx in range(16):
        mb, nb, j = idx >> 3, (idx >> 2) & 1, idx & 3
        rs = RS + 2 * mb
        a = ACC + 16 * (2 * nb + mb)
        gw = GWR + 16 * nb + 4 * j; bw = BWR + 16 * nb + 4 * j
        lg.need(['rs', ('tg', nb, j)])
        y = Y + 4 * (j & 1)
        for hh in range(2):
            e(f'v_pk_fma_f32 v[{y+2*hh}:{y+2*hh+1}], v[{gw+2*hh}:{gw+2*hh+1}], v[{rs}:{rs+1}], v[{bw+2*hh}:{bw+2*hh+1}] op_sel:[0,1,0] op_sel_hi:[1,1,1]')
        for hh in range(2):
            e(f'v_pk_fma_f32 v[{y+2*hh}:{y+2*hh+1}], v[{a+4*j+2*hh}:{a+4*j+2*hh+1}], v[{rs}:{rs+1}], v[{y+2*hh}:{y+2*hh+1}] op_sel_hi:[1,0,1]')
        d = D + 2 * (j & 1)
        e(f'v_xor_b32 v{XW+(j&1)}, {(nb*4+j)*16}, v{SA}')
        e(f'v_cvt_pk_bf16_f32 v{d}, v{y}, v{y+1}')
        e(f'v_cvt_pk_bf16_f32 v{d+1}, v{y+2}, v{y+3}')
        e(f'ds_write_b64 v{XW+(j&1)}, v[{d}:{d+1}] offset:{mb*4096}'); lg.issue(('sw', mb))
        if idx % 8 == 7:
            lg.need([('sw', mb)])
            r0 = ACC + 16 * mb
            for q in range(4):
                e(f'ds_read_b128 v[{r0+4*q}:{r0+4*q+3}], v{SR} offset:{mb*4096+q*1024}'); lg.issue(('sr', mb, q))
            for q in range(4):
                lg.need([('sr', mb, q)])
                e(f's_add_u32 s51, s50, {(mb*32+8*q)*2048}')
                e(f'buffer_store_dwordx4 v[{r0+4*q}:{r0+4*q+3}], v{GO}, s[20:23], s51 offen{cfg.ntout}')
    e('s_branch L_end')

    e('L_dma:')
    vm = Counter(e, 'vmcnt', 63); lg = Counter(e, 'lgkmcnt', 15)
    VXO = 2; FL = 4; VL16 = 10; PR = 16
    T = 96; PW = 64; PG = 72; U = 76; WPK = 84; X = 112; WD = 104
    e('s_sub_u32 s3, s3, 4')
    e(f'v_lshrrev_b32 v{T+4}, 2, v0')
    e(f'v_and_b32 v{T+5}, 3, v0')
    e(f'v_lshlrev_b32 v{T+6}, 11, v{T+4}')
    e(f'v_lshl_add_u32 v{T+6}, v{T+5}, 4, v{T+6}')
    e(f'v_lshlrev_b32 v{T+7}, 1, v{T+4}')
    for r in range(4): e(f'v_mov_b32 v{PG+r}, 0')
    e('s_lshl_b32 s38, s4, 16\ns_lshl_b32 s39, s5, 8\ns_add_u32 s38, s38, s39\ns_lshl_b32 s39, s3, 6\ns_add_u32 s38, s38, s39')
    e('s_add_u32 s39, s38, 0x8000')
    e('s_lshl_b32 s36, s4, 6')
    e('s_waitcnt lgkmcnt(0)')
    st(0)
    e(f'buffer_load_dwordx4 v[{PW}:{PW+3}], v{T+6}, s[12:15], s38 offen{cfg.ntslab}'); vm.issue('pw0')
    e(f'buffer_load_short_d16_hi v{PG}, v{T+7}, s[16:19], s36 offen'); vm.issue('pg0')
    e(f'buffer_load_dwordx4 v[{PW+4}:{PW+7}], v{T+6}, s[12:15], s39 offen{cfg.ntslab}'); vm.issue('pw1')
    e(f'buffer_load_short_d16_hi v{PG+1}, v{T+7}, s[16:19], s36 offen offset:32'); vm.issue('pg1')
    e(f'buffer_load_short_d16_hi v{PG+2}, v{T+7}, s[68:71], s36 offen'); vm.issue('pb')
    e(f'buffer_load_short_d16_hi v{PG+3}, v{T+7}, s[68:71], s36 offen offset:32'); vm.issue('pb')
    e(f's_load_dword s64, s[60:61], {WS_EPOCH}')
    e('v_lshrrev_b32 v8, 3, v0')
    e('v_lshlrev_b32 v8, 11, v8')
    e('v_and_b32 v9, 7, v0')
    e('v_lshrrev_b32 v11, 4, v0')
    e('v_xor_b32 v9, v9, v11')
    e(f'v_lshl_add_u32 v{VXO}, v9, 4, v8')
    e(f'v_xor_b32 v{VXO+1}, 64, v{VXO}')
    e(f'v_add_u32 v{VXO+1}, {16384-1024}, v{VXO+1}')
    e(f'v_lshlrev_b32 v{VL16}, 4, v0')
    e('s_lshl_b32 s37, s4, 18\ns_lshl_b32 s39, s3, 16\ns_add_u32 s50, s37, s39\ns_lshl_b32 s51, s3, 12')
    e(f's_lshl_b32 s37, s5, 18\ns_add_u32 s52, s37, s51\ns_add_u32 s52, s52, {WS_W}')
    def emit_ops(ops):
        for ins, tag in ops:
            e(ins)
            if tag: vm.issue(tag)
    def x_ops(q):
        slot = q % NS
        if not cfg.xdma: return []
        return [(f's_add_u32 m0, s51, {slot*32768}', None),
                (f's_add_u32 s54, s50, {q*128}', None),
                (f'buffer_load_dwordx4 v{VXO}, s[8:11], s54 offen{cfg.ntx} lds', ('x', q)),
                (f'buffer_load_dwordx4 v{VXO+1}, s[8:11], s54 offen offset:1024{cfg.ntx} lds', ('x', q)),
                (f's_add_u32 m0, s51, {slot*32768+2048}', None),
                (f's_add_u32 s54, s50, {q*128+32768}', None),
                (f'buffer_load_dwordx4 v{VXO}, s[8:11], s54 offen{cfg.ntx} lds', ('x', q)),
                (f'buffer_load_dwordx4 v{VXO+1}, s[8:11], s54 offen offset:1024{cfg.ntx} lds', ('x', q))]
    def w_ops(q):
        slot = q % NS
        if not cfg.wdma: return []
        o = [(f's_add_u32 m0, s51, {slot*32768+16384}', None),
             (f's_add_u32 s55, s52, {q*16384}', None)]
        for j in range(4):
            o.append((f'buffer_load_dwordx4 v{VL16}, s[60:63], s55 offen offset:{1024*j} sc1{cfg.ntw} lds', ('w', q)))
        return o
    e(f'v_and_b32 v{T+1}, 3, v{T+4}')
    e(f'v_lshlrev_b32 v{T+1}, 2, v{T+1}')
    e('s_lshl_b32 s37, s3, 2')
    e(f'v_add_u32 v{T+2}, s37, v{T+5}')
    e(f'v_xor_b32 v{T+1}, v{T+1}, v{T+2}')
    e(f'v_lshlrev_b32 v{T+1}, 4, v{T+1}')
    e(f'v_lshl_add_u32 v{WD}, v{T+4}, 8, v{T+1}')
    e(f's_lshl_b32 s38, s5, 18\ns_lshl_b32 s39, s4, 13\ns_add_u32 s38, s38, s39\ns_add_u32 s38, s38, {WS_W}')
    e('s_add_u32 s39, s38, 0x1000')
    for t in range(2):
        vm.need([f'pw{t}', f'pg{t}'])
        if t == 0: st(1)
        w = PW + 4 * t; gk = PG + t; u = U
        for i in range(4):
            e(f'v_lshlrev_b32 v{u+2*i}, 16, v{w+i}')
            e(f'v_and_b32 v{u+2*i+1}, s53, v{w+i}')
        for i in range(8): e(f'v_mul_f32 v{u+i}, v{gk}, v{u+i}')
        for i in range(4): e(f'v_cvt_pk_bf16_f32 v{WPK+4*t+i}, v{u+2*i}, v{u+2*i+1}')
        e(f'buffer_store_dwordx4 v[{WPK+4*t}:{WPK+4*t+3}], v{WD}, s[60:63], s{38+t} offen sc1'); vm.issue('wst')
    if cfg.statwhen == 's': e('s_barrier')
    st(2)
    vm.need(['wst'])
    st(3)
    e('s_waitcnt lgkmcnt(0)')
    e(f's_add_u32 s64, s64, {TAG_STEP}')
    e('s_barrier')
    e('s_cmp_lg_u32 s3, 0')
    e('s_cbranch_scc1 L_noflagw')
    e(f's_lshl_b32 s38, s5, 10\ns_lshl_b32 s39, s4, 2\ns_add_u32 s38, s38, s39\ns_add_u32 s38, s38, {WS_FW}')
    e(f'v_lshlrev_b32 v{T+1}, 7, v0')
    e(f'v_add_u32 v{T+1}, s38, v{T+1}')
    e(f'v_mov_b32 v{T+2}, s64')
    e('s_mov_b64 exec, 0xff')
    e(f'buffer_store_dword v{T+2}, v{T+1}, s[60:63], 0 offen sc1')
    e('s_mov_b64 exec, -1')
    e('L_noflagw:')
    st(4)
    ix = cfg.prex
    for t in range(2):
        w = PW + 4 * t; bk = PG + 2 + t
        for i in range(4):
            e(f'v_lshlrev_b32 v{U+2*i}, 16, v{w+i}')
            e(f'v_and_b32 v{U+2*i+1}, s53, v{w+i}')
        for i in range(8):
            if t == 0: e(f'v_mul_f32 v{X+8+i}, v{bk}, v{U+i}')
            else: e(f'v_fmac_f32 v{X+8+i}, v{bk}, v{U+i}')
        for i in range(4):
            if t == 0:
                e(f'v_lshlrev_b32 v{X+2*i}, 16, v{WPK+i}')
                e(f'v_and_b32 v{X+2*i+1}, s53, v{WPK+i}')
            else:
                e(f'v_lshlrev_b32 v{U+2*i}, 16, v{WPK+4+i}')
                e(f'v_and_b32 v{U+2*i+1}, s53, v{WPK+4+i}')
        if t == 1:
            for i in range(8): e(f'v_add_f32 v{X+i}, v{X+i}, v{U+i}')
    e('s_nop 1')
    for j in range(8): e(f'v_permlane32_swap_b32 v{X+j}, v{X+8+j}')
    e('s_nop 1')
    for j in range(8): e(f'v_add_f32 v{X+j}, v{X+j}, v{X+8+j}')
    e('s_nop 1')
    for j in range(4): e(f'v_permlane16_swap_b32 v{X+j}, v{X+4+j}')
    e('s_nop 1')
    for j in range(4): e(f'v_add_f32 v{X+j}, v{X+j}, v{X+4+j}')
    for rot in (8, 4):
        e('s_nop 1')
        for j in range(4): e(f'v_add_f32_dpp v{X+j}, v{X+j}, v{X+j} row_ror:{rot} row_mask:0xf bank_mask:0xf')
    e(f'v_lshrrev_b32 v{T+1}, 4, v0')
    e(f'v_lshrrev_b32 v{T+2}, 1, v{T+1}')
    e(f'v_lshlrev_b32 v{T+2}, 9, v{T+2}')
    e(f'v_and_b32 v{T+1}, 1, v{T+1}')
    e(f'v_lshl_add_u32 v{T+2}, v{T+1}, 4, v{T+2}')
    e(f'v_lshl_add_u32 v{T+2}, v{T+5}, 5, v{T+2}')
    e('s_lshl_b32 s38, s5, 5\ns_add_u32 s38, s38, s4\ns_lshl_b32 s38, s38, 10\ns_lshl_b32 s39, s3, 7\ns_add_u32 s38, s38, s39')
    e(f's_add_u32 s38, s38, {WS_PART}')
    e(f'v_and_b32 v{T+1}, 15, v0')
    e(f'v_cmp_gt_u32 vcc, 4, v{T+1}')
    e('s_and_saveexec_b64 s[76:77], vcc')
    e(f'buffer_store_dwordx4 v[{X}:{X+3}], v{T+2}, s[60:63], s38 offen sc1'); vm.issue('pst')
    e('s_mov_b64 exec, -1')
    if cfg.codepf:
        e('s_getpc_b64 s[78:79]')
        e('L_pc:')
        e('s_sub_u32 s78, s78, L_pc-' + KNAME)
        e('s_subb_u32 s79, s79, 0')
        e('v_lshlrev_b32 v12, 7, v0')
        e('s_lshl_b32 s38, s3, 13')
        e('v_add_u32 v12, s38, v12')
        e('CODEPF')
    e(f'v_lshlrev_b32 v{FL+2}, 2, v0')
    e('s_cmp_eq_u32 s3, 0')
    e('s_cselect_b32 s37, 0, 0x7fff0000')
    e(f's_lshl_b32 s38, s5, 9\ns_add_u32 s38, s38, {WS_FC}\ns_add_u32 s38, s38, s37')
    e('v_lshlrev_b32 v13, 3, v0')
    e(f'v_add_u32 v{FL+4}, s38, v13')
    e(f's_lshl_b32 s38, s4, 7\ns_add_u32 s38, s38, {WS_FR}\ns_add_u32 s38, s38, s37')
    e('v_and_b32 v13, 31, v0')
    e('v_lshlrev_b32 v13, 2, v13')
    e(f'v_add_u32 v{FL+5}, s38, v13')
    if cfg.wait_flags:
        e('s_cmp_lg_u32 s3, 0')
        e('s_cbranch_scc1 L_notpoller')
        e('v_and_b32 v12, 31, v0')
        e('v_lshlrev_b32 v12, 2, v12')
        e(f's_lshl_b32 s39, s5, 10\ns_lshr_b32 s37, s4, 2\ns_lshl_b32 s37, s37, 7\ns_add_u32 s39, s39, s37\ns_add_u32 s39, s39, {WS_FW}')
        e(f's_mov_b32 s38, {cfg.spin}')
        if cfg.polldelay: e(f's_sleep {cfg.polldelay}')
        n = cfg.pipepoll
        for i in range(n - 1):
            e(f'buffer_load_dword v{16+i}, v12, s[60:63], s39 offen sc1')
            e(f's_sleep {cfg.pollgap}')
        e('L_spin_w:')
        for i in range(n):
            e(f'buffer_load_dword v{16+(i+n-1)%n}, v12, s[60:63], s39 offen sc1')
            e(f's_waitcnt vmcnt({n-1})')
            e(f'v_cmp_eq_u32 vcc, s64, v{16+i}')
            e('s_cmp_eq_u64 vcc, -1')
            e('s_cbranch_scc1 L_found_w')
            if n > 1: e(f's_sleep {cfg.pollgap}')
            elif cfg.sleep: e(f's_sleep {cfg.sleep}')
        e('s_sub_u32 s38, s38, 1')
        e('s_cmp_lg_u32 s38, 0')
        e('s_cbranch_scc1 L_spin_w')
        e('L_found_w:')
        e('s_branch L_ready_w')
        e('L_notpoller:')
        e('s_waitcnt vmcnt(0)')
        e('L_ready_w:')
    if cfg.stamps: e('s_memtime s[58:59]')
    if not cfg.wait_flags: e('s_waitcnt vmcnt(0)')
    vm.q = []
    e(f's_lshl_b32 s38, s5, 9\ns_lshl_b32 s39, s4, 4\ns_add_u32 s38, s38, s39\ns_lshl_b32 s39, s3, 2\ns_add_u32 s38, s38, s39\ns_add_u32 s38, s38, {WS_FC}')
    tagstore(T + 1, 38)
    e('s_barrier')
    iw = 0
    for q in range(cfg.prew):
        emit_ops(w_ops(q)); iw += 1
    vm.need([('w', 0)])
    e('s_barrier')
    if cfg.stamps: e('s_memtime s[42:43]')
    PO = 58
    def check_final():
        e(f'v_cmp_eq_u32 vcc, s64, v{PO}')
        e(f'v_cmp_eq_u32 s[76:77], s64, v{PO+1}')
        e(f'v_cmp_eq_u32 s[80:81], s64, v{PO+2}')
        e('s_and_b64 vcc, vcc, s[76:77]')
        e('s_and_b64 vcc, vcc, s[80:81]')
        e('s_cmp_eq_u64 vcc, -1')
    for p in range(NST - 1):
        lim = min(NST - 1, p + NS - 1)
        for _ in range(2):
            if iw <= lim:
                emit_ops(w_ops(iw)); iw += 1
            if ix <= lim:
                emit_ops(x_ops(ix)); ix += 1
        if p == cfg.PP:
            e(f'buffer_load_dwordx2 v[{PO}:{PO+1}], v{FL+4}, s[60:63], 0 offen sc1'); vm.issue('poll')
            e(f'buffer_load_dword v{PO+2}, v{FL+5}, s[60:63], 0 offen sc1'); vm.issue('poll')
        if p == cfg.PC:
            vm.need(['poll'])
            e('s_cmp_lg_u32 s3, 0')
            e('s_cbranch_scc1 L_ready_a')
            check_final()
            e('s_cbranch_scc1 L_ready_a')
            if cfg.wait_flags:
                e(f's_mov_b32 s38, {cfg.spin}')
                e('L_spin_a:')
                e(f'buffer_load_dwordx2 v[{PO}:{PO+1}], v{FL+4}, s[60:63], 0 offen sc1')
                e(f'buffer_load_dword v{PO+2}, v{FL+5}, s[60:63], 0 offen sc1')
                e('s_waitcnt vmcnt(0)')
                check_final()
                e('s_cbranch_scc1 L_ready_a')
                e('s_sub_u32 s38, s38, 1')
                e('s_cmp_lg_u32 s38, 0')
                e('s_cbranch_scc1 L_spin_a')
            e('L_ready_a:')
        if p == cfg.PL:
            e('v_lshrrev_b32 v12, 4, v0')
            e('v_lshlrev_b32 v12, 10, v12')
            e('v_and_b32 v13, 15, v0')
            e('v_lshl_add_u32 v12, v13, 4, v12')
            e(f's_lshl_b32 s38, s5, 15\ns_lshl_b32 s39, s3, 8\ns_add_u32 s38, s38, s39\ns_add_u32 s38, s38, {WS_PART}')
            for t in range(8):
                if t: e('s_add_u32 s38, s38, 0x1000')
                e(f'buffer_load_dwordx4 v[{PR+8+4*t}:{PR+8+4*t+3}], v12, s[60:63], s38 offen sc1'); vm.issue('pp')
            e('s_lshl_b32 s38, s4, 10\ns_lshl_b32 s39, s3, 8\ns_add_u32 s38, s38, s39')
            e(f'buffer_load_dword v{PR+40}, v{FL+2}, s[60:63], s38 offen sc1'); vm.issue('ps')
        if p == cfg.PS:
            vm.need(['pp', 'ps'])
            P = PR + 8
            for h in (16, 8, 4):
                for i in range(h): e(f'v_add_f32 v{P+i}, v{P+i}, v{P+h+i}')
            e('s_nop 1')
            e(f'v_permlane32_swap_b32 v{P}, v{P+2}\nv_permlane32_swap_b32 v{P+1}, v{P+3}')
            e('s_nop 1')
            e(f'v_add_f32 v{P}, v{P}, v{P+2}\nv_add_f32 v{P+1}, v{P+1}, v{P+3}')
            e('s_nop 1')
            e(f'v_permlane16_swap_b32 v{P}, v{P+1}')
            e('s_nop 1')
            e(f'v_add_f32 v{P}, v{P}, v{P+1}')
            e('v_lshrrev_b32 v12, 4, v0')
            e('v_and_b32 v13, 15, v0')
            e('v_lshlrev_b32 v13, 4, v13')
            e('v_lshl_add_u32 v12, v12, 2, v13')
            e(f's_lshl_b32 s38, s3, 8\ns_add_u32 s39, s38, {TAB}')
            e('v_add_u32 v12, s39, v12')
            e(f'ds_write_b32 v12, v{P}'); lg.issue('tab')
            e(f's_add_u32 s39, s38, {TAB+1024}')
            e(f'v_add_u32 v13, s39, v{FL+2}')
            e(f'ds_write_b32 v13, v{PR+40}'); lg.issue('tab')
            lg.drain()
        vm.need([('w', p + 1)])
        if p + 1 >= cfg.prex: vm.need([('x', p + 1)])
        e('s_barrier')
    assert ix == NST and iw == NST
    if cfg.stamps: e('s_memtime s[44:45]')
    e('s_or_b32 s38, s2, s3')
    e('s_cmp_lg_u32 s38, 0')
    e('s_cbranch_scc1 L_noepoch')
    e('v_lshrrev_b32 v12, 3, v0')
    e('v_lshlrev_b32 v12, 10, v12')
    e('v_and_b32 v13, 7, v0')
    e('v_lshl_add_u32 v12, v13, 4, v12')
    e(f's_mov_b32 s38, {cfg.spin}')
    e('L_spin_e:')
    e(f's_mov_b32 s39, {WS_FW}')
    e('buffer_load_dwordx4 v[16:19], v12, s[60:63], s39 offen sc1')
    e('s_waitcnt vmcnt(0)')
    e('s_mov_b64 s[76:77], -1')
    for i in range(4):
        e(f'v_cmp_eq_u32 vcc, s64, v{16+i}')
        e('s_and_b64 s[76:77], s[76:77], vcc')
    e('s_cmp_eq_u64 s[76:77], -1')
    e('s_cbranch_scc1 L_doepoch')
    e('s_sub_u32 s38, s38, 1')
    e('s_cmp_lg_u32 s38, 0')
    e('s_cbranch_scc1 L_spin_e')
    e('L_doepoch:')
    e(f'v_mov_b32 v12, {WS_EPOCH}')
    e('v_mov_b32 v13, s64')
    e('s_mov_b64 exec, 1')
    e('buffer_store_dword v13, v12, s[60:63], 0 offen sc1')
    e('s_mov_b64 exec, -1')
    e('L_noepoch:')
    e('L_end:')
    if cfg.stamps:
        e('s_waitcnt vmcnt(0) lgkmcnt(0)')
        e('s_memtime s[46:47]')
        e('s_memrealtime s[56:57]')
        e('s_waitcnt lgkmcnt(0)')
        e('s_sub_u32 s42, s42, s40\ns_sub_u32 s44, s44, s40\ns_sub_u32 s46, s46, s40\ns_sub_u32 s58, s58, s40')
        e('v_mov_b32 v4, s42\nv_mov_b32 v5, s44\nv_mov_b32 v6, s46\nv_mov_b32 v7, s48\nv_mov_b32 v8, s56\nv_mov_b32 v9, s58\nv_mov_b32 v10, 0\nv_mov_b32 v11, 0')
        for i in range(5): e(f's_sub_u32 s{82+2*i}, s{82+2*i}, s40\nv_mov_b32 v{16+i}, s{82+2*i}')
        e(f's_lshl_b32 s65, s2, 3\ns_add_u32 s65, s65, s66\ns_lshl_b32 s65, s65, 6\ns_add_u32 s65, s65, {WS_STAMP}')
        e('v_mov_b32 v12, s65')
        e('s_mov_b64 exec, 1')
        e('buffer_store_dwordx4 v[4:7], v12, s[60:63], 0 offen')
        e('buffer_store_dwordx4 v[8:11], v12, s[60:63], 0 offen offset:16')
        e('buffer_store_dwordx4 v[16:19], v12, s[60:63], 0 offen offset:32')
        e('buffer_store_dwordx4 v[20:23], v12, s[60:63], 0 offen offset:48')
    e('L_exit:')
    e('s_endpgm')
    e('L_codeend:')
    e('.section .rodata,"a"')
    e(f'.p2align 6\n.amdhsa_kernel {KNAME}')
    e('  .amdhsa_next_free_vgpr 224\n  .amdhsa_next_free_sgpr 96\n  .amdhsa_accum_offset 224')
    e('  .amdhsa_group_segment_fixed_size 0\n  .amdhsa_kernarg_size 56\n  .amdhsa_user_sgpr_count 2')
    e('  .amdhsa_user_sgpr_kernarg_segment_ptr 1\n  .amdhsa_system_sgpr_workgroup_id_x 1\n.end_amdhsa_kernel')
    txt = e.text()
    pf = (f'v_cmp_gt_u32 vcc, L_codeend-{KNAME}, v12\n'
          's_and_saveexec_b64 s[80:81], vcc\n'
          's_cbranch_execz L_nopf\n'
          'global_load_dword v11, v12, s[78:79]\n'
          'L_nopf:\n'
          's_mov_b64 exec, -1')
    txt = txt.replace('CODEPF', pf)
    return txt

if __name__ == '__main__':
    import ast
    kw = {}
    for a in sys.argv[1:]:
        k, v = a.split('=')
        kw[k] = ast.literal_eval(v)
    print(gen(Cfg(**kw)))
```

```python
import sys
sys.path.insert(0, 'gen')
from asmlib import Emitter, Counter

KNAME = 'standalone__layernorm_linear__prompt_kernel'
WS_STATS = 0
WS_EPOCH = 0x8000
WS_FW = 0xC000
WS_FC = 0xA000
WS_FR = 0xB000
WS_PART = 0x10000
WS_STAMP = 0x80000
WS_W = 0x100000
TAG_STEP = 0x9E3779B9

HEADER = '''; LayerNorm(x)*g + b followed by @ w, fused in one launch.
'''

class Cfg:
    NS = 5
    PP = 5
    PC = 9
    PL = 10
    PS = 14
    prew = 3
    prex = 5
    statsplit = 8
    statwhen = 's'
    polldelay = 0
    ntstat = ''; ntslab = ''; ntx = ''; ntout = ' sc1 nt'; ntw = ''
    prex1 = 2
    statdelay0 = 0
    G1 = 32
    P2I = 1
    krot = 0
    xlin = False
    nosc1w = False
    wpf = 0
    xearly = 0
    onepass = True
    xlate = False
    pipepoll = 1
    pollgap = 6
    stamps = False
    xmap = 0
    codepf = True
    mfma = True; reads = True; xdma = True; wdma = True
    wait_flags = True
    earlywait = True
    sleep = 0
    spin = 40000
    def __init__(self, **kw):
        for k, v in kw.items():
            assert hasattr(self, k), k
            setattr(self, k, v)


def gen(cfg):
    e = Emitter()
    def st(i):
        if cfg.stamps: e(f's_memtime s[{82+2*i}:{83+2*i}]')
    NS = cfg.NS; NST = 16
    LDS = NS * 32768
    assert NS == 5
    TAB = ((NST - 5) % NS) * 32768
    STG = ((NST - 4) % NS) * 32768
    e(HEADER.rstrip())
    e(f'; @launch grid=(256,1,1) block=(512,1,1) lds={LDS}')
    e('.amdgcn_target "amdgcn-amd-amdhsa--gfx950"\n.text')
    e(f'.globl {KNAME}\n.p2align 8\n.type {KNAME},@function\n{KNAME}:')
    e('s_cmp_ge_u32 s2, 0x100')
    e('s_cbranch_scc1 L_exit')
    if cfg.stamps: e('s_memtime s[40:41]\ns_memrealtime s[48:49]')
    e('s_load_dwordx2 s[12:13], s[0:1], 24')
    e('s_load_dwordx2 s[16:17], s[0:1], 8')
    e('s_load_dwordx2 s[8:9], s[0:1], 0')
    e('s_load_dwordx2 s[68:69], s[0:1], 16')
    e('s_load_dwordx2 s[60:61], s[0:1], 48')
    e('s_load_dwordx2 s[20:21], s[0:1], 32')
    e('v_lshrrev_b32 v1, 6, v0')
    e('v_and_b32 v0, 63, v0')
    e('v_readfirstlane_b32 s3, v1')
    e('s_mov_b32 s10, 0x800000\ns_mov_b32 s11, 0x20000')
    e('s_mov_b32 s14, 0x200000\ns_mov_b32 s15, 0x20000')
    e('s_mov_b32 s18, 0x800\ns_mov_b32 s19, 0x20000')
    e('s_mov_b32 s70, 0x800\ns_mov_b32 s71, 0x20000')
    e('s_mov_b32 s22, 0x800000\ns_mov_b32 s23, 0x20000')
    e('s_mov_b32 s62, 0x300000\ns_mov_b32 s63, 0x20000')
    e('s_and_b32 s4, s2, 7')
    e('s_lshr_b32 s5, s2, 3')
    if cfg.xmap == 0:
        e('s_and_b32 s6, s5, 3\ns_lshl_b32 s4, s4, 2\ns_add_u32 s4, s4, s6\ns_lshr_b32 s5, s5, 2')
    else:
        e('s_and_b32 s6, s5, 7\ns_lshr_b32 s7, s4, 1\ns_lshl_b32 s7, s7, 3\ns_add_u32 s6, s6, s7')
        e('s_and_b32 s4, s4, 1\ns_lshl_b32 s4, s4, 2\ns_lshr_b32 s5, s5, 3\ns_add_u32 s5, s5, s4\ns_mov_b32 s4, s6')
    e('s_mov_b32 s66, s3')
    if cfg.krot: e(f's_and_b32 s67, s4, 3\ns_mul_i32 s67, s67, {cfg.krot}')
    e('s_mov_b32 s53, 0xffff0000')
    e('s_cmp_ge_u32 s3, 4')
    e('s_cbranch_scc1 L_dma')

    def rot_off(dst, base, q, shift, extra=0):
        if not cfg.krot: return [f's_add_u32 s{dst}, s{base}, {(q << shift) + extra}']
        o = [f's_add_u32 s{dst}, s67, {q}', f's_and_b32 s{dst}, s{dst}, 15', f's_lshl_b32 s{dst}, s{dst}, {shift}', f's_add_u32 s{dst}, s{dst}, s{base}']
        if extra: o.append(f's_add_u32 s{dst}, s{dst}, {extra}')
        return o

    def tagstore(vtmp, addr_sgpr):
        e(f'v_mov_b32 v{vtmp}, s{addr_sgpr}')
        e(f'v_mov_b32 v{vtmp+1}, s64')
        e('s_mov_b64 exec, 1')
        e(f'buffer_store_dword v{vtmp+1}, v{vtmp}, s[60:63], 0 offen sc1')
        e('s_mov_b64 exec, -1')

    ACC = 0; FR = 64; XA = 96; WA = 108; LN = 114; TA_ = 115
    lg = Counter(e, 'lgkmcnt', 15); vm = Counter(e, 'vmcnt', 63)
    T = 116
    e(f'v_mov_b32 v{LN}, v0')
    X = 128; L = 160; A = 192; RW_ = 204; I16 = 205
    e(f'v_lshrrev_b32 v{T}, 4, v{LN}')
    e(f'v_and_b32 v{I16}, 15, v{LN}')
    e('s_lshl_b32 s38, s4, 7\ns_lshl_b32 s39, s5, 4\ns_add_u32 s38, s38, s39\ns_lshl_b32 s39, s3, 2\ns_add_u32 s38, s38, s39')
    e(f'v_add_u32 v{RW_}, s38, v{T}')
    e(f'v_lshlrev_b32 v{T+11}, 11, v{RW_}')
    e(f'v_lshl_add_u32 v{T+11}, v{I16}, 4, v{T+11}')
    e('s_and_b32 s6, s3, 1')
    e('s_lshr_b32 s7, s3, 1')
    e(f'v_and_b32 v{T+1}, 31, v{LN}')
    e(f'v_lshrrev_b32 v{T+2}, 5, v{LN}')
    e(f'v_bfe_u32 v{T+3}, v{LN}, 1, 3')
    e(f'v_xor_b32 v{T+3}, v{T+3}, v{T+2}')
    e(f'v_lshlrev_b32 v{T+3}, 4, v{T+3}')
    e('s_lshl_b32 s37, s6, 13')
    e(f'v_lshl_add_u32 v{T+9}, v{T+1}, 7, v{T+3}')
    e(f'v_add_u32 v{XA}, s37, v{T+9}')
    for ks in range(1, 4): e(f'v_xor_b32 v{XA+ks}, {32*ks}, v{XA}')
    for w in range(1, 3):
        for ks in range(4): e(f'v_add_u32 v{XA+4*w+ks}, {0x10000*w}, v{XA+ks}')
    e(f'v_lshrrev_b32 v{T+1}, 4, v{LN}')
    e(f'v_bfe_u32 v{T+2}, v{LN}, 2, 2')
    e(f'v_and_b32 v{T+3}, 3, v{LN}')
    e(f'v_lshrrev_b32 v{T+9}, 1, v{T+1}')
    e(f'v_lshl_add_u32 v{T+9}, v{T+9}, 3, v{T+2}')
    e(f'v_lshlrev_b32 v{T+9}, 8, v{T+9}')
    e(f'v_and_b32 v{T+1}, 1, v{T+1}')
    e(f'v_lshlrev_b32 v{T+1}, 1, v{T+1}')
    e(f'v_lshrrev_b32 v{T+10}, 1, v{T+3}')
    e(f'v_add_u32 v{T+1}, v{T+1}, v{T+10}')
    e('s_lshl_b32 s37, s7, 3')
    e(f'v_add_u32 v{T+1}, s37, v{T+1}')
    e(f'v_lshlrev_b32 v{T+2}, 2, v{T+2}')
    e(f'v_xor_b32 v{T+1}, v{T+1}, v{T+2}')
    e(f'v_lshlrev_b32 v{T+1}, 4, v{T+1}')
    e(f'v_and_b32 v{T+3}, 1, v{T+3}')
    e(f'v_lshl_add_u32 v{T+1}, v{T+3}, 3, v{T+1}')
    e(f'v_add_u32 v{T+1}, v{T+1}, v{T+9}')
    e(f'v_add_u32 v{WA}, 0x4000, v{T+1}')
    e(f'v_xor_b32 v{WA+1}, 64, v{WA}')
    for w in range(1, 3):
        for nb in range(2): e(f'v_add_u32 v{WA+2*w+nb}, {0x10000*w}, v{WA+nb}')
    e(f'v_lshrrev_b32 v{T+1}, 5, v{LN}')
    e(f'v_lshlrev_b32 v{T+1}, 4, v{T+1}')
    e(f's_lshl_b32 s37, s7, 8\ns_add_u32 s37, s37, {TAB}')
    e(f'v_add_u32 v{TA_}, s37, v{T+1}')
    e('s_waitcnt lgkmcnt(0)')
    st(0)
    e(f's_load_dword s64, s[60:61], {WS_EPOCH}')
    def sload(j):
        e(f'buffer_load_dwordx4 v[{X+4*j}:{X+4*j+3}], v{T+11}, s[8:11], 0 offen offset:{256*j}{cfg.ntstat}'); vm.issue(('sx', j))
    VX = 208
    e(f'v_lshrrev_b32 v{T+1}, 3, v{LN}')
    e(f'v_lshlrev_b32 v{T+1}, 11, v{T+1}')
    e(f'v_and_b32 v{T+2}, 7, v{LN}')
    e(f'v_lshrrev_b32 v{T+3}, 4, v{LN}')
    e(f'v_xor_b32 v{T+2}, v{T+2}, v{T+3}')
    e(f'v_lshl_add_u32 v{VX}, v{T+2}, 4, v{T+1}')
    e(f'v_xor_b32 v{VX+1}, 64, v{VX}')
    e(f'v_add_u32 v{VX+1}, {16384-1024}, v{VX+1}')
    e('s_lshl_b32 s37, s4, 18\ns_lshl_b32 s39, s3, 16\ns_add_u32 s50, s37, s39\ns_lshl_b32 s51, s3, 12')
    def cx(q):
        slot = q % NS
        e(f's_add_u32 m0, s51, {slot*32768}')
        for ins in rot_off(54, 50, q, 7): e(ins)
        e(f'buffer_load_dwordx4 v{VX}, s[8:11], s54 offen{cfg.ntx} lds'); vm.issue(('x', q))
        e(f'buffer_load_dwordx4 v{VX+1}, s[8:11], s54 offen offset:1024{cfg.ntx} lds'); vm.issue(('x', q))
        e(f's_add_u32 m0, s51, {slot*32768+2048}')
        e(f's_add_u32 s54, s54, 32768')
        e(f'buffer_load_dwordx4 v{VX}, s[8:11], s54 offen{cfg.ntx} lds'); vm.issue(('x', q))
        e(f'buffer_load_dwordx4 v{VX+1}, s[8:11], s54 offen offset:1024{cfg.ntx} lds'); vm.issue(('x', q))
    if cfg.statwhen == '0':
        if cfg.statdelay0: e(f's_sleep {cfg.statdelay0}')
        for j in range(8): sload(j)
        e('s_barrier')
    else:
        if cfg.statwhen == 's': e('s_barrier')
        else: e('s_barrier')
        for j in range(cfg.statsplit): sload(j)
        if cfg.statwhen == 's': e('s_barrier')
        if cfg.statsplit < 8:
            vm.need([('sx', 0)])
            for j in range(cfg.statsplit, 8): sload(j)
    for q in range(cfg.xearly): cx(q)
    st(1)
    vm.need([('sx', 7)])
    st(2)
    for q in range(cfg.xearly, cfg.prex1): cx(q)
    M = A + 8; V = A + 10
    if cfg.onepass:
        e('s_mov_b32 s39, 0x3f803f80')
        for a in range(8): e(f'v_mov_b32 v{A+a}, 0')
        for j in range(8):
            for i in range(4): e(f'v_dot2c_f32_bf16 v{A+i}, s39, v{X+4*j+i}')
            for i in range(4): e(f'v_dot2c_f32_bf16 v{A+4+i}, v{X+4*j+i}, v{X+4*j+i}')
        e('s_nop 2')
        e(f'v_add_f32 v{A}, v{A}, v{A+1}\nv_add_f32 v{A+2}, v{A+2}, v{A+3}')
        e(f'v_add_f32 v{A+4}, v{A+4}, v{A+5}\nv_add_f32 v{A+6}, v{A+6}, v{A+7}')
        e(f'v_add_f32 v{M}, v{A}, v{A+2}\nv_add_f32 v{V+1}, v{A+4}, v{A+6}')
        for rot in (8, 4, 2, 1):
            e('s_nop 0')
            e(f'v_add_f32_dpp v{M}, v{M}, v{M} row_ror:{rot} row_mask:0xf bank_mask:0xf')
            e(f'v_add_f32_dpp v{V+1}, v{V+1}, v{V+1} row_ror:{rot} row_mask:0xf bank_mask:0xf')
            e('s_nop 0')
        e(f'v_mul_f32 v{M}, 0xba800000, v{M}')
        e(f'v_mul_f32 v{V+1}, 0x3a800000, v{V+1}')
        e(f'v_fma_f32 v{V+1}, -v{M}, v{M}, v{V+1}')
        e(f'v_max_f32 v{V+1}, 0, v{V+1}')
        e(f'v_add_f32 v{V+1}, 0x3727c5ac, v{V+1}')
    else:
        for d in range(32):
            e(f'v_lshlrev_b32 v{L+d}, 16, v{X+d}')
            e(f'v_and_b32 v{X+d}, s53, v{X+d}')
        for a in range(4):
            e(f'v_pk_add_f32 v[{A+2*a}:{A+2*a+1}], v[{X+2*a}:{X+2*a+1}], v[{L+2*a}:{L+2*a+1}]')
        for d in range(8, 32, 2):
            a = (d // 2) % 4
            e(f'v_pk_add_f32 v[{A+2*a}:{A+2*a+1}], v[{A+2*a}:{A+2*a+1}], v[{X+d}:{X+d+1}]')
            e(f'v_pk_add_f32 v[{A+2*a}:{A+2*a+1}], v[{A+2*a}:{A+2*a+1}], v[{L+d}:{L+d+1}]')
        def fold(dst):
            e(f'v_pk_add_f32 v[{A}:{A+1}], v[{A}:{A+1}], v[{A+2}:{A+3}]')
            e(f'v_pk_add_f32 v[{A+4}:{A+5}], v[{A+4}:{A+5}], v[{A+6}:{A+7}]')
            e(f'v_pk_add_f32 v[{A}:{A+1}], v[{A}:{A+1}], v[{A+4}:{A+5}]')
            e(f'v_add_f32 v{dst}, v{A}, v{A+1}')
            for rot in (8, 4, 2, 1):
                e('s_nop 1')
                e(f'v_add_f32_dpp v{dst}, v{dst}, v{dst} row_ror:{rot} row_mask:0xf bank_mask:0xf')
        M = A + 8
        fold(M)
        e(f'v_mul_f32 v{M}, 0xba800000, v{M}')
        for d in range(0, 32, 2):
            e(f'v_pk_add_f32 v[{X+d}:{X+d+1}], v[{X+d}:{X+d+1}], v[{M}:{M+1}] op_sel_hi:[1,0]')
            e(f'v_pk_add_f32 v[{L+d}:{L+d+1}], v[{L+d}:{L+d+1}], v[{M}:{M+1}] op_sel_hi:[1,0]')
        for a in range(4):
            e(f'v_pk_mul_f32 v[{A+2*a}:{A+2*a+1}], v[{X+2*a}:{X+2*a+1}], v[{X+2*a}:{X+2*a+1}]')
        for d in range(8, 32, 2):
            a = (d // 2) % 4
            e(f'v_pk_fma_f32 v[{A+2*a}:{A+2*a+1}], v[{X+d}:{X+d+1}], v[{X+d}:{X+d+1}], v[{A+2*a}:{A+2*a+1}]')
        for d in range(0, 32, 2):
            a = (d // 2) % 4
            e(f'v_pk_fma_f32 v[{A+2*a}:{A+2*a+1}], v[{L+d}:{L+d+1}], v[{L+d}:{L+d+1}], v[{A+2*a}:{A+2*a+1}]')
        V = A + 10
        fold(V)
        e('s_mov_b32 s39, 0x3727c5ac')
        e(f'v_mov_b32 v{V+1}, s39')
        e(f'v_fmac_f32 v{V+1}, 0x3a800000, v{V}')
    e(f'v_rsq_f32 v{V}, v{V+1}')
    e('s_nop 0')
    e(f'v_mul_f32 v{V+1}, v{M}, v{V}')
    e(f'v_lshlrev_b32 v{RW_}, 3, v{RW_}')
    e(f'v_cmp_eq_u32 vcc, 0, v{I16}')
    e('s_and_saveexec_b64 s[76:77], vcc')
    e(f'buffer_store_dwordx2 v[{V}:{V+1}], v{RW_}, s[60:63], 0 offen sc1')
    e('s_mov_b64 exec, -1')
    if not cfg.xlate:
        for q in range(max(cfg.prex1, cfg.xearly), cfg.prex): cx(q)
    e('s_waitcnt lgkmcnt(0)')
    e(f's_add_u32 s64, s64, {TAG_STEP}')
    st(3)
    e('s_barrier')
    if cfg.xlate:
        vm.q = []
        e('s_waitcnt vmcnt(0)')
        e(f's_lshl_b32 s38, s4, 7\ns_lshl_b32 s39, s5, 4\ns_add_u32 s38, s38, s39\ns_lshl_b32 s39, s3, 2\ns_add_u32 s38, s38, s39\ns_add_u32 s38, s38, {WS_FR}')
        tagstore(T + 1, 38)
        for q in range(cfg.prex1, cfg.prex): cx(q)
    if not cfg.xlate:
        e('s_waitcnt vmcnt(0)')
        e(f's_lshl_b32 s38, s4, 7\ns_lshl_b32 s39, s5, 4\ns_add_u32 s38, s38, s39\ns_lshl_b32 s39, s3, 2\ns_add_u32 s38, s38, s39\ns_add_u32 s38, s38, {WS_FR}')
        tagstore(T + 1, 38)
        vm.q = []

    def rd_list(p, ks):
        st_ = FR + 16 * (ks & 1)
        slot = p % NS
        win = slot // 2
        xo = (slot % 2) * 32768
        wo = (slot % 2) * 32768 + ks * 4096
        xr = XA + 4 * win + ks; wr = WA + 2 * win
        return [
            (f'ds_read_b64_tr_b16 v[{st_}:{st_+1}], v{wr} offset:{wo}', ('W0', p, ks)),
            (f'ds_read_b64_tr_b16 v[{st_+2}:{st_+3}], v{wr} offset:{wo+1024}', ('W0', p, ks)),
            (f'ds_read_b128 v[{st_+8}:{st_+11}], v{xr} offset:{xo}', ('x0', p, ks)),
            (f'ds_read_b128 v[{st_+12}:{st_+15}], v{xr} offset:{xo+4096}', ('x1', p, ks)),
            (f'ds_read_b64_tr_b16 v[{st_+4}:{st_+5}], v{wr+1} offset:{wo}', ('W1', p, ks)),
            (f'ds_read_b64_tr_b16 v[{st_+6}:{st_+7}], v{wr+1} offset:{wo+1024}', ('W1', p, ks)),
        ]
    def group(p, ks, reads, last_in_phase=False):
        st_ = FR + 16 * (ks & 1)
        order = [(0, 0), (0, 1), (1, 1), (1, 0)]
        split = [(0, 3), (3, 6), (6, 6), (6, 6)] if last_in_phase else [(0, 2), (2, 4), (4, 6), (6, 6)]
        for i, (nb, mb) in enumerate(order):
            if p >= 0:
                lg.need([(f'W{nb}', p, ks), (f'x{mb}', p, ks)])
                if last_in_phase and i == 3 and cfg.earlywait: lg.drain()
                a = ACC + 16 * (2 * nb + mb)
                c = '0' if (p == 0 and ks == 0) else f'v[{a}:{a+15}]'
                if cfg.mfma: e(f'v_mfma_f32_32x32x16_bf16 v[{a}:{a+15}], v[{st_+4*nb}:{st_+4*nb+3}], v[{st_+8+4*mb}:{st_+8+4*mb+3}], {c}')
                else: e('s_nop 7')
            for (ins, tag) in reads[split[i][0]:split[i][1]]:
                if cfg.reads:
                    e(ins); lg.issue(tag)
    e('s_barrier')
    if cfg.stamps: e('s_memtime s[42:43]')
    GWR = 128; BWR = 160; RS = 192
    for p in range(NST):
        group(p - 1, 3, rd_list(p, 0))
        group(p, 0, rd_list(p, 1))
        group(p, 1, rd_list(p, 2))
        group(p, 2, rd_list(p, 3), last_in_phase=(p < NST - 1))
        if cfg.xlate and cfg.prex1 <= p + 1 < cfg.prex: vm.need([('x', p + 1)])
        if p < NST - 1: e('s_barrier')
    e(f'v_and_b32 v{T}, 31, v{LN}')
    e(f's_lshl_b32 s38, s6, 9\ns_add_u32 s38, s38, {TAB+1024}')
    e(f'v_lshl_add_u32 v{T+1}, v{T}, 3, s38')
    group(NST - 1, 3, [])
    e(f'ds_read_b64 v[{RS}:{RS+1}], v{T+1}'); lg.issue('rs')
    e(f'ds_read_b64 v[{RS+2}:{RS+3}], v{T+1} offset:256'); lg.issue('rs')
    for nb in range(2):
        for j in range(4):
            e(f'ds_read_b128 v[{GWR+16*nb+4*j}:{GWR+16*nb+4*j+3}], v{TA_} offset:{(nb*32+8*j)*4}'); lg.issue(('tg', nb, j))
            e(f'ds_read_b128 v[{BWR+16*nb+4*j}:{BWR+16*nb+4*j+3}], v{TA_} offset:{512+(nb*32+8*j)*4}'); lg.issue(('tg', nb, j))
    if cfg.stamps: e('s_memtime s[44:45]')
    Y = 200; D = 208; SA = 212; SR = 213; GO = 214; XW = 216
    e(f'v_and_b32 v{Y}, 7, v{LN}')
    e(f'v_lshlrev_b32 v{Y}, 4, v{Y}')
    e(f'v_lshrrev_b32 v{Y+1}, 5, v{LN}')
    e(f'v_lshl_add_u32 v{Y}, v{Y+1}, 3, v{Y}')
    e(f'v_lshl_add_u32 v{SA}, v{T}, 7, v{Y}')
    e(f's_lshl_b32 s38, s3, 13\ns_add_u32 s38, s38, {STG}')
    e(f'v_add_u32 v{SA}, s38, v{SA}')
    e(f'v_lshrrev_b32 v{Y}, 3, v{LN}')
    e(f'v_and_b32 v{Y+1}, 7, v{LN}')
    e(f'v_xor_b32 v{Y+2}, v{Y+1}, v{Y}')
    e(f'v_lshlrev_b32 v{Y+2}, 4, v{Y+2}')
    e(f'v_lshl_add_u32 v{SR}, v{Y}, 7, v{Y+2}')
    e(f'v_add_u32 v{SR}, s38, v{SR}')
    e(f'v_lshlrev_b32 v{GO}, 11, v{Y}')
    e(f'v_lshl_add_u32 v{GO}, v{Y+1}, 4, v{GO}')
    e('s_lshl_b32 s38, s4, 18\ns_lshl_b32 s39, s6, 17\ns_add_u32 s38, s38, s39')
    e('s_lshl_b32 s39, s5, 8\ns_add_u32 s38, s38, s39\ns_lshl_b32 s39, s7, 7\ns_add_u32 s50, s38, s39')
    for idx in range(16):
        mb, nb, j = idx >> 3, (idx >> 2) & 1, idx & 3
        rs = RS + 2 * mb
        a = ACC + 16 * (2 * nb + mb)
        gw = GWR + 16 * nb + 4 * j; bw = BWR + 16 * nb + 4 * j
        lg.need(['rs', ('tg', nb, j)])
        y = Y + 4 * (j & 1)
        for hh in range(2):
            e(f'v_pk_fma_f32 v[{y+2*hh}:{y+2*hh+1}], v[{gw+2*hh}:{gw+2*hh+1}], v[{rs}:{rs+1}], v[{bw+2*hh}:{bw+2*hh+1}] op_sel:[0,1,0] op_sel_hi:[1,1,1]')
        for hh in range(2):
            e(f'v_pk_fma_f32 v[{y+2*hh}:{y+2*hh+1}], v[{a+4*j+2*hh}:{a+4*j+2*hh+1}], v[{rs}:{rs+1}], v[{y+2*hh}:{y+2*hh+1}] op_sel_hi:[1,0,1]')
        d = D + 2 * (j & 1)
        e(f'v_xor_b32 v{XW+(j&1)}, {(nb*4+j)*16}, v{SA}')
        e(f'v_cvt_pk_bf16_f32 v{d}, v{y}, v{y+1}')
        e(f'v_cvt_pk_bf16_f32 v{d+1}, v{y+2}, v{y+3}')
        e(f'ds_write_b64 v{XW+(j&1)}, v[{d}:{d+1}] offset:{mb*4096}'); lg.issue(('sw', mb))
        if idx % 8 == 7:
            lg.need([('sw', mb)])
            r0 = ACC + 16 * mb
            for q in range(4):
                e(f'ds_read_b128 v[{r0+4*q}:{r0+4*q+3}], v{SR} offset:{mb*4096+q*1024}'); lg.issue(('sr', mb, q))
            for q in range(4):
                lg.need([('sr', mb, q)])
                e(f's_add_u32 s51, s50, {(mb*32+8*q)*2048}')
                e(f'buffer_store_dwordx4 v[{r0+4*q}:{r0+4*q+3}], v{GO}, s[20:23], s51 offen{cfg.ntout}')
    e('s_branch L_end')

    e('L_dma:')
    vm = Counter(e, 'vmcnt', 63); lg = Counter(e, 'lgkmcnt', 15)
    VXO = 2; FL = 4; VL16 = 10; PR = 16
    T = 96; PW = 64; PG = 72; U = 76; WPK = 84; X = 112; WD = 104
    e('s_sub_u32 s3, s3, 4')
    e(f'v_lshrrev_b32 v{T+4}, 2, v0')
    e(f'v_and_b32 v{T+5}, 3, v0')
    e(f'v_lshlrev_b32 v{T+6}, 11, v{T+4}')
    e(f'v_lshl_add_u32 v{T+6}, v{T+5}, 4, v{T+6}')
    e(f'v_lshlrev_b32 v{T+7}, 1, v{T+4}')
    for r in range(4): e(f'v_mov_b32 v{PG+r}, 0')
    e('s_lshl_b32 s38, s4, 16\ns_lshl_b32 s39, s5, 8\ns_add_u32 s38, s38, s39\ns_lshl_b32 s39, s3, 6\ns_add_u32 s38, s38, s39')
    e('s_add_u32 s39, s38, 0x8000')
    e('s_lshl_b32 s36, s4, 6')
    e('s_waitcnt lgkmcnt(0)')
    st(0)
    e(f'buffer_load_dwordx4 v[{PW}:{PW+3}], v{T+6}, s[12:15], s38 offen{cfg.ntslab}'); vm.issue('pw0')
    e(f'buffer_load_short_d16_hi v{PG}, v{T+7}, s[16:19], s36 offen'); vm.issue('pg0')
    e(f'buffer_load_dwordx4 v[{PW+4}:{PW+7}], v{T+6}, s[12:15], s39 offen{cfg.ntslab}'); vm.issue('pw1')
    e(f'buffer_load_short_d16_hi v{PG+1}, v{T+7}, s[16:19], s36 offen offset:32'); vm.issue('pg1')
    e(f'buffer_load_short_d16_hi v{PG+2}, v{T+7}, s[68:71], s36 offen'); vm.issue('pb')
    e(f'buffer_load_short_d16_hi v{PG+3}, v{T+7}, s[68:71], s36 offen offset:32'); vm.issue('pb')
    e(f's_load_dword s64, s[60:61], {WS_EPOCH}')
    e('v_lshrrev_b32 v8, 3, v0')
    e('v_lshlrev_b32 v8, 11, v8')
    e('v_and_b32 v9, 7, v0')
    e('v_lshrrev_b32 v11, 4, v0')
    e('v_xor_b32 v9, v9, v11')
    e(f'v_lshl_add_u32 v{VXO}, v9, 4, v8')
    e(f'v_xor_b32 v{VXO+1}, 64, v{VXO}')
    e(f'v_add_u32 v{VXO+1}, {16384-1024}, v{VXO+1}')
    e(f'v_lshlrev_b32 v{VL16}, 4, v0')
    e('s_lshl_b32 s37, s4, 18\ns_lshl_b32 s39, s3, 16\ns_add_u32 s50, s37, s39\ns_lshl_b32 s51, s3, 12')
    e(f's_lshl_b32 s37, s5, 18\ns_add_u32 s52, s37, s51\ns_add_u32 s52, s52, {WS_W}')
    def emit_ops(ops):
        for ins, tag in ops:
            e(ins)
            if tag: vm.issue(tag)
    def x_ops(q):
        slot = q % NS
        if not cfg.xdma: return []
        if cfg.xlin:
            o = [(f's_add_u32 m0, s51, {slot*32768}', None), (f's_lshl_b32 s54, s4, 18', None), (f's_add_u32 s54, s54, s51', None), (f's_add_u32 s54, s54, {q*16384}', None)]
            for j in range(4): o.append((f'buffer_load_dwordx4 v{VL16}, s[8:11], s54 offen offset:{1024*j} lds', ('x', q)))
            return o
        return [(f's_add_u32 m0, s51, {slot*32768}', None)] + [(i, None) for i in rot_off(54, 50, q, 7)] + [
                (f'buffer_load_dwordx4 v{VXO}, s[8:11], s54 offen{cfg.ntx} lds', ('x', q)),
                (f'buffer_load_dwordx4 v{VXO+1}, s[8:11], s54 offen offset:1024{cfg.ntx} lds', ('x', q)),
                (f's_add_u32 m0, s51, {slot*32768+2048}', None),
                (f's_add_u32 s54, s54, 32768', None),
                (f'buffer_load_dwordx4 v{VXO}, s[8:11], s54 offen{cfg.ntx} lds', ('x', q)),
                (f'buffer_load_dwordx4 v{VXO+1}, s[8:11], s54 offen offset:1024{cfg.ntx} lds', ('x', q))]
    wsc = '' if cfg.nosc1w else ' sc1'
    def w_ops(q):
        slot = q % NS
        if not cfg.wdma: return []
        o = [(f's_add_u32 m0, s51, {slot*32768+16384}', None)] + [(i, None) for i in rot_off(55, 52, q, 14)]
        for j in range(4):
            o.append((f'buffer_load_dwordx4 v{VL16}, s[60:63], s55 offen offset:{1024*j}{wsc}{cfg.ntw} lds', ('w', q)))
        return o
    e(f'v_and_b32 v{T+1}, 3, v{T+4}')
    e(f'v_lshlrev_b32 v{T+1}, 2, v{T+1}')
    e('s_lshl_b32 s37, s3, 2')
    e(f'v_add_u32 v{T+2}, s37, v{T+5}')
    e(f'v_xor_b32 v{T+1}, v{T+1}, v{T+2}')
    e(f'v_lshlrev_b32 v{T+1}, 4, v{T+1}')
    e(f'v_lshl_add_u32 v{WD}, v{T+4}, 8, v{T+1}')
    e(f's_lshl_b32 s38, s5, 18\ns_lshl_b32 s39, s4, 13\ns_add_u32 s38, s38, s39\ns_add_u32 s38, s38, {WS_W}')
    e('s_add_u32 s39, s38, 0x1000')
    for t in range(2):
        vm.need([f'pw{t}', f'pg{t}'])
        if t == 0: st(1)
        w = PW + 4 * t; gk = PG + t; u = U
        for i in range(4):
            e(f'v_lshlrev_b32 v{u+2*i}, 16, v{w+i}')
            e(f'v_and_b32 v{u+2*i+1}, s53, v{w+i}')
        for i in range(8): e(f'v_mul_f32 v{u+i}, v{gk}, v{u+i}')
        for i in range(4): e(f'v_cvt_pk_bf16_f32 v{WPK+4*t+i}, v{u+2*i}, v{u+2*i+1}')
        e(f'buffer_store_dwordx4 v[{WPK+4*t}:{WPK+4*t+3}], v{WD}, s[60:63], s{38+t} offen sc1'); vm.issue('wst')
    if cfg.statwhen == 's': e('s_barrier')
    st(2)
    vm.need(['wst'])
    st(3)
    e('s_waitcnt lgkmcnt(0)')
    e(f's_add_u32 s64, s64, {TAG_STEP}')
    e('s_barrier')
    e('s_cmp_lg_u32 s3, 0')
    e('s_cbranch_scc1 L_noflagw')
    e(f's_lshl_b32 s38, s5, 10\ns_lshl_b32 s39, s4, 2\ns_add_u32 s38, s38, s39\ns_add_u32 s38, s38, {WS_FW}')
    e(f'v_lshlrev_b32 v{T+1}, 7, v0')
    e(f'v_add_u32 v{T+1}, s38, v{T+1}')
    e(f'v_mov_b32 v{T+2}, s64')
    e('s_mov_b64 exec, 0xff')
    e(f'buffer_store_dword v{T+2}, v{T+1}, s[60:63], 0 offen sc1')
    e('s_mov_b64 exec, -1')
    e('L_noflagw:')
    st(4)
    ix = cfg.prex
    for t in range(2):
        w = PW + 4 * t; bk = PG + 2 + t
        for i in range(4):
            e(f'v_lshlrev_b32 v{U+2*i}, 16, v{w+i}')
            e(f'v_and_b32 v{U+2*i+1}, s53, v{w+i}')
        for i in range(8):
            if t == 0: e(f'v_mul_f32 v{X+8+i}, v{bk}, v{U+i}')
            else: e(f'v_fmac_f32 v{X+8+i}, v{bk}, v{U+i}')
        for i in range(4):
            if t == 0:
                e(f'v_lshlrev_b32 v{X+2*i}, 16, v{WPK+i}')
                e(f'v_and_b32 v{X+2*i+1}, s53, v{WPK+i}')
            else:
                e(f'v_lshlrev_b32 v{U+2*i}, 16, v{WPK+4+i}')
                e(f'v_and_b32 v{U+2*i+1}, s53, v{WPK+4+i}')
        if t == 1:
            for i in range(8): e(f'v_add_f32 v{X+i}, v{X+i}, v{U+i}')
    e('s_nop 1')
    for j in range(8): e(f'v_permlane32_swap_b32 v{X+j}, v{X+8+j}')
    e('s_nop 1')
    for j in range(8): e(f'v_add_f32 v{X+j}, v{X+j}, v{X+8+j}')
    e('s_nop 1')
    for j in range(4): e(f'v_permlane16_swap_b32 v{X+j}, v{X+4+j}')
    e('s_nop 1')
    for j in range(4): e(f'v_add_f32 v{X+j}, v{X+j}, v{X+4+j}')
    for rot in (8, 4):
        e('s_nop 1')
        for j in range(4): e(f'v_add_f32_dpp v{X+j}, v{X+j}, v{X+j} row_ror:{rot} row_mask:0xf bank_mask:0xf')
    e(f'v_lshrrev_b32 v{T+1}, 4, v0')
    e(f'v_lshrrev_b32 v{T+2}, 1, v{T+1}')
    e(f'v_lshlrev_b32 v{T+2}, 9, v{T+2}')
    e(f'v_and_b32 v{T+1}, 1, v{T+1}')
    e(f'v_lshl_add_u32 v{T+2}, v{T+1}, 4, v{T+2}')
    e(f'v_lshl_add_u32 v{T+2}, v{T+5}, 5, v{T+2}')
    e('s_lshl_b32 s38, s5, 5\ns_add_u32 s38, s38, s4\ns_lshl_b32 s38, s38, 10\ns_lshl_b32 s39, s3, 7\ns_add_u32 s38, s38, s39')
    e(f's_add_u32 s38, s38, {WS_PART}')
    e(f'v_and_b32 v{T+1}, 15, v0')
    e(f'v_cmp_gt_u32 vcc, 4, v{T+1}')
    e('s_and_saveexec_b64 s[76:77], vcc')
    e(f'buffer_store_dwordx4 v[{X}:{X+3}], v{T+2}, s[60:63], s38 offen sc1'); vm.issue('pst')
    e('s_mov_b64 exec, -1')
    if cfg.codepf:
        e('s_getpc_b64 s[78:79]')
        e('L_pc:')
        e('s_sub_u32 s78, s78, L_pc-' + KNAME)
        e('s_subb_u32 s79, s79, 0')
        e('v_lshlrev_b32 v12, 7, v0')
        e('s_lshl_b32 s38, s3, 13')
        e('v_add_u32 v12, s38, v12')
        e('CODEPF')
    e(f'v_lshlrev_b32 v{FL+2}, 2, v0')
    e('s_cmp_eq_u32 s3, 0')
    e('s_cselect_b32 s37, 0, 0x7fff0000')
    e(f's_lshl_b32 s38, s5, 9\ns_add_u32 s38, s38, {WS_FC}\ns_add_u32 s38, s38, s37')
    e('v_lshlrev_b32 v13, 3, v0')
    e(f'v_add_u32 v{FL+4}, s38, v13')
    e(f's_lshl_b32 s38, s4, 7\ns_add_u32 s38, s38, {WS_FR}\ns_add_u32 s38, s38, s37')
    e('v_and_b32 v13, 31, v0')
    e('v_lshlrev_b32 v13, 2, v13')
    e(f'v_add_u32 v{FL+5}, s38, v13')
    if cfg.wait_flags:
        e('s_cmp_lg_u32 s3, 0')
        e('s_cbranch_scc1 L_notpoller')
        e('v_and_b32 v12, 31, v0')
        if cfg.G1 < 32: e(f'v_min_u32 v12, {cfg.G1-1}, v12')
        e('v_lshlrev_b32 v12, 2, v12')
        e(f's_lshl_b32 s39, s5, 10\ns_lshr_b32 s37, s4, 2\ns_lshl_b32 s37, s37, 7\ns_add_u32 s39, s39, s37\ns_add_u32 s39, s39, {WS_FW}')
        e(f's_mov_b32 s38, {cfg.spin}')
        if cfg.polldelay: e(f's_sleep {cfg.polldelay}')
        n = cfg.pipepoll
        for i in range(n - 1):
            e(f'buffer_load_dword v{16+i}, v12, s[60:63], s39 offen sc1')
            e(f's_sleep {cfg.pollgap}')
        e('L_spin_w:')
        for i in range(n):
            e(f'buffer_load_dword v{16+(i+n-1)%n}, v12, s[60:63], s39 offen sc1')
            e(f's_waitcnt vmcnt({n-1})')
            e(f'v_cmp_eq_u32 vcc, s64, v{16+i}')
            e('s_cmp_eq_u64 vcc, -1')
            e('s_cbranch_scc1 L_found_w')
            if n > 1: e(f's_sleep {cfg.pollgap}')
            elif cfg.sleep: e(f's_sleep {cfg.sleep}')
        e('s_sub_u32 s38, s38, 1')
        e('s_cmp_lg_u32 s38, 0')
        e('s_cbranch_scc1 L_spin_w')
        e('L_found_w:')
        e('s_branch L_ready_w')
        e('L_notpoller:')
        e('s_waitcnt vmcnt(0)')
        e('L_ready_w:')
    if cfg.stamps: e('s_memtime s[58:59]')
    if not cfg.wait_flags: e('s_waitcnt vmcnt(0)')
    vm.q = []
    e(f's_lshl_b32 s38, s5, 9\ns_lshl_b32 s39, s4, 4\ns_add_u32 s38, s38, s39\ns_lshl_b32 s39, s3, 2\ns_add_u32 s38, s38, s39\ns_add_u32 s38, s38, {WS_FC}')
    tagstore(T + 1, 38)
    e('s_barrier')
    iw = 0
    for q in range(cfg.prew):
        emit_ops(w_ops(q)); iw += 1
    vm.need([('w', 0)])
    e('s_barrier')
    if cfg.stamps: e('s_memtime s[42:43]')
    if cfg.wpf:
        e(f's_lshl_b32 s57, s5, 18\ns_and_b32 s37, s4, 3\ns_lshl_b32 s37, s37, 12\ns_add_u32 s57, s57, s37\ns_lshl_b32 s37, s3, 10\ns_add_u32 s57, s57, s37\ns_add_u32 s57, s57, {WS_W}')
    if cfg.G1 < 32:
        e('v_and_b32 v13, 31, v0')
        e('v_lshlrev_b32 v13, 2, v13')
        e('s_cmp_eq_u32 s3, 0')
        e('s_cselect_b32 s37, 0, 0x7fff0000')
        e(f's_lshl_b32 s39, s5, 10\ns_lshr_b32 s38, s4, 2\ns_lshl_b32 s38, s38, 7\ns_add_u32 s39, s39, s38\ns_add_u32 s39, s39, {WS_FW}\ns_add_u32 s39, s39, s37')
        e('v_add_u32 v57, s39, v13')
    P2C = cfg.G1 // 2 - NS if cfg.G1 < 32 else -1
    PO = 58
    def check_final():
        e(f'v_cmp_eq_u32 vcc, s64, v{PO}')
        e(f'v_cmp_eq_u32 s[76:77], s64, v{PO+1}')
        e(f'v_cmp_eq_u32 s[80:81], s64, v{PO+2}')
        e('s_and_b64 vcc, vcc, s[76:77]')
        e('s_and_b64 vcc, vcc, s[80:81]')
        e('s_cmp_eq_u64 vcc, -1')
    for p in range(NST - 1):
        if cfg.wpf and p + cfg.wpf < NST:
            e(f's_add_u32 s56, s57, {(p + cfg.wpf) * 16384}')
            e(f'buffer_load_dwordx4 v[120:123], v{VL16}, s[60:63], s56 offen sc1'); vm.issue(('pf', p))
        lim = min(NST - 1, p + NS - 1)
        for _ in range(2):
            if iw <= lim:
                assert iw < cfg.G1 // 2 or p > P2C, (p, iw)
                emit_ops(w_ops(iw)); iw += 1
            if ix <= lim:
                emit_ops(x_ops(ix)); ix += 1
        if p == cfg.P2I and cfg.G1 < 32:
            e('buffer_load_dword v61, v57, s[60:63], 0 offen sc1'); vm.issue('poll2')
        if p == P2C and cfg.G1 < 32:
            vm.need(['poll2'])
            e('s_cmp_lg_u32 s3, 0')
            e('s_cbranch_scc1 L_ready_w2')
            e('v_cmp_eq_u32 vcc, s64, v61')
            e('s_cmp_eq_u64 vcc, -1')
            e('s_cbranch_scc1 L_ready_w2')
            if cfg.wait_flags:
                e(f's_mov_b32 s38, {cfg.spin}')
                e('L_spin_w2:')
                e('buffer_load_dword v61, v57, s[60:63], 0 offen sc1')
                e('s_waitcnt vmcnt(0)')
                e('v_cmp_eq_u32 vcc, s64, v61')
                e('s_cmp_eq_u64 vcc, -1')
                e('s_cbranch_scc1 L_ready_w2')
                e('s_sub_u32 s38, s38, 1')
                e('s_cmp_lg_u32 s38, 0')
                e('s_cbranch_scc1 L_spin_w2')
            e('L_ready_w2:')
        if p == cfg.PP:
            e(f'buffer_load_dwordx2 v[{PO}:{PO+1}], v{FL+4}, s[60:63], 0 offen sc1'); vm.issue('poll')
            e(f'buffer_load_dword v{PO+2}, v{FL+5}, s[60:63], 0 offen sc1'); vm.issue('poll')
        if p == cfg.PC:
            vm.need(['poll'])
            e('s_cmp_lg_u32 s3, 0')
            e('s_cbranch_scc1 L_ready_a')
            check_final()
            e('s_cbranch_scc1 L_ready_a')
            if cfg.wait_flags:
                e(f's_mov_b32 s38, {cfg.spin}')
                e('L_spin_a:')
                e(f'buffer_load_dwordx2 v[{PO}:{PO+1}], v{FL+4}, s[60:63], 0 offen sc1')
                e(f'buffer_load_dword v{PO+2}, v{FL+5}, s[60:63], 0 offen sc1')
                e('s_waitcnt vmcnt(0)')
                check_final()
                e('s_cbranch_scc1 L_ready_a')
                e('s_sub_u32 s38, s38, 1')
                e('s_cmp_lg_u32 s38, 0')
                e('s_cbranch_scc1 L_spin_a')
            e('L_ready_a:')
        if p == cfg.PL:
            e('v_lshrrev_b32 v12, 4, v0')
            e('v_lshlrev_b32 v12, 10, v12')
            e('v_and_b32 v13, 15, v0')
            e('v_lshl_add_u32 v12, v13, 4, v12')
            e(f's_lshl_b32 s38, s5, 15\ns_lshl_b32 s39, s3, 8\ns_add_u32 s38, s38, s39\ns_add_u32 s38, s38, {WS_PART}')
            for t in range(8):
                if t: e('s_add_u32 s38, s38, 0x1000')
                e(f'buffer_load_dwordx4 v[{PR+8+4*t}:{PR+8+4*t+3}], v12, s[60:63], s38 offen sc1'); vm.issue('pp')
            e('s_lshl_b32 s38, s4, 10\ns_lshl_b32 s39, s3, 8\ns_add_u32 s38, s38, s39')
            e(f'buffer_load_dword v{PR+40}, v{FL+2}, s[60:63], s38 offen sc1'); vm.issue('ps')
        if p == cfg.PS:
            vm.need(['pp', 'ps'])
            P = PR + 8
            for h in (16, 8, 4):
                for i in range(h): e(f'v_add_f32 v{P+i}, v{P+i}, v{P+h+i}')
            e('s_nop 1')
            e(f'v_permlane32_swap_b32 v{P}, v{P+2}\nv_permlane32_swap_b32 v{P+1}, v{P+3}')
            e('s_nop 1')
            e(f'v_add_f32 v{P}, v{P}, v{P+2}\nv_add_f32 v{P+1}, v{P+1}, v{P+3}')
            e('s_nop 1')
            e(f'v_permlane16_swap_b32 v{P}, v{P+1}')
            e('s_nop 1')
            e(f'v_add_f32 v{P}, v{P}, v{P+1}')
            e('v_lshrrev_b32 v12, 4, v0')
            e('v_and_b32 v13, 15, v0')
            e('v_lshlrev_b32 v13, 4, v13')
            e('v_lshl_add_u32 v12, v12, 2, v13')
            e(f's_lshl_b32 s38, s3, 8\ns_add_u32 s39, s38, {TAB}')
            e('v_add_u32 v12, s39, v12')
            e(f'ds_write_b32 v12, v{P}'); lg.issue('tab')
            e(f's_add_u32 s39, s38, {TAB+1024}')
            e(f'v_add_u32 v13, s39, v{FL+2}')
            e(f'ds_write_b32 v13, v{PR+40}'); lg.issue('tab')
            lg.drain()
        vm.need([('w', p + 1)])
        if p + 1 >= cfg.prex: vm.need([('x', p + 1)])
        e('s_barrier')
    assert ix == NST and iw == NST
    if cfg.stamps: e('s_memtime s[44:45]')
    e('s_or_b32 s38, s2, s3')
    e('s_cmp_lg_u32 s38, 0')
    e('s_cbranch_scc1 L_noepoch')
    e('v_lshrrev_b32 v12, 3, v0')
    e('v_lshlrev_b32 v12, 10, v12')
    e('v_and_b32 v13, 7, v0')
    e('v_lshl_add_u32 v12, v13, 4, v12')
    e(f's_mov_b32 s38, {cfg.spin}')
    e('L_spin_e:')
    e(f's_mov_b32 s39, {WS_FW}')
    e('buffer_load_dwordx4 v[16:19], v12, s[60:63], s39 offen sc1')
    e('s_waitcnt vmcnt(0)')
    e('s_mov_b64 s[76:77], -1')
    for i in range(4):
        e(f'v_cmp_eq_u32 vcc, s64, v{16+i}')
        e('s_and_b64 s[76:77], s[76:77], vcc')
    e('s_cmp_eq_u64 s[76:77], -1')
    e('s_cbranch_scc1 L_doepoch')
    e('s_sub_u32 s38, s38, 1')
    e('s_cmp_lg_u32 s38, 0')
    e('s_cbranch_scc1 L_spin_e')
    e('L_doepoch:')
    e(f'v_mov_b32 v12, {WS_EPOCH}')
    e('v_mov_b32 v13, s64')
    e('s_mov_b64 exec, 1')
    e('buffer_store_dword v13, v12, s[60:63], 0 offen sc1')
    e('s_mov_b64 exec, -1')
    e('L_noepoch:')
    e('L_end:')
    if cfg.stamps:
        e('s_waitcnt vmcnt(0) lgkmcnt(0)')
        e('s_memtime s[46:47]')
        e('s_memrealtime s[56:57]')
        e('s_waitcnt lgkmcnt(0)')
        e('s_sub_u32 s42, s42, s40\ns_sub_u32 s44, s44, s40\ns_sub_u32 s46, s46, s40\ns_sub_u32 s58, s58, s40')
        e('v_mov_b32 v4, s42\nv_mov_b32 v5, s44\nv_mov_b32 v6, s46\nv_mov_b32 v7, s48\nv_mov_b32 v8, s56\nv_mov_b32 v9, s58\nv_mov_b32 v10, 0\nv_mov_b32 v11, 0')
        for i in range(5): e(f's_sub_u32 s{82+2*i}, s{82+2*i}, s40\nv_mov_b32 v{16+i}, s{82+2*i}')
        e(f's_lshl_b32 s65, s2, 3\ns_add_u32 s65, s65, s66\ns_lshl_b32 s65, s65, 6\ns_add_u32 s65, s65, {WS_STAMP}')
        e('v_mov_b32 v12, s65')
        e('s_mov_b64 exec, 1')
        e('buffer_store_dwordx4 v[4:7], v12, s[60:63], 0 offen')
        e('buffer_store_dwordx4 v[8:11], v12, s[60:63], 0 offen offset:16')
        e('buffer_store_dwordx4 v[16:19], v12, s[60:63], 0 offen offset:32')
        e('buffer_store_dwordx4 v[20:23], v12, s[60:63], 0 offen offset:48')
    e('L_exit:')
    e('s_endpgm')
    e('L_codeend:')
    e('.section .rodata,"a"')
    e(f'.p2align 6\n.amdhsa_kernel {KNAME}')
    e('  .amdhsa_next_free_vgpr 224\n  .amdhsa_next_free_sgpr 96\n  .amdhsa_accum_offset 224')
    e('  .amdhsa_group_segment_fixed_size 0\n  .amdhsa_kernarg_size 56\n  .amdhsa_user_sgpr_count 2')
    e('  .amdhsa_user_sgpr_kernarg_segment_ptr 1\n  .amdhsa_system_sgpr_workgroup_id_x 1\n.end_amdhsa_kernel')
    txt = e.text()
    pf = (f'v_cmp_gt_u32 vcc, L_codeend-{KNAME}, v12\n'
          's_and_saveexec_b64 s[80:81], vcc\n'
          's_cbranch_execz L_nopf\n'
          'global_load_dword v11, v12, s[78:79]\n'
          'L_nopf:\n'
          's_mov_b64 exec, -1')
    txt = txt.replace('CODEPF', pf)
    return txt

if __name__ == '__main__':
    import ast
    kw = {}
    for a in sys.argv[1:]:
        k, v = a.split('=')
        kw[k] = ast.literal_eval(v)
    print(gen(Cfg(**kw)))
```

```python
import sys
sys.path.insert(0, 'gen')
from asmlib import Emitter, Counter

KNAME = 'standalone__layernorm_linear__prompt_kernel'
WS_STATS = 0
WS_EPOCH = 0x8000
WS_FW = 0xC000
WS_FC = 0xA000
WS_FR = 0xB000
WS_PART = 0x10000
WS_STAMP = 0x80000
WS_W = 0x100000
TAG_STEP = 0x9E3779B9

HEADER = '''; LayerNorm(x)*g + b followed by @ w, fused in one launch.
'''

class Cfg:
    NS = 5
    PP = 5
    PC = 9
    PL = 10
    PS = 14
    prew = 3
    prex = 5
    statsplit = 8
    statwhen = 's'
    polldelay = 0
    ntstat = ''; ntslab = ''; ntx = ''; ntout = ' sc1 nt'; ntw = ''
    prex1 = 2
    statdelay0 = 0
    epi2 = True
    LA = 3
    bwearly = False
    partlate = False
    G1 = 16
    P2I = 1
    krot = 0
    xlin = False
    nosc1w = False
    wpf = 0
    xearly = 0
    onepass = True
    xlate = False
    pipepoll = 1
    pollgap = 6
    stamps = False
    xmap = 0
    codepf = True
    mfma = True; reads = True; xdma = True; wdma = True
    wait_flags = True
    earlywait = True
    sleep = 0
    spin = 40000
    def __init__(self, **kw):
        for k, v in kw.items():
            assert hasattr(self, k), k
            setattr(self, k, v)


def gen(cfg):
    e = Emitter()
    def st(i):
        if cfg.stamps: e(f's_memtime s[{82+2*i}:{83+2*i}]')
    NS = cfg.NS; NST = 16
    LDS = NS * 32768
    assert NS == 5
    TAB = ((NST - 5) % NS) * 32768
    STG = ((NST - 4) % NS) * 32768
    e(HEADER.rstrip())
    e(f'; @launch grid=(256,1,1) block=(512,1,1) lds={LDS}')
    e('.amdgcn_target "amdgcn-amd-amdhsa--gfx950"\n.text')
    e(f'.globl {KNAME}\n.p2align 8\n.type {KNAME},@function\n{KNAME}:')
    e('s_cmp_ge_u32 s2, 0x100')
    e('s_cbranch_scc1 L_exit')
    if cfg.stamps: e('s_memtime s[40:41]\ns_memrealtime s[48:49]')
    e('s_load_dwordx2 s[12:13], s[0:1], 24')
    e('s_load_dwordx2 s[16:17], s[0:1], 8')
    e('s_load_dwordx2 s[8:9], s[0:1], 0')
    e('s_load_dwordx2 s[68:69], s[0:1], 16')
    e('s_load_dwordx2 s[60:61], s[0:1], 48')
    e('s_load_dwordx2 s[20:21], s[0:1], 32')
    e('v_lshrrev_b32 v1, 6, v0')
    e('v_and_b32 v0, 63, v0')
    e('v_readfirstlane_b32 s3, v1')
    e('s_mov_b32 s10, 0x800000\ns_mov_b32 s11, 0x20000')
    e('s_mov_b32 s14, 0x200000\ns_mov_b32 s15, 0x20000')
    e('s_mov_b32 s18, 0x800\ns_mov_b32 s19, 0x20000')
    e('s_mov_b32 s70, 0x800\ns_mov_b32 s71, 0x20000')
    e('s_mov_b32 s22, 0x800000\ns_mov_b32 s23, 0x20000')
    e('s_mov_b32 s62, 0x300000\ns_mov_b32 s63, 0x20000')
    e('s_and_b32 s4, s2, 7')
    e('s_lshr_b32 s5, s2, 3')
    if cfg.xmap == 0:
        e('s_and_b32 s6, s5, 3\ns_lshl_b32 s4, s4, 2\ns_add_u32 s4, s4, s6\ns_lshr_b32 s5, s5, 2')
    else:
        e('s_and_b32 s6, s5, 7\ns_lshr_b32 s7, s4, 1\ns_lshl_b32 s7, s7, 3\ns_add_u32 s6, s6, s7')
        e('s_and_b32 s4, s4, 1\ns_lshl_b32 s4, s4, 2\ns_lshr_b32 s5, s5, 3\ns_add_u32 s5, s5, s4\ns_mov_b32 s4, s6')
    e('s_mov_b32 s66, s3')
    if cfg.krot: e(f's_and_b32 s67, s4, 3\ns_mul_i32 s67, s67, {cfg.krot}')
    e('s_mov_b32 s53, 0xffff0000')
    e('s_cmp_ge_u32 s3, 4')
    e('s_cbranch_scc1 L_dma')

    def rot_off(dst, base, q, shift, extra=0):
        if not cfg.krot: return [f's_add_u32 s{dst}, s{base}, {(q << shift) + extra}']
        o = [f's_add_u32 s{dst}, s67, {q}', f's_and_b32 s{dst}, s{dst}, 15', f's_lshl_b32 s{dst}, s{dst}, {shift}', f's_add_u32 s{dst}, s{dst}, s{base}']
        if extra: o.append(f's_add_u32 s{dst}, s{dst}, {extra}')
        return o

    def tagstore(vtmp, addr_sgpr):
        e(f'v_mov_b32 v{vtmp}, s{addr_sgpr}')
        e(f'v_mov_b32 v{vtmp+1}, s64')
        e('s_mov_b64 exec, 1')
        e(f'buffer_store_dword v{vtmp+1}, v{vtmp}, s[60:63], 0 offen sc1')
        e('s_mov_b64 exec, -1')

    ACC = 0; FR = 64; XA = 96; WA = 108; LN = 114; TA_ = 115
    lg = Counter(e, 'lgkmcnt', 15); vm = Counter(e, 'vmcnt', 63)
    T = 116
    e(f'v_mov_b32 v{LN}, v0')
    X = 128; L = 160; A = 192; RW_ = 204; I16 = 205
    e(f'v_lshrrev_b32 v{T}, 4, v{LN}')
    e(f'v_and_b32 v{I16}, 15, v{LN}')
    e('s_lshl_b32 s38, s4, 7\ns_lshl_b32 s39, s5, 4\ns_add_u32 s38, s38, s39\ns_lshl_b32 s39, s3, 2\ns_add_u32 s38, s38, s39')
    e(f'v_add_u32 v{RW_}, s38, v{T}')
    e(f'v_lshlrev_b32 v{T+11}, 11, v{RW_}')
    e(f'v_lshl_add_u32 v{T+11}, v{I16}, 4, v{T+11}')
    e('s_and_b32 s6, s3, 1')
    e('s_lshr_b32 s7, s3, 1')
    e(f'v_and_b32 v{T+1}, 31, v{LN}')
    e(f'v_lshrrev_b32 v{T+2}, 5, v{LN}')
    e(f'v_bfe_u32 v{T+3}, v{LN}, 1, 3')
    e(f'v_xor_b32 v{T+3}, v{T+3}, v{T+2}')
    e(f'v_lshlrev_b32 v{T+3}, 4, v{T+3}')
    e('s_lshl_b32 s37, s6, 13')
    e(f'v_lshl_add_u32 v{T+9}, v{T+1}, 7, v{T+3}')
    e(f'v_add_u32 v{XA}, s37, v{T+9}')
    for ks in range(1, 4): e(f'v_xor_b32 v{XA+ks}, {32*ks}, v{XA}')
    for w in range(1, 3):
        for ks in range(4): e(f'v_add_u32 v{XA+4*w+ks}, {0x10000*w}, v{XA+ks}')
    e(f'v_lshrrev_b32 v{T+1}, 4, v{LN}')
    e(f'v_bfe_u32 v{T+2}, v{LN}, 2, 2')
    e(f'v_and_b32 v{T+3}, 3, v{LN}')
    e(f'v_lshrrev_b32 v{T+9}, 1, v{T+1}')
    e(f'v_lshl_add_u32 v{T+9}, v{T+9}, 3, v{T+2}')
    e(f'v_lshlrev_b32 v{T+9}, 8, v{T+9}')
    e(f'v_and_b32 v{T+1}, 1, v{T+1}')
    e(f'v_lshlrev_b32 v{T+1}, 1, v{T+1}')
    e(f'v_lshrrev_b32 v{T+10}, 1, v{T+3}')
    e(f'v_add_u32 v{T+1}, v{T+1}, v{T+10}')
    e('s_lshl_b32 s37, s7, 3')
    e(f'v_add_u32 v{T+1}, s37, v{T+1}')
    e(f'v_lshlrev_b32 v{T+2}, 2, v{T+2}')
    e(f'v_xor_b32 v{T+1}, v{T+1}, v{T+2}')
    e(f'v_lshlrev_b32 v{T+1}, 4, v{T+1}')
    e(f'v_and_b32 v{T+3}, 1, v{T+3}')
    e(f'v_lshl_add_u32 v{T+1}, v{T+3}, 3, v{T+1}')
    e(f'v_add_u32 v{T+1}, v{T+1}, v{T+9}')
    e(f'v_add_u32 v{WA}, 0x4000, v{T+1}')
    e(f'v_xor_b32 v{WA+1}, 64, v{WA}')
    for w in range(1, 3):
        for nb in range(2): e(f'v_add_u32 v{WA+2*w+nb}, {0x10000*w}, v{WA+nb}')
    e(f'v_lshrrev_b32 v{T+1}, 5, v{LN}')
    e(f'v_lshlrev_b32 v{T+1}, 4, v{T+1}')
    e(f's_lshl_b32 s37, s7, 8\ns_add_u32 s37, s37, {TAB}')
    e(f'v_add_u32 v{TA_}, s37, v{T+1}')
    e('s_waitcnt lgkmcnt(0)')
    st(0)
    e(f's_load_dword s64, s[60:61], {WS_EPOCH}')
    def sload(j):
        e(f'buffer_load_dwordx4 v[{X+4*j}:{X+4*j+3}], v{T+11}, s[8:11], 0 offen offset:{256*j}{cfg.ntstat}'); vm.issue(('sx', j))
    VX = 208
    e(f'v_lshrrev_b32 v{T+1}, 3, v{LN}')
    e(f'v_lshlrev_b32 v{T+1}, 11, v{T+1}')
    e(f'v_and_b32 v{T+2}, 7, v{LN}')
    e(f'v_lshrrev_b32 v{T+3}, 4, v{LN}')
    e(f'v_xor_b32 v{T+2}, v{T+2}, v{T+3}')
    e(f'v_lshl_add_u32 v{VX}, v{T+2}, 4, v{T+1}')
    e(f'v_xor_b32 v{VX+1}, 64, v{VX}')
    e(f'v_add_u32 v{VX+1}, {16384-1024}, v{VX+1}')
    e('s_lshl_b32 s37, s4, 18\ns_lshl_b32 s39, s3, 16\ns_add_u32 s50, s37, s39\ns_lshl_b32 s51, s3, 12')
    def cx(q):
        slot = q % NS
        e(f's_add_u32 m0, s51, {slot*32768}')
        for ins in rot_off(54, 50, q, 7): e(ins)
        e(f'buffer_load_dwordx4 v{VX}, s[8:11], s54 offen{cfg.ntx} lds'); vm.issue(('x', q))
        e(f'buffer_load_dwordx4 v{VX+1}, s[8:11], s54 offen offset:1024{cfg.ntx} lds'); vm.issue(('x', q))
        e(f's_add_u32 m0, s51, {slot*32768+2048}')
        e(f's_add_u32 s54, s54, 32768')
        e(f'buffer_load_dwordx4 v{VX}, s[8:11], s54 offen{cfg.ntx} lds'); vm.issue(('x', q))
        e(f'buffer_load_dwordx4 v{VX+1}, s[8:11], s54 offen offset:1024{cfg.ntx} lds'); vm.issue(('x', q))
    if cfg.statwhen == '0':
        if cfg.statdelay0: e(f's_sleep {cfg.statdelay0}')
        for j in range(8): sload(j)
        e('s_barrier')
    else:
        if cfg.statwhen == 's': e('s_barrier')
        else: e('s_barrier')
        for j in range(cfg.statsplit): sload(j)
        if cfg.statwhen == 's': e('s_barrier')
        if cfg.statsplit < 8:
            vm.need([('sx', 0)])
            for j in range(cfg.statsplit, 8): sload(j)
    for q in range(cfg.xearly): cx(q)
    st(1)
    if cfg.bwearly: e('s_barrier')
    vm.need([('sx', 7)])
    st(2)
    for q in range(cfg.xearly, cfg.prex1): cx(q)
    M = A + 8; V = A + 10
    if cfg.onepass:
        e('s_mov_b32 s39, 0x3f803f80')
        for a in range(8): e(f'v_mov_b32 v{A+a}, 0')
        for j in range(8):
            for i in range(4): e(f'v_dot2c_f32_bf16 v{A+i}, s39, v{X+4*j+i}')
            for i in range(4): e(f'v_dot2c_f32_bf16 v{A+4+i}, v{X+4*j+i}, v{X+4*j+i}')
        e('s_nop 2')
        e(f'v_add_f32 v{A}, v{A}, v{A+1}\nv_add_f32 v{A+2}, v{A+2}, v{A+3}')
        e(f'v_add_f32 v{A+4}, v{A+4}, v{A+5}\nv_add_f32 v{A+6}, v{A+6}, v{A+7}')
        e(f'v_add_f32 v{M}, v{A}, v{A+2}\nv_add_f32 v{V+1}, v{A+4}, v{A+6}')
        for rot in (8, 4, 2, 1):
            e('s_nop 0')
            e(f'v_add_f32_dpp v{M}, v{M}, v{M} row_ror:{rot} row_mask:0xf bank_mask:0xf')
            e(f'v_add_f32_dpp v{V+1}, v{V+1}, v{V+1} row_ror:{rot} row_mask:0xf bank_mask:0xf')
            e('s_nop 0')
        e(f'v_mul_f32 v{M}, 0xba800000, v{M}')
        e(f'v_mul_f32 v{V+1}, 0x3a800000, v{V+1}')
        e(f'v_fma_f32 v{V+1}, -v{M}, v{M}, v{V+1}')
        e(f'v_max_f32 v{V+1}, 0, v{V+1}')
        e(f'v_add_f32 v{V+1}, 0x3727c5ac, v{V+1}')
    else:
        for d in range(32):
            e(f'v_lshlrev_b32 v{L+d}, 16, v{X+d}')
            e(f'v_and_b32 v{X+d}, s53, v{X+d}')
        for a in range(4):
            e(f'v_pk_add_f32 v[{A+2*a}:{A+2*a+1}], v[{X+2*a}:{X+2*a+1}], v[{L+2*a}:{L+2*a+1}]')
        for d in range(8, 32, 2):
            a = (d // 2) % 4
            e(f'v_pk_add_f32 v[{A+2*a}:{A+2*a+1}], v[{A+2*a}:{A+2*a+1}], v[{X+d}:{X+d+1}]')
            e(f'v_pk_add_f32 v[{A+2*a}:{A+2*a+1}], v[{A+2*a}:{A+2*a+1}], v[{L+d}:{L+d+1}]')
        def fold(dst):
            e(f'v_pk_add_f32 v[{A}:{A+1}], v[{A}:{A+1}], v[{A+2}:{A+3}]')
            e(f'v_pk_add_f32 v[{A+4}:{A+5}], v[{A+4}:{A+5}], v[{A+6}:{A+7}]')
            e(f'v_pk_add_f32 v[{A}:{A+1}], v[{A}:{A+1}], v[{A+4}:{A+5}]')
            e(f'v_add_f32 v{dst}, v{A}, v{A+1}')
            for rot in (8, 4, 2, 1):
                e('s_nop 1')
                e(f'v_add_f32_dpp v{dst}, v{dst}, v{dst} row_ror:{rot} row_mask:0xf bank_mask:0xf')
        M = A + 8
        fold(M)
        e(f'v_mul_f32 v{M}, 0xba800000, v{M}')
        for d in range(0, 32, 2):
            e(f'v_pk_add_f32 v[{X+d}:{X+d+1}], v[{X+d}:{X+d+1}], v[{M}:{M+1}] op_sel_hi:[1,0]')
            e(f'v_pk_add_f32 v[{L+d}:{L+d+1}], v[{L+d}:{L+d+1}], v[{M}:{M+1}] op_sel_hi:[1,0]')
        for a in range(4):
            e(f'v_pk_mul_f32 v[{A+2*a}:{A+2*a+1}], v[{X+2*a}:{X+2*a+1}], v[{X+2*a}:{X+2*a+1}]')
        for d in range(8, 32, 2):
            a = (d // 2) % 4
            e(f'v_pk_fma_f32 v[{A+2*a}:{A+2*a+1}], v[{X+d}:{X+d+1}], v[{X+d}:{X+d+1}], v[{A+2*a}:{A+2*a+1}]')
        for d in range(0, 32, 2):
            a = (d // 2) % 4
            e(f'v_pk_fma_f32 v[{A+2*a}:{A+2*a+1}], v[{L+d}:{L+d+1}], v[{L+d}:{L+d+1}], v[{A+2*a}:{A+2*a+1}]')
        V = A + 10
        fold(V)
        e('s_mov_b32 s39, 0x3727c5ac')
        e(f'v_mov_b32 v{V+1}, s39')
        e(f'v_fmac_f32 v{V+1}, 0x3a800000, v{V}')
    e(f'v_rsq_f32 v{V}, v{V+1}')
    e('s_nop 0')
    e(f'v_mul_f32 v{V+1}, v{M}, v{V}')
    e(f'v_lshlrev_b32 v{RW_}, 3, v{RW_}')
    e(f'v_cmp_eq_u32 vcc, 0, v{I16}')
    e('s_and_saveexec_b64 s[76:77], vcc')
    e(f'buffer_store_dwordx2 v[{V}:{V+1}], v{RW_}, s[60:63], 0 offen sc1')
    e('s_mov_b64 exec, -1')
    if not cfg.xlate:
        for q in range(max(cfg.prex1, cfg.xearly), cfg.prex): cx(q)
    e('s_waitcnt lgkmcnt(0)')
    e(f's_add_u32 s64, s64, {TAG_STEP}')
    st(3)
    if not cfg.bwearly: e('s_barrier')
    if cfg.xlate:
        vm.q = []
        e('s_waitcnt vmcnt(0)')
        e(f's_lshl_b32 s38, s4, 7\ns_lshl_b32 s39, s5, 4\ns_add_u32 s38, s38, s39\ns_lshl_b32 s39, s3, 2\ns_add_u32 s38, s38, s39\ns_add_u32 s38, s38, {WS_FR}')
        tagstore(T + 1, 38)
        for q in range(cfg.prex1, cfg.prex): cx(q)
    if not cfg.xlate:
        e('s_waitcnt vmcnt(0)')
        e(f's_lshl_b32 s38, s4, 7\ns_lshl_b32 s39, s5, 4\ns_add_u32 s38, s38, s39\ns_lshl_b32 s39, s3, 2\ns_add_u32 s38, s38, s39\ns_add_u32 s38, s38, {WS_FR}')
        tagstore(T + 1, 38)
        vm.q = []

    def rd_list(p, ks):
        st_ = FR + 16 * (ks & 1)
        slot = p % NS
        win = slot // 2
        xo = (slot % 2) * 32768
        wo = (slot % 2) * 32768 + ks * 4096
        xr = XA + 4 * win + ks; wr = WA + 2 * win
        return [
            (f'ds_read_b64_tr_b16 v[{st_}:{st_+1}], v{wr} offset:{wo}', ('W0', p, ks)),
            (f'ds_read_b64_tr_b16 v[{st_+2}:{st_+3}], v{wr} offset:{wo+1024}', ('W0', p, ks)),
            (f'ds_read_b128 v[{st_+8}:{st_+11}], v{xr} offset:{xo}', ('x0', p, ks)),
            (f'ds_read_b128 v[{st_+12}:{st_+15}], v{xr} offset:{xo+4096}', ('x1', p, ks)),
            (f'ds_read_b64_tr_b16 v[{st_+4}:{st_+5}], v{wr+1} offset:{wo}', ('W1', p, ks)),
            (f'ds_read_b64_tr_b16 v[{st_+6}:{st_+7}], v{wr+1} offset:{wo+1024}', ('W1', p, ks)),
        ]
    def group(p, ks, reads, last_in_phase=False, order=None):
        st_ = FR + 16 * (ks & 1)
        order = order or [(0, 0), (0, 1), (1, 1), (1, 0)]
        split = [(0, 3), (3, 6), (6, 6), (6, 6)] if last_in_phase else [(0, 2), (2, 4), (4, 6), (6, 6)]
        for i, (nb, mb) in enumerate(order):
            if p >= 0:
                lg.need([(f'W{nb}', p, ks), (f'x{mb}', p, ks)])
                if last_in_phase and i == 3 and cfg.earlywait: lg.drain()
                a = ACC + 16 * (2 * nb + mb)
                c = '0' if (p == 0 and ks == 0) else f'v[{a}:{a+15}]'
                if cfg.mfma: e(f'v_mfma_f32_32x32x16_bf16 v[{a}:{a+15}], v[{st_+4*nb}:{st_+4*nb+3}], v[{st_+8+4*mb}:{st_+8+4*mb+3}], {c}')
                else: e('s_nop 7')
            for (ins, tag) in reads[split[i][0]:split[i][1]]:
                if cfg.reads:
                    e(ins); lg.issue(tag)
    GWR = 128; BWR = 160; RS = 192
    Y = 200; D = 208; SA = 212; SR = 213; GO = 214; XW = 216; SRD_ = 218
    def epi_addresses():
        e(f'v_and_b32 v{T}, 31, v{LN}')
        e(f's_lshl_b32 s38, s6, 9\ns_add_u32 s38, s38, {TAB+1024}')
        e(f'v_lshl_add_u32 v{SRD_}, v{T}, 3, s38')
        e(f'v_and_b32 v{Y}, 7, v{LN}')
        e(f'v_lshlrev_b32 v{Y}, 4, v{Y}')
        e(f'v_lshrrev_b32 v{Y+1}, 5, v{LN}')
        e(f'v_lshl_add_u32 v{Y}, v{Y+1}, 3, v{Y}')
        e(f'v_lshl_add_u32 v{SA}, v{T}, 7, v{Y}')
        e(f's_lshl_b32 s38, s3, 13\ns_add_u32 s38, s38, {STG}')
        e(f'v_add_u32 v{SA}, s38, v{SA}')
        e(f'v_lshrrev_b32 v{Y}, 3, v{LN}')
        e(f'v_and_b32 v{Y+1}, 7, v{LN}')
        e(f'v_xor_b32 v{Y+2}, v{Y+1}, v{Y}')
        e(f'v_lshlrev_b32 v{Y+2}, 4, v{Y+2}')
        e(f'v_lshl_add_u32 v{SR}, v{Y}, 7, v{Y+2}')
        e(f'v_add_u32 v{SR}, s38, v{SR}')
        e(f'v_lshlrev_b32 v{GO}, 11, v{Y}')
        e(f'v_lshl_add_u32 v{GO}, v{Y+1}, 4, v{GO}')
        e('s_lshl_b32 s38, s4, 18\ns_lshl_b32 s39, s6, 17\ns_add_u32 s38, s38, s39')
        e('s_lshl_b32 s39, s5, 8\ns_add_u32 s38, s38, s39\ns_lshl_b32 s39, s7, 7\ns_add_u32 s65, s38, s39')
    def table_reads():
        r = [(f'ds_read_b64 v[{RS}:{RS+1}], v{SRD_}', 'rs'), (f'ds_read_b64 v[{RS+2}:{RS+3}], v{SRD_} offset:256', 'rs')]
        for nb in range(2):
            for j in range(4):
                r.append((f'ds_read_b128 v[{GWR+16*nb+4*j}:{GWR+16*nb+4*j+3}], v{TA_} offset:{(nb*32+8*j)*4}', ('tg', nb, j)))
                r.append((f'ds_read_b128 v[{BWR+16*nb+4*j}:{BWR+16*nb+4*j+3}], v{TA_} offset:{512+(nb*32+8*j)*4}', ('tg', nb, j)))
        return r
    epi_addresses()
    e('s_barrier')
    if cfg.stamps: e('s_memtime s[42:43]')
    for p in range(NST):
        tr = table_reads() if (p == NST - 1 and cfg.epi2) else []
        def extra(k):
            for ins, tag in tr[6*k:6*k+6]:
                e(ins); lg.issue(tag)
        group(p - 1, 3, rd_list(p, 0))
        group(p, 0, rd_list(p, 1)); extra(0)
        group(p, 1, rd_list(p, 2)); extra(1)
        group(p, 2, rd_list(p, 3), last_in_phase=(p < NST - 1)); extra(2)
        if p < NST - 1: e('s_barrier')
    group(NST - 1, 3, [], order=[(0, 0), (1, 0), (1, 1), (0, 1)] if cfg.epi2 else None)
    if not cfg.epi2:
        for ins, tag in table_reads():
            e(ins); lg.issue(tag)
    if cfg.stamps: e('s_memtime s[44:45]')
    def stage_reads(mb):
        r0 = ACC + 16 * mb
        for q in range(4):
            e(f'ds_read_b128 v[{r0+4*q}:{r0+4*q+3}], v{SR} offset:{mb*4096+q*1024}'); lg.issue(('sr', mb, q))
    def out_store(mb, q):
        r0 = ACC + 16 * mb
        lg.need([('sr', mb, q)])
        e(f's_add_u32 s51, s65, {(mb*32+8*q)*2048}')
        e(f'buffer_store_dwordx4 v[{r0+4*q}:{r0+4*q+3}], v{GO}, s[20:23], s51 offen{cfg.ntout}')
    if cfg.epi2: e('s_nop 7')
    for idx in range(16):
        mb, nb, j = idx >> 3, (idx >> 2) & 1, idx & 3
        rs = RS + 2 * mb
        a = ACC + 16 * (2 * nb + mb)
        gw = GWR + 16 * nb + 4 * j; bw = BWR + 16 * nb + 4 * j
        lg.need(['rs', ('tg', nb, j)])
        y = Y + 4 * (j & 1)
        for hh in range(2):
            e(f'v_pk_fma_f32 v[{y+2*hh}:{y+2*hh+1}], v[{gw+2*hh}:{gw+2*hh+1}], v[{rs}:{rs+1}], v[{bw+2*hh}:{bw+2*hh+1}] op_sel:[0,1,0] op_sel_hi:[1,1,1]')
        for hh in range(2):
            e(f'v_pk_fma_f32 v[{y+2*hh}:{y+2*hh+1}], v[{a+4*j+2*hh}:{a+4*j+2*hh+1}], v[{rs}:{rs+1}], v[{y+2*hh}:{y+2*hh+1}] op_sel_hi:[1,0,1]')
        d = D + 2 * (j & 1)
        e(f'v_xor_b32 v{XW+(j&1)}, {(nb*4+j)*16}, v{SA}')
        e(f'v_cvt_pk_bf16_f32 v{d}, v{y}, v{y+1}')
        e(f'v_cvt_pk_bf16_f32 v{d+1}, v{y+2}, v{y+3}')
        e(f'ds_write_b64 v{XW+(j&1)}, v[{d}:{d+1}] offset:{mb*4096}'); lg.issue(('sw', mb))
        if cfg.epi2:
            if idx == 7: stage_reads(0)
            if idx == 9: out_store(0, 0); out_store(0, 1)
            if idx == 10: out_store(0, 2); out_store(0, 3)
            if idx == 15:
                stage_reads(1)
                for q in range(4): out_store(1, q)
        elif idx % 8 == 7:
            lg.need([('sw', mb)])
            stage_reads(mb)
            for q in range(4): out_store(mb, q)
    e('s_branch L_end')

    e('L_dma:')
    vm = Counter(e, 'vmcnt', 63); lg = Counter(e, 'lgkmcnt', 15)
    VXO = 2; FL = 4; VL16 = 10; PR = 16
    T = 96; PW = 64; PG = 72; U = 76; WPK = 84; X = 112; WD = 104
    e('s_sub_u32 s3, s3, 4')
    e(f'v_lshrrev_b32 v{T+4}, 2, v0')
    e(f'v_and_b32 v{T+5}, 3, v0')
    e(f'v_lshlrev_b32 v{T+6}, 11, v{T+4}')
    e(f'v_lshl_add_u32 v{T+6}, v{T+5}, 4, v{T+6}')
    e(f'v_lshlrev_b32 v{T+7}, 1, v{T+4}')
    for r in range(4): e(f'v_mov_b32 v{PG+r}, 0')
    e('s_lshl_b32 s38, s4, 16\ns_lshl_b32 s39, s5, 8\ns_add_u32 s38, s38, s39\ns_lshl_b32 s39, s3, 6\ns_add_u32 s38, s38, s39')
    e('s_add_u32 s39, s38, 0x8000')
    e('s_lshl_b32 s36, s4, 6')
    e('s_waitcnt lgkmcnt(0)')
    st(0)
    e(f'buffer_load_dwordx4 v[{PW}:{PW+3}], v{T+6}, s[12:15], s38 offen{cfg.ntslab}'); vm.issue('pw0')
    e(f'buffer_load_short_d16_hi v{PG}, v{T+7}, s[16:19], s36 offen'); vm.issue('pg0')
    e(f'buffer_load_dwordx4 v[{PW+4}:{PW+7}], v{T+6}, s[12:15], s39 offen{cfg.ntslab}'); vm.issue('pw1')
    e(f'buffer_load_short_d16_hi v{PG+1}, v{T+7}, s[16:19], s36 offen offset:32'); vm.issue('pg1')
    e(f'buffer_load_short_d16_hi v{PG+2}, v{T+7}, s[68:71], s36 offen'); vm.issue('pb')
    e(f'buffer_load_short_d16_hi v{PG+3}, v{T+7}, s[68:71], s36 offen offset:32'); vm.issue('pb')
    e(f's_load_dword s64, s[60:61], {WS_EPOCH}')
    e('v_lshrrev_b32 v8, 3, v0')
    e('v_lshlrev_b32 v8, 11, v8')
    e('v_and_b32 v9, 7, v0')
    e('v_lshrrev_b32 v11, 4, v0')
    e('v_xor_b32 v9, v9, v11')
    e(f'v_lshl_add_u32 v{VXO}, v9, 4, v8')
    e(f'v_xor_b32 v{VXO+1}, 64, v{VXO}')
    e(f'v_add_u32 v{VXO+1}, {16384-1024}, v{VXO+1}')
    e(f'v_lshlrev_b32 v{VL16}, 4, v0')
    e('s_lshl_b32 s37, s4, 18\ns_lshl_b32 s39, s3, 16\ns_add_u32 s50, s37, s39\ns_lshl_b32 s51, s3, 12')
    e(f's_lshl_b32 s37, s5, 18\ns_add_u32 s52, s37, s51\ns_add_u32 s52, s52, {WS_W}')
    def emit_ops(ops):
        for ins, tag in ops:
            e(ins)
            if tag: vm.issue(tag)
    def x_ops(q):
        slot = q % NS
        if not cfg.xdma: return []
        if cfg.xlin:
            o = [(f's_add_u32 m0, s51, {slot*32768}', None), (f's_lshl_b32 s54, s4, 18', None), (f's_add_u32 s54, s54, s51', None), (f's_add_u32 s54, s54, {q*16384}', None)]
            for j in range(4): o.append((f'buffer_load_dwordx4 v{VL16}, s[8:11], s54 offen offset:{1024*j} lds', ('x', q)))
            return o
        return [(f's_add_u32 m0, s51, {slot*32768}', None)] + [(i, None) for i in rot_off(54, 50, q, 7)] + [
                (f'buffer_load_dwordx4 v{VXO}, s[8:11], s54 offen{cfg.ntx} lds', ('x', q)),
                (f'buffer_load_dwordx4 v{VXO+1}, s[8:11], s54 offen offset:1024{cfg.ntx} lds', ('x', q)),
                (f's_add_u32 m0, s51, {slot*32768+2048}', None),
                (f's_add_u32 s54, s54, 32768', None),
                (f'buffer_load_dwordx4 v{VXO}, s[8:11], s54 offen{cfg.ntx} lds', ('x', q)),
                (f'buffer_load_dwordx4 v{VXO+1}, s[8:11], s54 offen offset:1024{cfg.ntx} lds', ('x', q))]
    wsc = '' if cfg.nosc1w else ' sc1'
    def w_ops(q):
        slot = q % NS
        if not cfg.wdma: return []
        o = [(f's_add_u32 m0, s51, {slot*32768+16384}', None)] + [(i, None) for i in rot_off(55, 52, q, 14)]
        for j in range(4):
            o.append((f'buffer_load_dwordx4 v{VL16}, s[60:63], s55 offen offset:{1024*j}{wsc}{cfg.ntw} lds', ('w', q)))
        return o
    e(f'v_and_b32 v{T+1}, 3, v{T+4}')
    e(f'v_lshlrev_b32 v{T+1}, 2, v{T+1}')
    e('s_lshl_b32 s37, s3, 2')
    e(f'v_add_u32 v{T+2}, s37, v{T+5}')
    e(f'v_xor_b32 v{T+1}, v{T+1}, v{T+2}')
    e(f'v_lshlrev_b32 v{T+1}, 4, v{T+1}')
    e(f'v_lshl_add_u32 v{WD}, v{T+4}, 8, v{T+1}')
    e(f's_lshl_b32 s38, s5, 18\ns_lshl_b32 s39, s4, 13\ns_add_u32 s38, s38, s39\ns_add_u32 s38, s38, {WS_W}')
    e('s_add_u32 s39, s38, 0x1000')
    for t in range(2):
        vm.need([f'pw{t}', f'pg{t}'])
        if t == 0: st(1)
        w = PW + 4 * t; gk = PG + t; u = U
        for i in range(4):
            e(f'v_lshlrev_b32 v{u+2*i}, 16, v{w+i}')
            e(f'v_and_b32 v{u+2*i+1}, s53, v{w+i}')
        for i in range(8): e(f'v_mul_f32 v{u+i}, v{gk}, v{u+i}')
        for i in range(4): e(f'v_cvt_pk_bf16_f32 v{WPK+4*t+i}, v{u+2*i}, v{u+2*i+1}')
        e(f'buffer_store_dwordx4 v[{WPK+4*t}:{WPK+4*t+3}], v{WD}, s[60:63], s{38+t} offen sc1'); vm.issue('wst')
    if cfg.statwhen == 's': e('s_barrier')
    st(2)
    vm.need(['wst'])
    st(3)
    e('s_waitcnt lgkmcnt(0)')
    e(f's_add_u32 s64, s64, {TAG_STEP}')
    e('s_barrier')
    e('s_cmp_lg_u32 s3, 0')
    e('s_cbranch_scc1 L_noflagw')
    e(f's_lshl_b32 s38, s5, 10\ns_lshl_b32 s39, s4, 2\ns_add_u32 s38, s38, s39\ns_add_u32 s38, s38, {WS_FW}')
    e(f'v_lshlrev_b32 v{T+1}, 7, v0')
    e(f'v_add_u32 v{T+1}, s38, v{T+1}')
    e(f'v_mov_b32 v{T+2}, s64')
    e('s_mov_b64 exec, 0xff')
    e(f'buffer_store_dword v{T+2}, v{T+1}, s[60:63], 0 offen sc1')
    e('s_mov_b64 exec, -1')
    e('L_noflagw:')
    st(4)
    ix = cfg.prex
    def partial_sums():
        for t in range(2):
            w = PW + 4 * t; bk = PG + 2 + t
            for i in range(4):
                e(f'v_lshlrev_b32 v{U+2*i}, 16, v{w+i}')
                e(f'v_and_b32 v{U+2*i+1}, s53, v{w+i}')
            for i in range(8):
                if t == 0: e(f'v_mul_f32 v{X+8+i}, v{bk}, v{U+i}')
                else: e(f'v_fmac_f32 v{X+8+i}, v{bk}, v{U+i}')
            for i in range(4):
                if t == 0:
                    e(f'v_lshlrev_b32 v{X+2*i}, 16, v{WPK+i}')
                    e(f'v_and_b32 v{X+2*i+1}, s53, v{WPK+i}')
                else:
                    e(f'v_lshlrev_b32 v{U+2*i}, 16, v{WPK+4+i}')
                    e(f'v_and_b32 v{U+2*i+1}, s53, v{WPK+4+i}')
            if t == 1:
                for i in range(8): e(f'v_add_f32 v{X+i}, v{X+i}, v{U+i}')
        e('s_nop 1')
        for j in range(8): e(f'v_permlane32_swap_b32 v{X+j}, v{X+8+j}')
        e('s_nop 1')
        for j in range(8): e(f'v_add_f32 v{X+j}, v{X+j}, v{X+8+j}')
        e('s_nop 1')
        for j in range(4): e(f'v_permlane16_swap_b32 v{X+j}, v{X+4+j}')
        e('s_nop 1')
        for j in range(4): e(f'v_add_f32 v{X+j}, v{X+j}, v{X+4+j}')
        for rot in (8, 4):
            e('s_nop 1')
            for j in range(4): e(f'v_add_f32_dpp v{X+j}, v{X+j}, v{X+j} row_ror:{rot} row_mask:0xf bank_mask:0xf')
        e(f'v_lshrrev_b32 v{T+1}, 4, v0')
        e(f'v_lshrrev_b32 v{T+2}, 1, v{T+1}')
        e(f'v_lshlrev_b32 v{T+2}, 9, v{T+2}')
        e(f'v_and_b32 v{T+1}, 1, v{T+1}')
        e(f'v_lshl_add_u32 v{T+2}, v{T+1}, 4, v{T+2}')
        e(f'v_lshl_add_u32 v{T+2}, v{T+5}, 5, v{T+2}')
        e('s_lshl_b32 s38, s5, 5\ns_add_u32 s38, s38, s4\ns_lshl_b32 s38, s38, 10\ns_lshl_b32 s39, s3, 7\ns_add_u32 s38, s38, s39')
        e(f's_add_u32 s38, s38, {WS_PART}')
        e(f'v_and_b32 v{T+1}, 15, v0')
        e(f'v_cmp_gt_u32 vcc, 4, v{T+1}')
        e('s_and_saveexec_b64 s[76:77], vcc')
        e(f'buffer_store_dwordx4 v[{X}:{X+3}], v{T+2}, s[60:63], s38 offen sc1'); vm.issue('pst')
        e('s_mov_b64 exec, -1')
    if not cfg.partlate: partial_sums()
    if cfg.codepf:
        e('s_getpc_b64 s[78:79]')
        e('L_pc:')
        e('s_sub_u32 s78, s78, L_pc-' + KNAME)
        e('s_subb_u32 s79, s79, 0')
        e('v_lshlrev_b32 v12, 7, v0')
        e('s_lshl_b32 s38, s3, 13')
        e('v_add_u32 v12, s38, v12')
        e('CODEPF')
    e(f'v_lshlrev_b32 v{FL+2}, 2, v0')
    e('s_cmp_eq_u32 s3, 0')
    e('s_cselect_b32 s37, 0, 0x7fff0000')
    e(f's_lshl_b32 s38, s5, 9\ns_add_u32 s38, s38, {WS_FC}\ns_add_u32 s38, s38, s37')
    e('v_lshlrev_b32 v13, 3, v0')
    e(f'v_add_u32 v{FL+4}, s38, v13')
    e(f's_lshl_b32 s38, s4, 7\ns_add_u32 s38, s38, {WS_FR}\ns_add_u32 s38, s38, s37')
    e('v_and_b32 v13, 31, v0')
    e('v_lshlrev_b32 v13, 2, v13')
    e(f'v_add_u32 v{FL+5}, s38, v13')
    if cfg.wait_flags:
        e('s_cmp_lg_u32 s3, 0')
        e('s_cbranch_scc1 L_notpoller')
        e('v_and_b32 v12, 31, v0')
        if cfg.G1 < 32: e(f'v_min_u32 v12, {cfg.G1-1}, v12')
        e('v_lshlrev_b32 v12, 2, v12')
        e(f's_lshl_b32 s39, s5, 10\ns_lshr_b32 s37, s4, 2\ns_lshl_b32 s37, s37, 7\ns_add_u32 s39, s39, s37\ns_add_u32 s39, s39, {WS_FW}')
        e(f's_mov_b32 s38, {cfg.spin}')
        if cfg.polldelay: e(f's_sleep {cfg.polldelay}')
        n = cfg.pipepoll
        for i in range(n - 1):
            e(f'buffer_load_dword v{16+i}, v12, s[60:63], s39 offen sc1')
            e(f's_sleep {cfg.pollgap}')
        e('L_spin_w:')
        for i in range(n):
            e(f'buffer_load_dword v{16+(i+n-1)%n}, v12, s[60:63], s39 offen sc1')
            e(f's_waitcnt vmcnt({n-1})')
            e(f'v_cmp_eq_u32 vcc, s64, v{16+i}')
            e('s_cmp_eq_u64 vcc, -1')
            e('s_cbranch_scc1 L_found_w')
            if n > 1: e(f's_sleep {cfg.pollgap}')
            elif cfg.sleep: e(f's_sleep {cfg.sleep}')
        e('s_sub_u32 s38, s38, 1')
        e('s_cmp_lg_u32 s38, 0')
        e('s_cbranch_scc1 L_spin_w')
        e('L_found_w:')
        e('s_branch L_ready_w')
        e('L_notpoller:')
        if not cfg.partlate: e('s_waitcnt vmcnt(0)')
        e('L_ready_w:')
    if cfg.stamps: e('s_memtime s[58:59]')
    def fc_tag():
        e(f's_lshl_b32 s38, s5, 9\ns_lshl_b32 s39, s4, 4\ns_add_u32 s38, s38, s39\ns_lshl_b32 s39, s3, 2\ns_add_u32 s38, s38, s39\ns_add_u32 s38, s38, {WS_FC}')
        tagstore(T + 1, 38)
    if not cfg.partlate:
        if not cfg.wait_flags: e('s_waitcnt vmcnt(0)')
        vm.q = []
        fc_tag()
    else:
        vm.q = []
    e('s_barrier')
    iw = 0
    for q in range(cfg.prew):
        emit_ops(w_ops(q)); iw += 1
    if cfg.partlate: partial_sums()
    vm.need([('w', 0)])
    e('s_barrier')
    if cfg.stamps: e('s_memtime s[42:43]')
    if cfg.G1 < 32:
        e('v_and_b32 v13, 31, v0')
        e('v_lshlrev_b32 v13, 2, v13')
        e('s_cmp_eq_u32 s3, 0')
        e('s_cselect_b32 s37, 0, 0x7fff0000')
        e(f's_lshl_b32 s39, s5, 10\ns_lshr_b32 s38, s4, 2\ns_lshl_b32 s38, s38, 7\ns_add_u32 s39, s39, s38\ns_add_u32 s39, s39, {WS_FW}\ns_add_u32 s39, s39, s37')
        e('v_add_u32 v57, s39, v13')
    P2C = cfg.G1 // 2 - cfg.LA - 1 if cfg.G1 < 32 else -1
    PO = 58
    def check_final():
        e(f'v_cmp_eq_u32 vcc, s64, v{PO}')
        e(f'v_cmp_eq_u32 s[76:77], s64, v{PO+1}')
        e(f'v_cmp_eq_u32 s[80:81], s64, v{PO+2}')
        e('s_and_b64 vcc, vcc, s[76:77]')
        e('s_and_b64 vcc, vcc, s[80:81]')
        e('s_cmp_eq_u64 vcc, -1')
    for p in range(NST - 1):
        if cfg.wpf and p + cfg.wpf < NST:
            e(f's_add_u32 s56, s57, {(p + cfg.wpf) * 16384}')
            e(f'buffer_load_dwordx4 v[120:123], v{VL16}, s[60:63], s56 offen sc1'); vm.issue(('pf', p))
        if cfg.partlate and p == 2:
            vm.need(['pst']); fc_tag()
        lim = min(NST - 1, p + cfg.LA)
        for _ in range(2):
            if iw <= lim:
                assert iw < cfg.G1 // 2 or p > P2C, (p, iw)
                emit_ops(w_ops(iw)); iw += 1
            if ix <= lim:
                emit_ops(x_ops(ix)); ix += 1
        if p == cfg.P2I and cfg.G1 < 32:
            e('buffer_load_dword v61, v57, s[60:63], 0 offen sc1'); vm.issue('poll2')
        if p == P2C and cfg.G1 < 32:
            vm.need(['poll2'])
            e('s_cmp_lg_u32 s3, 0')
            e('s_cbranch_scc1 L_ready_w2')
            e('v_cmp_eq_u32 vcc, s64, v61')
            e('s_cmp_eq_u64 vcc, -1')
            e('s_cbranch_scc1 L_ready_w2')
            if cfg.wait_flags:
                e(f's_mov_b32 s38, {cfg.spin}')
                e('L_spin_w2:')
                e('buffer_load_dword v61, v57, s[60:63], 0 offen sc1')
                e('s_waitcnt vmcnt(0)')
                e('v_cmp_eq_u32 vcc, s64, v61')
                e('s_cmp_eq_u64 vcc, -1')
                e('s_cbranch_scc1 L_ready_w2')
                e('s_sub_u32 s38, s38, 1')
                e('s_cmp_lg_u32 s38, 0')
                e('s_cbranch_scc1 L_spin_w2')
            e('L_ready_w2:')
        if p == cfg.PP:
            e(f'buffer_load_dwordx2 v[{PO}:{PO+1}], v{FL+4}, s[60:63], 0 offen sc1'); vm.issue('poll')
            e(f'buffer_load_dword v{PO+2}, v{FL+5}, s[60:63], 0 offen sc1'); vm.issue('poll')
        if p == cfg.PC:
            vm.need(['poll'])
            e('s_cmp_lg_u32 s3, 0')
            e('s_cbranch_scc1 L_ready_a')
            check_final()
            e('s_cbranch_scc1 L_ready_a')
            if cfg.wait_flags:
                e(f's_mov_b32 s38, {cfg.spin}')
                e('L_spin_a:')
                e(f'buffer_load_dwordx2 v[{PO}:{PO+1}], v{FL+4}, s[60:63], 0 offen sc1')
                e(f'buffer_load_dword v{PO+2}, v{FL+5}, s[60:63], 0 offen sc1')
                e('s_waitcnt vmcnt(0)')
                check_final()
                e('s_cbranch_scc1 L_ready_a')
                e('s_sub_u32 s38, s38, 1')
                e('s_cmp_lg_u32 s38, 0')
                e('s_cbranch_scc1 L_spin_a')
            e('L_ready_a:')
        if p == cfg.PL:
            e('v_lshrrev_b32 v12, 4, v0')
            e('v_lshlrev_b32 v12, 10, v12')
            e('v_and_b32 v13, 15, v0')
            e('v_lshl_add_u32 v12, v13, 4, v12')
            e(f's_lshl_b32 s38, s5, 15\ns_lshl_b32 s39, s3, 8\ns_add_u32 s38, s38, s39\ns_add_u32 s38, s38, {WS_PART}')
            for t in range(8):
                if t: e('s_add_u32 s38, s38, 0x1000')
                e(f'buffer_load_dwordx4 v[{PR+8+4*t}:{PR+8+4*t+3}], v12, s[60:63], s38 offen sc1'); vm.issue('pp')
            e('s_lshl_b32 s38, s4, 10\ns_lshl_b32 s39, s3, 8\ns_add_u32 s38, s38, s39')
            e(f'buffer_load_dword v{PR+40}, v{FL+2}, s[60:63], s38 offen sc1'); vm.issue('ps')
        if p == cfg.PS:
            vm.need(['pp', 'ps'])
            P = PR + 8
            for h in (16, 8, 4):
                for i in range(h): e(f'v_add_f32 v{P+i}, v{P+i}, v{P+h+i}')
            e('s_nop 1')
            e(f'v_permlane32_swap_b32 v{P}, v{P+2}\nv_permlane32_swap_b32 v{P+1}, v{P+3}')
            e('s_nop 1')
            e(f'v_add_f32 v{P}, v{P}, v{P+2}\nv_add_f32 v{P+1}, v{P+1}, v{P+3}')
            e('s_nop 1')
            e(f'v_permlane16_swap_b32 v{P}, v{P+1}')
            e('s_nop 1')
            e(f'v_add_f32 v{P}, v{P}, v{P+1}')
            e('v_lshrrev_b32 v12, 4, v0')
            e('v_and_b32 v13, 15, v0')
            e('v_lshlrev_b32 v13, 4, v13')
            e('v_lshl_add_u32 v12, v12, 2, v13')
            e(f's_lshl_b32 s38, s3, 8\ns_add_u32 s39, s38, {TAB}')
            e('v_add_u32 v12, s39, v12')
            e(f'ds_write_b32 v12, v{P}'); lg.issue('tab')
            e(f's_add_u32 s39, s38, {TAB+1024}')
            e(f'v_add_u32 v13, s39, v{FL+2}')
            e(f'ds_write_b32 v13, v{PR+40}'); lg.issue('tab')
            lg.drain()
        vm.need([('w', p + 1)])
        if p + 1 >= cfg.prex: vm.need([('x', p + 1)])
        e('s_barrier')
    assert ix == NST and iw == NST
    if cfg.stamps: e('s_memtime s[44:45]')
    e('s_or_b32 s38, s2, s3')
    e('s_cmp_lg_u32 s38, 0')
    e('s_cbranch_scc1 L_noepoch')
    e('v_lshrrev_b32 v12, 3, v0')
    e('v_lshlrev_b32 v12, 10, v12')
    e('v_and_b32 v13, 7, v0')
    e('v_lshl_add_u32 v12, v13, 4, v12')
    e(f's_mov_b32 s38, {cfg.spin}')
    e('L_spin_e:')
    e(f's_mov_b32 s39, {WS_FW}')
    e('buffer_load_dwordx4 v[16:19], v12, s[60:63], s39 offen sc1')
    e('s_waitcnt vmcnt(0)')
    e('s_mov_b64 s[76:77], -1')
    for i in range(4):
        e(f'v_cmp_eq_u32 vcc, s64, v{16+i}')
        e('s_and_b64 s[76:77], s[76:77], vcc')
    e('s_cmp_eq_u64 s[76:77], -1')
    e('s_cbranch_scc1 L_doepoch')
    e('s_sub_u32 s38, s38, 1')
    e('s_cmp_lg_u32 s38, 0')
    e('s_cbranch_scc1 L_spin_e')
    e('L_doepoch:')
    e(f'v_mov_b32 v12, {WS_EPOCH}')
    e('v_mov_b32 v13, s64')
    e('s_mov_b64 exec, 1')
    e('buffer_store_dword v13, v12, s[60:63], 0 offen sc1')
    e('s_mov_b64 exec, -1')
    e('L_noepoch:')
    e('L_end:')
    if cfg.stamps:
        e('s_waitcnt vmcnt(0) lgkmcnt(0)')
        e('s_memtime s[46:47]')
        e('s_memrealtime s[56:57]')
        e('s_waitcnt lgkmcnt(0)')
        e('s_sub_u32 s42, s42, s40\ns_sub_u32 s44, s44, s40\ns_sub_u32 s46, s46, s40\ns_sub_u32 s58, s58, s40')
        e('v_mov_b32 v4, s42\nv_mov_b32 v5, s44\nv_mov_b32 v6, s46\nv_mov_b32 v7, s48\nv_mov_b32 v8, s56\nv_mov_b32 v9, s58\nv_mov_b32 v10, 0\nv_mov_b32 v11, 0')
        for i in range(5): e(f's_sub_u32 s{82+2*i}, s{82+2*i}, s40\nv_mov_b32 v{16+i}, s{82+2*i}')
        e(f's_lshl_b32 s65, s2, 3\ns_add_u32 s65, s65, s66\ns_lshl_b32 s65, s65, 6\ns_add_u32 s65, s65, {WS_STAMP}')
        e('v_mov_b32 v12, s65')
        e('s_mov_b64 exec, 1')
        e('buffer_store_dwordx4 v[4:7], v12, s[60:63], 0 offen')
        e('buffer_store_dwordx4 v[8:11], v12, s[60:63], 0 offen offset:16')
        e('buffer_store_dwordx4 v[16:19], v12, s[60:63], 0 offen offset:32')
        e('buffer_store_dwordx4 v[20:23], v12, s[60:63], 0 offen offset:48')
    e('L_exit:')
    e('s_endpgm')
    e('L_codeend:')
    e('.section .rodata,"a"')
    e(f'.p2align 6\n.amdhsa_kernel {KNAME}')
    e('  .amdhsa_next_free_vgpr 224\n  .amdhsa_next_free_sgpr 96\n  .amdhsa_accum_offset 224')
    e('  .amdhsa_group_segment_fixed_size 0\n  .amdhsa_kernarg_size 56\n  .amdhsa_user_sgpr_count 2')
    e('  .amdhsa_user_sgpr_kernarg_segment_ptr 1\n  .amdhsa_system_sgpr_workgroup_id_x 1\n.end_amdhsa_kernel')
    txt = e.text()
    pf = (f'v_cmp_gt_u32 vcc, L_codeend-{KNAME}, v12\n'
          's_and_saveexec_b64 s[80:81], vcc\n'
          's_cbranch_execz L_nopf\n'
          'global_load_dword v11, v12, s[78:79]\n'
          'L_nopf:\n'
          's_mov_b64 exec, -1')
    txt = txt.replace('CODEPF', pf)
    return txt

if __name__ == '__main__':
    import ast
    kw = {}
    for a in sys.argv[1:]:
        k, v = a.split('=')
        kw[k] = ast.literal_eval(v)
    print(gen(Cfg(**kw)))
```

```python
import sys
sys.path.insert(0, 'gen')
from asmlib import Emitter, Counter

KNAME = 'standalone__layernorm_linear__prompt_kernel'
WS_STATS = 0
WS_EPOCH = 0x8000
WS_FW = 0xC000
WS_FC = 0xA000
WS_FR = 0xB000
WS_PART = 0x10000
WS_STAMP = 0x80000
WS_W = 0x100000
TAG_STEP = 0x9E3779B9

HEADER = '''; LayerNorm(x)*g + b followed by @ w, fused in one launch.
'''

class Cfg:
    NS = 5
    PP = 5
    PC = 9
    PL = 10
    PS = 14
    prew = 3
    prex = 5
    statsplit = 8
    statwhen = 's'
    polldelay = 0
    ntstat = ''; ntslab = ''; ntx = ''; ntout = ' sc1 nt'; ntw = ''
    prex1 = 2
    statdelay0 = 0
    xd = 0
    dprio = 0
    epi2 = True
    LA = 3
    bwearly = False
    partlate = False
    G1 = 16
    P2I = 1
    krot = 0
    xlin = False
    nosc1w = False
    wpf = 0
    xearly = 0
    onepass = True
    xlate = False
    pipepoll = 1
    pollgap = 6
    stamps = False
    xmap = 0
    codepf = True
    mfma = True; reads = True; xdma = True; wdma = True
    wait_flags = True
    earlywait = True
    sleep = 0
    spin = 40000
    def __init__(self, **kw):
        for k, v in kw.items():
            assert hasattr(self, k), k
            setattr(self, k, v)


def gen(cfg):
    e = Emitter()
    def st(i):
        if cfg.stamps: e(f's_memtime s[{82+2*i}:{83+2*i}]')
    NS = cfg.NS; NST = 16
    LDS = NS * 32768
    assert NS == 5
    TAB = ((NST - 5) % NS) * 32768
    STG = ((NST - 4) % NS) * 32768
    e(HEADER.rstrip())
    e(f'; @launch grid=(256,1,1) block=(512,1,1) lds={LDS}')
    e('.amdgcn_target "amdgcn-amd-amdhsa--gfx950"\n.text')
    e(f'.globl {KNAME}\n.p2align 8\n.type {KNAME},@function\n{KNAME}:')
    e('s_cmp_ge_u32 s2, 0x100')
    e('s_cbranch_scc1 L_exit')
    if cfg.stamps: e('s_memtime s[40:41]\ns_memrealtime s[48:49]')
    e('s_load_dwordx2 s[12:13], s[0:1], 24')
    e('s_load_dwordx2 s[16:17], s[0:1], 8')
    e('s_load_dwordx2 s[8:9], s[0:1], 0')
    e('s_load_dwordx2 s[68:69], s[0:1], 16')
    e('s_load_dwordx2 s[60:61], s[0:1], 48')
    e('s_load_dwordx2 s[20:21], s[0:1], 32')
    e('v_lshrrev_b32 v1, 6, v0')
    e('v_and_b32 v0, 63, v0')
    e('v_readfirstlane_b32 s3, v1')
    e('s_mov_b32 s10, 0x800000\ns_mov_b32 s11, 0x20000')
    e('s_mov_b32 s14, 0x200000\ns_mov_b32 s15, 0x20000')
    e('s_mov_b32 s18, 0x800\ns_mov_b32 s19, 0x20000')
    e('s_mov_b32 s70, 0x800\ns_mov_b32 s71, 0x20000')
    e('s_mov_b32 s22, 0x800000\ns_mov_b32 s23, 0x20000')
    e('s_mov_b32 s62, 0x300000\ns_mov_b32 s63, 0x20000')
    e('s_and_b32 s4, s2, 7')
    e('s_lshr_b32 s5, s2, 3')
    if cfg.xmap == 0:
        e('s_and_b32 s6, s5, 3\ns_lshl_b32 s4, s4, 2\ns_add_u32 s4, s4, s6\ns_lshr_b32 s5, s5, 2')
    else:
        e('s_and_b32 s6, s5, 7\ns_lshr_b32 s7, s4, 1\ns_lshl_b32 s7, s7, 3\ns_add_u32 s6, s6, s7')
        e('s_and_b32 s4, s4, 1\ns_lshl_b32 s4, s4, 2\ns_lshr_b32 s5, s5, 3\ns_add_u32 s5, s5, s4\ns_mov_b32 s4, s6')
    e('s_mov_b32 s66, s3')
    if cfg.krot: e(f's_and_b32 s67, s4, 3\ns_mul_i32 s67, s67, {cfg.krot}')
    e('s_mov_b32 s53, 0xffff0000')
    e('s_cmp_ge_u32 s3, 4')
    e('s_cbranch_scc1 L_dma')

    def rot_off(dst, base, q, shift, extra=0):
        if not cfg.krot: return [f's_add_u32 s{dst}, s{base}, {(q << shift) + extra}']
        o = [f's_add_u32 s{dst}, s67, {q}', f's_and_b32 s{dst}, s{dst}, 15', f's_lshl_b32 s{dst}, s{dst}, {shift}', f's_add_u32 s{dst}, s{dst}, s{base}']
        if extra: o.append(f's_add_u32 s{dst}, s{dst}, {extra}')
        return o

    def tagstore(vtmp, addr_sgpr):
        e(f'v_mov_b32 v{vtmp}, s{addr_sgpr}')
        e(f'v_mov_b32 v{vtmp+1}, s64')
        e('s_mov_b64 exec, 1')
        e(f'buffer_store_dword v{vtmp+1}, v{vtmp}, s[60:63], 0 offen sc1')
        e('s_mov_b64 exec, -1')

    ACC = 0; FR = 64; XA = 96; WA = 108; LN = 114; TA_ = 115
    lg = Counter(e, 'lgkmcnt', 15); vm = Counter(e, 'vmcnt', 63)
    T = 116
    e(f'v_mov_b32 v{LN}, v0')
    X = 128; L = 160; A = 192; RW_ = 204; I16 = 205
    e(f'v_lshrrev_b32 v{T}, 4, v{LN}')
    e(f'v_and_b32 v{I16}, 15, v{LN}')
    e('s_lshl_b32 s38, s4, 7\ns_lshl_b32 s39, s5, 4\ns_add_u32 s38, s38, s39\ns_lshl_b32 s39, s3, 2\ns_add_u32 s38, s38, s39')
    e(f'v_add_u32 v{RW_}, s38, v{T}')
    e(f'v_lshlrev_b32 v{T+11}, 11, v{RW_}')
    e(f'v_lshl_add_u32 v{T+11}, v{I16}, 4, v{T+11}')
    e('s_and_b32 s6, s3, 1')
    e('s_lshr_b32 s7, s3, 1')
    e(f'v_and_b32 v{T+1}, 31, v{LN}')
    e(f'v_lshrrev_b32 v{T+2}, 5, v{LN}')
    e(f'v_bfe_u32 v{T+3}, v{LN}, 1, 3')
    e(f'v_xor_b32 v{T+3}, v{T+3}, v{T+2}')
    e(f'v_lshlrev_b32 v{T+3}, 4, v{T+3}')
    e('s_lshl_b32 s37, s6, 13')
    e(f'v_lshl_add_u32 v{T+9}, v{T+1}, 7, v{T+3}')
    e(f'v_add_u32 v{XA}, s37, v{T+9}')
    for ks in range(1, 4): e(f'v_xor_b32 v{XA+ks}, {32*ks}, v{XA}')
    for w in range(1, 3):
        for ks in range(4): e(f'v_add_u32 v{XA+4*w+ks}, {0x10000*w}, v{XA+ks}')
    e(f'v_lshrrev_b32 v{T+1}, 4, v{LN}')
    e(f'v_bfe_u32 v{T+2}, v{LN}, 2, 2')
    e(f'v_and_b32 v{T+3}, 3, v{LN}')
    e(f'v_lshrrev_b32 v{T+9}, 1, v{T+1}')
    e(f'v_lshl_add_u32 v{T+9}, v{T+9}, 3, v{T+2}')
    e(f'v_lshlrev_b32 v{T+9}, 8, v{T+9}')
    e(f'v_and_b32 v{T+1}, 1, v{T+1}')
    e(f'v_lshlrev_b32 v{T+1}, 1, v{T+1}')
    e(f'v_lshrrev_b32 v{T+10}, 1, v{T+3}')
    e(f'v_add_u32 v{T+1}, v{T+1}, v{T+10}')
    e('s_lshl_b32 s37, s7, 3')
    e(f'v_add_u32 v{T+1}, s37, v{T+1}')
    e(f'v_lshlrev_b32 v{T+2}, 2, v{T+2}')
    e(f'v_xor_b32 v{T+1}, v{T+1}, v{T+2}')
    e(f'v_lshlrev_b32 v{T+1}, 4, v{T+1}')
    e(f'v_and_b32 v{T+3}, 1, v{T+3}')
    e(f'v_lshl_add_u32 v{T+1}, v{T+3}, 3, v{T+1}')
    e(f'v_add_u32 v{T+1}, v{T+1}, v{T+9}')
    e(f'v_add_u32 v{WA}, 0x4000, v{T+1}')
    e(f'v_xor_b32 v{WA+1}, 64, v{WA}')
    for w in range(1, 3):
        for nb in range(2): e(f'v_add_u32 v{WA+2*w+nb}, {0x10000*w}, v{WA+nb}')
    e(f'v_lshrrev_b32 v{T+1}, 5, v{LN}')
    e(f'v_lshlrev_b32 v{T+1}, 4, v{T+1}')
    e(f's_lshl_b32 s37, s7, 8\ns_add_u32 s37, s37, {TAB}')
    e(f'v_add_u32 v{TA_}, s37, v{T+1}')
    e('s_waitcnt lgkmcnt(0)')
    st(0)
    e(f's_load_dword s64, s[60:61], {WS_EPOCH}')
    def sload(j):
        e(f'buffer_load_dwordx4 v[{X+4*j}:{X+4*j+3}], v{T+11}, s[8:11], 0 offen offset:{256*j}{cfg.ntstat}'); vm.issue(('sx', j))
    VX = 208
    e(f'v_lshrrev_b32 v{T+1}, 3, v{LN}')
    e(f'v_lshlrev_b32 v{T+1}, 11, v{T+1}')
    e(f'v_and_b32 v{T+2}, 7, v{LN}')
    e(f'v_lshrrev_b32 v{T+3}, 4, v{LN}')
    e(f'v_xor_b32 v{T+2}, v{T+2}, v{T+3}')
    e(f'v_lshl_add_u32 v{VX}, v{T+2}, 4, v{T+1}')
    e(f'v_xor_b32 v{VX+1}, 64, v{VX}')
    e(f'v_add_u32 v{VX+1}, {16384-1024}, v{VX+1}')
    e('s_lshl_b32 s37, s4, 18\ns_lshl_b32 s39, s3, 16\ns_add_u32 s50, s37, s39\ns_lshl_b32 s51, s3, 12')
    def cx(q):
        slot = q % NS
        e(f's_add_u32 m0, s51, {slot*32768}')
        for ins in rot_off(54, 50, q, 7): e(ins)
        e(f'buffer_load_dwordx4 v{VX}, s[8:11], s54 offen{cfg.ntx} lds'); vm.issue(('x', q))
        e(f'buffer_load_dwordx4 v{VX+1}, s[8:11], s54 offen offset:1024{cfg.ntx} lds'); vm.issue(('x', q))
        e(f's_add_u32 m0, s51, {slot*32768+2048}')
        e(f's_add_u32 s54, s54, 32768')
        e(f'buffer_load_dwordx4 v{VX}, s[8:11], s54 offen{cfg.ntx} lds'); vm.issue(('x', q))
        e(f'buffer_load_dwordx4 v{VX+1}, s[8:11], s54 offen offset:1024{cfg.ntx} lds'); vm.issue(('x', q))
    if cfg.statwhen == '0':
        if cfg.statdelay0: e(f's_sleep {cfg.statdelay0}')
        for j in range(8): sload(j)
        e('s_barrier')
    else:
        if cfg.statwhen == 's': e('s_barrier')
        else: e('s_barrier')
        for j in range(cfg.statsplit): sload(j)
        if cfg.statwhen == 's': e('s_barrier')
        if cfg.statsplit < 8:
            vm.need([('sx', 0)])
            for j in range(cfg.statsplit, 8): sload(j)
    for q in range(cfg.xearly): cx(q)
    st(1)
    if cfg.bwearly: e('s_barrier')
    vm.need([('sx', 7)])
    st(2)
    for q in range(cfg.xearly, cfg.prex1): cx(q)
    M = A + 8; V = A + 10
    if cfg.onepass:
        e('s_mov_b32 s39, 0x3f803f80')
        for a in range(8): e(f'v_mov_b32 v{A+a}, 0')
        for j in range(8):
            for i in range(4): e(f'v_dot2c_f32_bf16 v{A+i}, s39, v{X+4*j+i}')
            for i in range(4): e(f'v_dot2c_f32_bf16 v{A+4+i}, v{X+4*j+i}, v{X+4*j+i}')
        e('s_nop 2')
        e(f'v_add_f32 v{A}, v{A}, v{A+1}\nv_add_f32 v{A+2}, v{A+2}, v{A+3}')
        e(f'v_add_f32 v{A+4}, v{A+4}, v{A+5}\nv_add_f32 v{A+6}, v{A+6}, v{A+7}')
        e(f'v_add_f32 v{M}, v{A}, v{A+2}\nv_add_f32 v{V+1}, v{A+4}, v{A+6}')
        for rot in (8, 4, 2, 1):
            e('s_nop 0')
            e(f'v_add_f32_dpp v{M}, v{M}, v{M} row_ror:{rot} row_mask:0xf bank_mask:0xf')
            e(f'v_add_f32_dpp v{V+1}, v{V+1}, v{V+1} row_ror:{rot} row_mask:0xf bank_mask:0xf')
            e('s_nop 0')
        e(f'v_mul_f32 v{M}, 0xba800000, v{M}')
        e(f'v_mul_f32 v{V+1}, 0x3a800000, v{V+1}')
        e(f'v_fma_f32 v{V+1}, -v{M}, v{M}, v{V+1}')
        e(f'v_max_f32 v{V+1}, 0, v{V+1}')
        e(f'v_add_f32 v{V+1}, 0x3727c5ac, v{V+1}')
    else:
        for d in range(32):
            e(f'v_lshlrev_b32 v{L+d}, 16, v{X+d}')
            e(f'v_and_b32 v{X+d}, s53, v{X+d}')
        for a in range(4):
            e(f'v_pk_add_f32 v[{A+2*a}:{A+2*a+1}], v[{X+2*a}:{X+2*a+1}], v[{L+2*a}:{L+2*a+1}]')
        for d in range(8, 32, 2):
            a = (d // 2) % 4
            e(f'v_pk_add_f32 v[{A+2*a}:{A+2*a+1}], v[{A+2*a}:{A+2*a+1}], v[{X+d}:{X+d+1}]')
            e(f'v_pk_add_f32 v[{A+2*a}:{A+2*a+1}], v[{A+2*a}:{A+2*a+1}], v[{L+d}:{L+d+1}]')
        def fold(dst):
            e(f'v_pk_add_f32 v[{A}:{A+1}], v[{A}:{A+1}], v[{A+2}:{A+3}]')
            e(f'v_pk_add_f32 v[{A+4}:{A+5}], v[{A+4}:{A+5}], v[{A+6}:{A+7}]')
            e(f'v_pk_add_f32 v[{A}:{A+1}], v[{A}:{A+1}], v[{A+4}:{A+5}]')
            e(f'v_add_f32 v{dst}, v{A}, v{A+1}')
            for rot in (8, 4, 2, 1):
                e('s_nop 1')
                e(f'v_add_f32_dpp v{dst}, v{dst}, v{dst} row_ror:{rot} row_mask:0xf bank_mask:0xf')
        M = A + 8
        fold(M)
        e(f'v_mul_f32 v{M}, 0xba800000, v{M}')
        for d in range(0, 32, 2):
            e(f'v_pk_add_f32 v[{X+d}:{X+d+1}], v[{X+d}:{X+d+1}], v[{M}:{M+1}] op_sel_hi:[1,0]')
            e(f'v_pk_add_f32 v[{L+d}:{L+d+1}], v[{L+d}:{L+d+1}], v[{M}:{M+1}] op_sel_hi:[1,0]')
        for a in range(4):
            e(f'v_pk_mul_f32 v[{A+2*a}:{A+2*a+1}], v[{X+2*a}:{X+2*a+1}], v[{X+2*a}:{X+2*a+1}]')
        for d in range(8, 32, 2):
            a = (d // 2) % 4
            e(f'v_pk_fma_f32 v[{A+2*a}:{A+2*a+1}], v[{X+d}:{X+d+1}], v[{X+d}:{X+d+1}], v[{A+2*a}:{A+2*a+1}]')
        for d in range(0, 32, 2):
            a = (d // 2) % 4
            e(f'v_pk_fma_f32 v[{A+2*a}:{A+2*a+1}], v[{L+d}:{L+d+1}], v[{L+d}:{L+d+1}], v[{A+2*a}:{A+2*a+1}]')
        V = A + 10
        fold(V)
        e('s_mov_b32 s39, 0x3727c5ac')
        e(f'v_mov_b32 v{V+1}, s39')
        e(f'v_fmac_f32 v{V+1}, 0x3a800000, v{V}')
    e(f'v_rsq_f32 v{V}, v{V+1}')
    e('s_nop 0')
    e(f'v_mul_f32 v{V+1}, v{M}, v{V}')
    e(f'v_lshlrev_b32 v{RW_}, 3, v{RW_}')
    e(f'v_cmp_eq_u32 vcc, 0, v{I16}')
    e('s_and_saveexec_b64 s[76:77], vcc')
    e(f'buffer_store_dwordx2 v[{V}:{V+1}], v{RW_}, s[60:63], 0 offen sc1')
    e('s_mov_b64 exec, -1')
    if not cfg.xlate:
        for q in range(max(cfg.prex1, cfg.xearly), cfg.prex): cx(q)
    e('s_waitcnt lgkmcnt(0)')
    e(f's_add_u32 s64, s64, {TAG_STEP}')
    st(3)
    if not cfg.bwearly: e('s_barrier')
    if cfg.xlate:
        vm.q = []
        e('s_waitcnt vmcnt(0)')
        e(f's_lshl_b32 s38, s4, 7\ns_lshl_b32 s39, s5, 4\ns_add_u32 s38, s38, s39\ns_lshl_b32 s39, s3, 2\ns_add_u32 s38, s38, s39\ns_add_u32 s38, s38, {WS_FR}')
        tagstore(T + 1, 38)
        for q in range(cfg.prex1, cfg.prex): cx(q)
    if not cfg.xlate:
        e('s_waitcnt vmcnt(0)')
        e(f's_lshl_b32 s38, s4, 7\ns_lshl_b32 s39, s5, 4\ns_add_u32 s38, s38, s39\ns_lshl_b32 s39, s3, 2\ns_add_u32 s38, s38, s39\ns_add_u32 s38, s38, {WS_FR}')
        tagstore(T + 1, 38)
        vm.q = []

    def rd_list(p, ks):
        st_ = FR + 16 * (ks & 1)
        slot = p % NS
        win = slot // 2
        xo = (slot % 2) * 32768
        wo = (slot % 2) * 32768 + ks * 4096
        xr = XA + 4 * win + ks; wr = WA + 2 * win
        return [
            (f'ds_read_b64_tr_b16 v[{st_}:{st_+1}], v{wr} offset:{wo}', ('W0', p, ks)),
            (f'ds_read_b64_tr_b16 v[{st_+2}:{st_+3}], v{wr} offset:{wo+1024}', ('W0', p, ks)),
            (f'ds_read_b128 v[{st_+8}:{st_+11}], v{xr} offset:{xo}', ('x0', p, ks)),
            (f'ds_read_b128 v[{st_+12}:{st_+15}], v{xr} offset:{xo+4096}', ('x1', p, ks)),
            (f'ds_read_b64_tr_b16 v[{st_+4}:{st_+5}], v{wr+1} offset:{wo}', ('W1', p, ks)),
            (f'ds_read_b64_tr_b16 v[{st_+6}:{st_+7}], v{wr+1} offset:{wo+1024}', ('W1', p, ks)),
        ]
    def group(p, ks, reads, last_in_phase=False, order=None):
        st_ = FR + 16 * (ks & 1)
        order = order or [(0, 0), (0, 1), (1, 1), (1, 0)]
        split = [(0, 3), (3, 6), (6, 6), (6, 6)] if last_in_phase else [(0, 2), (2, 4), (4, 6), (6, 6)]
        for i, (nb, mb) in enumerate(order):
            if p >= 0:
                lg.need([(f'W{nb}', p, ks), (f'x{mb}', p, ks)])
                if last_in_phase and i == 3 and cfg.earlywait: lg.drain()
                a = ACC + 16 * (2 * nb + mb)
                c = '0' if (p == 0 and ks == 0) else f'v[{a}:{a+15}]'
                if cfg.mfma: e(f'v_mfma_f32_32x32x16_bf16 v[{a}:{a+15}], v[{st_+4*nb}:{st_+4*nb+3}], v[{st_+8+4*mb}:{st_+8+4*mb+3}], {c}')
                else: e('s_nop 7')
            for (ins, tag) in reads[split[i][0]:split[i][1]]:
                if cfg.reads:
                    e(ins); lg.issue(tag)
    GWR = 128; BWR = 160; RS = 192
    Y = 200; D = 208; SA = 212; SR = 213; GO = 214; XW = 216; SRD_ = 218
    def epi_addresses():
        e(f'v_and_b32 v{T}, 31, v{LN}')
        e(f's_lshl_b32 s38, s6, 9\ns_add_u32 s38, s38, {TAB+1024}')
        e(f'v_lshl_add_u32 v{SRD_}, v{T}, 3, s38')
        e(f'v_and_b32 v{Y}, 7, v{LN}')
        e(f'v_lshlrev_b32 v{Y}, 4, v{Y}')
        e(f'v_lshrrev_b32 v{Y+1}, 5, v{LN}')
        e(f'v_lshl_add_u32 v{Y}, v{Y+1}, 3, v{Y}')
        e(f'v_lshl_add_u32 v{SA}, v{T}, 7, v{Y}')
        e(f's_lshl_b32 s38, s3, 13\ns_add_u32 s38, s38, {STG}')
        e(f'v_add_u32 v{SA}, s38, v{SA}')
        e(f'v_lshrrev_b32 v{Y}, 3, v{LN}')
        e(f'v_and_b32 v{Y+1}, 7, v{LN}')
        e(f'v_xor_b32 v{Y+2}, v{Y+1}, v{Y}')
        e(f'v_lshlrev_b32 v{Y+2}, 4, v{Y+2}')
        e(f'v_lshl_add_u32 v{SR}, v{Y}, 7, v{Y+2}')
        e(f'v_add_u32 v{SR}, s38, v{SR}')
        e(f'v_lshlrev_b32 v{GO}, 11, v{Y}')
        e(f'v_lshl_add_u32 v{GO}, v{Y+1}, 4, v{GO}')
        e('s_lshl_b32 s38, s4, 18\ns_lshl_b32 s39, s6, 17\ns_add_u32 s38, s38, s39')
        e('s_lshl_b32 s39, s5, 8\ns_add_u32 s38, s38, s39\ns_lshl_b32 s39, s7, 7\ns_add_u32 s65, s38, s39')
    def table_reads():
        r = [(f'ds_read_b64 v[{RS}:{RS+1}], v{SRD_}', 'rs'), (f'ds_read_b64 v[{RS+2}:{RS+3}], v{SRD_} offset:256', 'rs')]
        for nb in range(2):
            for j in range(4):
                r.append((f'ds_read_b128 v[{GWR+16*nb+4*j}:{GWR+16*nb+4*j+3}], v{TA_} offset:{(nb*32+8*j)*4}', ('tg', nb, j)))
                r.append((f'ds_read_b128 v[{BWR+16*nb+4*j}:{BWR+16*nb+4*j+3}], v{TA_} offset:{512+(nb*32+8*j)*4}', ('tg', nb, j)))
        return r
    epi_addresses()
    e('s_barrier')
    if cfg.stamps: e('s_memtime s[42:43]')
    for p in range(NST):
        tr = table_reads() if (p == NST - 1 and cfg.epi2) else []
        def extra(k):
            for ins, tag in tr[6*k:6*k+6]:
                e(ins); lg.issue(tag)
        group(p - 1, 3, rd_list(p, 0))
        group(p, 0, rd_list(p, 1)); extra(0)
        group(p, 1, rd_list(p, 2)); extra(1)
        group(p, 2, rd_list(p, 3), last_in_phase=(p < NST - 1)); extra(2)
        if p < NST - 1: e('s_barrier')
    group(NST - 1, 3, [], order=[(0, 0), (1, 0), (1, 1), (0, 1)] if cfg.epi2 else None)
    if not cfg.epi2:
        for ins, tag in table_reads():
            e(ins); lg.issue(tag)
    if cfg.stamps: e('s_memtime s[44:45]')
    def stage_reads(mb):
        r0 = ACC + 16 * mb
        for q in range(4):
            e(f'ds_read_b128 v[{r0+4*q}:{r0+4*q+3}], v{SR} offset:{mb*4096+q*1024}'); lg.issue(('sr', mb, q))
    def out_store(mb, q):
        r0 = ACC + 16 * mb
        lg.need([('sr', mb, q)])
        e(f's_add_u32 s51, s65, {(mb*32+8*q)*2048}')
        e(f'buffer_store_dwordx4 v[{r0+4*q}:{r0+4*q+3}], v{GO}, s[20:23], s51 offen{cfg.ntout}')
    if cfg.epi2: e('s_nop 7')
    for idx in range(16):
        mb, nb, j = idx >> 3, (idx >> 2) & 1, idx & 3
        rs = RS + 2 * mb
        a = ACC + 16 * (2 * nb + mb)
        gw = GWR + 16 * nb + 4 * j; bw = BWR + 16 * nb + 4 * j
        lg.need(['rs', ('tg', nb, j)])
        y = Y + 4 * (j & 1)
        for hh in range(2):
            e(f'v_pk_fma_f32 v[{y+2*hh}:{y+2*hh+1}], v[{gw+2*hh}:{gw+2*hh+1}], v[{rs}:{rs+1}], v[{bw+2*hh}:{bw+2*hh+1}] op_sel:[0,1,0] op_sel_hi:[1,1,1]')
        for hh in range(2):
            e(f'v_pk_fma_f32 v[{y+2*hh}:{y+2*hh+1}], v[{a+4*j+2*hh}:{a+4*j+2*hh+1}], v[{rs}:{rs+1}], v[{y+2*hh}:{y+2*hh+1}] op_sel_hi:[1,0,1]')
        d = D + 2 * (j & 1)
        e(f'v_xor_b32 v{XW+(j&1)}, {(nb*4+j)*16}, v{SA}')
        e(f'v_cvt_pk_bf16_f32 v{d}, v{y}, v{y+1}')
        e(f'v_cvt_pk_bf16_f32 v{d+1}, v{y+2}, v{y+3}')
        e(f'ds_write_b64 v{XW+(j&1)}, v[{d}:{d+1}] offset:{mb*4096}'); lg.issue(('sw', mb))
        if cfg.epi2:
            if idx == 7: stage_reads(0)
            if idx == 9: out_store(0, 0); out_store(0, 1)
            if idx == 10: out_store(0, 2); out_store(0, 3)
            if idx == 15:
                stage_reads(1)
                for q in range(4): out_store(1, q)
        elif idx % 8 == 7:
            lg.need([('sw', mb)])
            stage_reads(mb)
            for q in range(4): out_store(mb, q)
    e('s_branch L_end')

    e('L_dma:')
    vm = Counter(e, 'vmcnt', 63); lg = Counter(e, 'lgkmcnt', 15)
    VXO = 2; FL = 4; VL16 = 10; PR = 16
    T = 96; PW = 64; PG = 72; U = 76; WPK = 84; X = 112; WD = 104
    e('s_sub_u32 s3, s3, 4')
    e(f'v_lshrrev_b32 v{T+4}, 2, v0')
    e(f'v_and_b32 v{T+5}, 3, v0')
    e(f'v_lshlrev_b32 v{T+6}, 11, v{T+4}')
    e(f'v_lshl_add_u32 v{T+6}, v{T+5}, 4, v{T+6}')
    e(f'v_lshlrev_b32 v{T+7}, 1, v{T+4}')
    for r in range(4): e(f'v_mov_b32 v{PG+r}, 0')
    e('s_lshl_b32 s38, s4, 16\ns_lshl_b32 s39, s5, 8\ns_add_u32 s38, s38, s39\ns_lshl_b32 s39, s3, 6\ns_add_u32 s38, s38, s39')
    e('s_add_u32 s39, s38, 0x8000')
    e('s_lshl_b32 s36, s4, 6')
    e('s_waitcnt lgkmcnt(0)')
    st(0)
    e(f'buffer_load_dwordx4 v[{PW}:{PW+3}], v{T+6}, s[12:15], s38 offen{cfg.ntslab}'); vm.issue('pw0')
    e(f'buffer_load_short_d16_hi v{PG}, v{T+7}, s[16:19], s36 offen'); vm.issue('pg0')
    e(f'buffer_load_dwordx4 v[{PW+4}:{PW+7}], v{T+6}, s[12:15], s39 offen{cfg.ntslab}'); vm.issue('pw1')
    e(f'buffer_load_short_d16_hi v{PG+1}, v{T+7}, s[16:19], s36 offen offset:32'); vm.issue('pg1')
    e(f'buffer_load_short_d16_hi v{PG+2}, v{T+7}, s[68:71], s36 offen'); vm.issue('pb')
    e(f'buffer_load_short_d16_hi v{PG+3}, v{T+7}, s[68:71], s36 offen offset:32'); vm.issue('pb')
    e(f's_load_dword s64, s[60:61], {WS_EPOCH}')
    e('v_lshrrev_b32 v8, 3, v0')
    e('v_lshlrev_b32 v8, 11, v8')
    e('v_and_b32 v9, 7, v0')
    e('v_lshrrev_b32 v11, 4, v0')
    e('v_xor_b32 v9, v9, v11')
    e(f'v_lshl_add_u32 v{VXO}, v9, 4, v8')
    e(f'v_xor_b32 v{VXO+1}, 64, v{VXO}')
    e(f'v_add_u32 v{VXO+1}, {16384-1024}, v{VXO+1}')
    e(f'v_lshlrev_b32 v{VL16}, 4, v0')
    e('s_lshl_b32 s37, s4, 18\ns_lshl_b32 s39, s3, 16\ns_add_u32 s50, s37, s39\ns_lshl_b32 s51, s3, 12')
    e(f's_lshl_b32 s37, s5, 18\ns_add_u32 s52, s37, s51\ns_add_u32 s52, s52, {WS_W}')
    def emit_ops(ops):
        for ins, tag in ops:
            e(ins)
            if tag: vm.issue(tag)
    def x_ops(q):
        slot = q % NS
        if not cfg.xdma: return []
        if cfg.xlin:
            o = [(f's_add_u32 m0, s51, {slot*32768}', None), (f's_lshl_b32 s54, s4, 18', None), (f's_add_u32 s54, s54, s51', None), (f's_add_u32 s54, s54, {q*16384}', None)]
            for j in range(4): o.append((f'buffer_load_dwordx4 v{VL16}, s[8:11], s54 offen offset:{1024*j} lds', ('x', q)))
            return o
        return [(f's_add_u32 m0, s51, {slot*32768}', None)] + [(i, None) for i in rot_off(54, 50, q, 7)] + [
                (f'buffer_load_dwordx4 v{VXO}, s[8:11], s54 offen{cfg.ntx} lds', ('x', q)),
                (f'buffer_load_dwordx4 v{VXO+1}, s[8:11], s54 offen offset:1024{cfg.ntx} lds', ('x', q)),
                (f's_add_u32 m0, s51, {slot*32768+2048}', None),
                (f's_add_u32 s54, s54, 32768', None),
                (f'buffer_load_dwordx4 v{VXO}, s[8:11], s54 offen{cfg.ntx} lds', ('x', q)),
                (f'buffer_load_dwordx4 v{VXO+1}, s[8:11], s54 offen offset:1024{cfg.ntx} lds', ('x', q))]
    wsc = '' if cfg.nosc1w else ' sc1'
    def w_ops(q):
        slot = q % NS
        if not cfg.wdma: return []
        o = [(f's_add_u32 m0, s51, {slot*32768+16384}', None)] + [(i, None) for i in rot_off(55, 52, q, 14)]
        for j in range(4):
            o.append((f'buffer_load_dwordx4 v{VL16}, s[60:63], s55 offen offset:{1024*j}{wsc}{cfg.ntw} lds', ('w', q)))
        return o
    e(f'v_and_b32 v{T+1}, 3, v{T+4}')
    e(f'v_lshlrev_b32 v{T+1}, 2, v{T+1}')
    e('s_lshl_b32 s37, s3, 2')
    e(f'v_add_u32 v{T+2}, s37, v{T+5}')
    e(f'v_xor_b32 v{T+1}, v{T+1}, v{T+2}')
    e(f'v_lshlrev_b32 v{T+1}, 4, v{T+1}')
    e(f'v_lshl_add_u32 v{WD}, v{T+4}, 8, v{T+1}')
    e(f's_lshl_b32 s38, s5, 18\ns_lshl_b32 s39, s4, 13\ns_add_u32 s38, s38, s39\ns_add_u32 s38, s38, {WS_W}')
    e('s_add_u32 s39, s38, 0x1000')
    for t in range(2):
        vm.need([f'pw{t}', f'pg{t}'])
        if t == 0: st(1)
        w = PW + 4 * t; gk = PG + t; u = U
        for i in range(4):
            e(f'v_lshlrev_b32 v{u+2*i}, 16, v{w+i}')
            e(f'v_and_b32 v{u+2*i+1}, s53, v{w+i}')
        for i in range(8): e(f'v_mul_f32 v{u+i}, v{gk}, v{u+i}')
        for i in range(4): e(f'v_cvt_pk_bf16_f32 v{WPK+4*t+i}, v{u+2*i}, v{u+2*i+1}')
        e(f'buffer_store_dwordx4 v[{WPK+4*t}:{WPK+4*t+3}], v{WD}, s[60:63], s{38+t} offen sc1'); vm.issue('wst')
    if cfg.statwhen == 's': e('s_barrier')
    st(2)
    vm.need(['wst'])
    st(3)
    e('s_waitcnt lgkmcnt(0)')
    e(f's_add_u32 s64, s64, {TAG_STEP}')
    e('s_barrier')
    e('s_cmp_lg_u32 s3, 0')
    e('s_cbranch_scc1 L_noflagw')
    e(f's_lshl_b32 s38, s5, 10\ns_lshl_b32 s39, s4, 2\ns_add_u32 s38, s38, s39\ns_add_u32 s38, s38, {WS_FW}')
    e(f'v_lshlrev_b32 v{T+1}, 7, v0')
    e(f'v_add_u32 v{T+1}, s38, v{T+1}')
    e(f'v_mov_b32 v{T+2}, s64')
    e('s_mov_b64 exec, 0xff')
    e(f'buffer_store_dword v{T+2}, v{T+1}, s[60:63], 0 offen sc1')
    e('s_mov_b64 exec, -1')
    e('L_noflagw:')
    st(4)
    ix = cfg.prex
    def partial_sums():
        for t in range(2):
            w = PW + 4 * t; bk = PG + 2 + t
            for i in range(4):
                e(f'v_lshlrev_b32 v{U+2*i}, 16, v{w+i}')
                e(f'v_and_b32 v{U+2*i+1}, s53, v{w+i}')
            for i in range(8):
                if t == 0: e(f'v_mul_f32 v{X+8+i}, v{bk}, v{U+i}')
                else: e(f'v_fmac_f32 v{X+8+i}, v{bk}, v{U+i}')
            for i in range(4):
                if t == 0:
                    e(f'v_lshlrev_b32 v{X+2*i}, 16, v{WPK+i}')
                    e(f'v_and_b32 v{X+2*i+1}, s53, v{WPK+i}')
                else:
                    e(f'v_lshlrev_b32 v{U+2*i}, 16, v{WPK+4+i}')
                    e(f'v_and_b32 v{U+2*i+1}, s53, v{WPK+4+i}')
            if t == 1:
                for i in range(8): e(f'v_add_f32 v{X+i}, v{X+i}, v{U+i}')
        e('s_nop 1')
        for j in range(8): e(f'v_permlane32_swap_b32 v{X+j}, v{X+8+j}')
        e('s_nop 1')
        for j in range(8): e(f'v_add_f32 v{X+j}, v{X+j}, v{X+8+j}')
        e('s_nop 1')
        for j in range(4): e(f'v_permlane16_swap_b32 v{X+j}, v{X+4+j}')
        e('s_nop 1')
        for j in range(4): e(f'v_add_f32 v{X+j}, v{X+j}, v{X+4+j}')
        for rot in (8, 4):
            e('s_nop 1')
            for j in range(4): e(f'v_add_f32_dpp v{X+j}, v{X+j}, v{X+j} row_ror:{rot} row_mask:0xf bank_mask:0xf')
        e(f'v_lshrrev_b32 v{T+1}, 4, v0')
        e(f'v_lshrrev_b32 v{T+2}, 1, v{T+1}')
        e(f'v_lshlrev_b32 v{T+2}, 9, v{T+2}')
        e(f'v_and_b32 v{T+1}, 1, v{T+1}')
        e(f'v_lshl_add_u32 v{T+2}, v{T+1}, 4, v{T+2}')
        e(f'v_lshl_add_u32 v{T+2}, v{T+5}, 5, v{T+2}')
        e('s_lshl_b32 s38, s5, 5\ns_add_u32 s38, s38, s4\ns_lshl_b32 s38, s38, 10\ns_lshl_b32 s39, s3, 7\ns_add_u32 s38, s38, s39')
        e(f's_add_u32 s38, s38, {WS_PART}')
        e(f'v_and_b32 v{T+1}, 15, v0')
        e(f'v_cmp_gt_u32 vcc, 4, v{T+1}')
        e('s_and_saveexec_b64 s[76:77], vcc')
        e(f'buffer_store_dwordx4 v[{X}:{X+3}], v{T+2}, s[60:63], s38 offen sc1'); vm.issue('pst')
        e('s_mov_b64 exec, -1')
    if not cfg.partlate: partial_sums()
    for q in range(cfg.prex, cfg.prex + cfg.xd):
        emit_ops(x_ops(q)); ix += 1
    if cfg.codepf:
        e('s_getpc_b64 s[78:79]')
        e('L_pc:')
        e('s_sub_u32 s78, s78, L_pc-' + KNAME)
        e('s_subb_u32 s79, s79, 0')
        e('v_lshlrev_b32 v12, 7, v0')
        e('s_lshl_b32 s38, s3, 13')
        e('v_add_u32 v12, s38, v12')
        e('CODEPF')
    e(f'v_lshlrev_b32 v{FL+2}, 2, v0')
    e('s_cmp_eq_u32 s3, 0')
    e('s_cselect_b32 s37, 0, 0x7fff0000')
    e(f's_lshl_b32 s38, s5, 9\ns_add_u32 s38, s38, {WS_FC}\ns_add_u32 s38, s38, s37')
    e('v_lshlrev_b32 v13, 3, v0')
    e(f'v_add_u32 v{FL+4}, s38, v13')
    e(f's_lshl_b32 s38, s4, 7\ns_add_u32 s38, s38, {WS_FR}\ns_add_u32 s38, s38, s37')
    e('v_and_b32 v13, 31, v0')
    e('v_lshlrev_b32 v13, 2, v13')
    e(f'v_add_u32 v{FL+5}, s38, v13')
    if cfg.wait_flags:
        e('s_cmp_lg_u32 s3, 0')
        e('s_cbranch_scc1 L_notpoller')
        e('v_and_b32 v12, 31, v0')
        if cfg.G1 < 32: e(f'v_min_u32 v12, {cfg.G1-1}, v12')
        e('v_lshlrev_b32 v12, 2, v12')
        e(f's_lshl_b32 s39, s5, 10\ns_lshr_b32 s37, s4, 2\ns_lshl_b32 s37, s37, 7\ns_add_u32 s39, s39, s37\ns_add_u32 s39, s39, {WS_FW}')
        e(f's_mov_b32 s38, {cfg.spin}')
        if cfg.polldelay: e(f's_sleep {cfg.polldelay}')
        n = cfg.pipepoll
        for i in range(n - 1):
            e(f'buffer_load_dword v{16+i}, v12, s[60:63], s39 offen sc1')
            e(f's_sleep {cfg.pollgap}')
        e('L_spin_w:')
        for i in range(n):
            e(f'buffer_load_dword v{16+(i+n-1)%n}, v12, s[60:63], s39 offen sc1')
            e(f's_waitcnt vmcnt({n-1})')
            e(f'v_cmp_eq_u32 vcc, s64, v{16+i}')
            e('s_cmp_eq_u64 vcc, -1')
            e('s_cbranch_scc1 L_found_w')
            if n > 1: e(f's_sleep {cfg.pollgap}')
            elif cfg.sleep: e(f's_sleep {cfg.sleep}')
        e('s_sub_u32 s38, s38, 1')
        e('s_cmp_lg_u32 s38, 0')
        e('s_cbranch_scc1 L_spin_w')
        e('L_found_w:')
        e('s_branch L_ready_w')
        e('L_notpoller:')
        if not cfg.partlate: e('s_waitcnt vmcnt(0)')
        e('L_ready_w:')
    if cfg.stamps: e('s_memtime s[58:59]')
    def fc_tag():
        e(f's_lshl_b32 s38, s5, 9\ns_lshl_b32 s39, s4, 4\ns_add_u32 s38, s38, s39\ns_lshl_b32 s39, s3, 2\ns_add_u32 s38, s38, s39\ns_add_u32 s38, s38, {WS_FC}')
        tagstore(T + 1, 38)
    if not cfg.partlate:
        if not cfg.wait_flags: e('s_waitcnt vmcnt(0)')
        vm.q = []
        fc_tag()
    else:
        vm.q = []
    e('s_barrier')
    iw = 0
    for q in range(cfg.prew):
        emit_ops(w_ops(q)); iw += 1
    if cfg.partlate: partial_sums()
    vm.need([('w', 0)])
    if cfg.prex == 0 and cfg.xd == 0:
        pass
    if cfg.dprio: e(f's_setprio {cfg.dprio}')
    e('s_barrier')
    if cfg.stamps: e('s_memtime s[42:43]')
    if cfg.G1 < 32:
        e('v_and_b32 v13, 31, v0')
        e('v_lshlrev_b32 v13, 2, v13')
        e('s_cmp_eq_u32 s3, 0')
        e('s_cselect_b32 s37, 0, 0x7fff0000')
        e(f's_lshl_b32 s39, s5, 10\ns_lshr_b32 s38, s4, 2\ns_lshl_b32 s38, s38, 7\ns_add_u32 s39, s39, s38\ns_add_u32 s39, s39, {WS_FW}\ns_add_u32 s39, s39, s37')
        e('v_add_u32 v57, s39, v13')
    P2C = cfg.G1 // 2 - cfg.LA - 1 if cfg.G1 < 32 else -1
    PO = 58
    def check_final():
        e(f'v_cmp_eq_u32 vcc, s64, v{PO}')
        e(f'v_cmp_eq_u32 s[76:77], s64, v{PO+1}')
        e(f'v_cmp_eq_u32 s[80:81], s64, v{PO+2}')
        e('s_and_b64 vcc, vcc, s[76:77]')
        e('s_and_b64 vcc, vcc, s[80:81]')
        e('s_cmp_eq_u64 vcc, -1')
    for p in range(NST - 1):
        if cfg.wpf and p + cfg.wpf < NST:
            e(f's_add_u32 s56, s57, {(p + cfg.wpf) * 16384}')
            e(f'buffer_load_dwordx4 v[120:123], v{VL16}, s[60:63], s56 offen sc1'); vm.issue(('pf', p))
        if cfg.partlate and p == 2:
            vm.need(['pst']); fc_tag()
        lim = min(NST - 1, p + cfg.LA)
        for _ in range(2):
            if iw <= lim:
                assert iw < cfg.G1 // 2 or p > P2C, (p, iw)
                emit_ops(w_ops(iw)); iw += 1
            if ix <= lim:
                emit_ops(x_ops(ix)); ix += 1
        if p == cfg.P2I and cfg.G1 < 32:
            e('buffer_load_dword v61, v57, s[60:63], 0 offen sc1'); vm.issue('poll2')
        if p == P2C and cfg.G1 < 32:
            vm.need(['poll2'])
            e('s_cmp_lg_u32 s3, 0')
            e('s_cbranch_scc1 L_ready_w2')
            e('v_cmp_eq_u32 vcc, s64, v61')
            e('s_cmp_eq_u64 vcc, -1')
            e('s_cbranch_scc1 L_ready_w2')
            if cfg.wait_flags:
                e(f's_mov_b32 s38, {cfg.spin}')
                e('L_spin_w2:')
                e('buffer_load_dword v61, v57, s[60:63], 0 offen sc1')
                e('s_waitcnt vmcnt(0)')
                e('v_cmp_eq_u32 vcc, s64, v61')
                e('s_cmp_eq_u64 vcc, -1')
                e('s_cbranch_scc1 L_ready_w2')
                e('s_sub_u32 s38, s38, 1')
                e('s_cmp_lg_u32 s38, 0')
                e('s_cbranch_scc1 L_spin_w2')
            e('L_ready_w2:')
        if p == cfg.PP:
            e(f'buffer_load_dwordx2 v[{PO}:{PO+1}], v{FL+4}, s[60:63], 0 offen sc1'); vm.issue('poll')
            e(f'buffer_load_dword v{PO+2}, v{FL+5}, s[60:63], 0 offen sc1'); vm.issue('poll')
        if p == cfg.PC:
            vm.need(['poll'])
            e('s_cmp_lg_u32 s3, 0')
            e('s_cbranch_scc1 L_ready_a')
            check_final()
            e('s_cbranch_scc1 L_ready_a')
            if cfg.wait_flags:
                e(f's_mov_b32 s38, {cfg.spin}')
                e('L_spin_a:')
                e(f'buffer_load_dwordx2 v[{PO}:{PO+1}], v{FL+4}, s[60:63], 0 offen sc1')
                e(f'buffer_load_dword v{PO+2}, v{FL+5}, s[60:63], 0 offen sc1')
                e('s_waitcnt vmcnt(0)')
                check_final()
                e('s_cbranch_scc1 L_ready_a')
                e('s_sub_u32 s38, s38, 1')
                e('s_cmp_lg_u32 s38, 0')
                e('s_cbranch_scc1 L_spin_a')
            e('L_ready_a:')
        if p == cfg.PL:
            e('v_lshrrev_b32 v12, 4, v0')
            e('v_lshlrev_b32 v12, 10, v12')
            e('v_and_b32 v13, 15, v0')
            e('v_lshl_add_u32 v12, v13, 4, v12')
            e(f's_lshl_b32 s38, s5, 15\ns_lshl_b32 s39, s3, 8\ns_add_u32 s38, s38, s39\ns_add_u32 s38, s38, {WS_PART}')
            for t in range(8):
                if t: e('s_add_u32 s38, s38, 0x1000')
                e(f'buffer_load_dwordx4 v[{PR+8+4*t}:{PR+8+4*t+3}], v12, s[60:63], s38 offen sc1'); vm.issue('pp')
            e('s_lshl_b32 s38, s4, 10\ns_lshl_b32 s39, s3, 8\ns_add_u32 s38, s38, s39')
            e(f'buffer_load_dword v{PR+40}, v{FL+2}, s[60:63], s38 offen sc1'); vm.issue('ps')
        if p == cfg.PS:
            vm.need(['pp', 'ps'])
            P = PR + 8
            for h in (16, 8, 4):
                for i in range(h): e(f'v_add_f32 v{P+i}, v{P+i}, v{P+h+i}')
            e('s_nop 1')
            e(f'v_permlane32_swap_b32 v{P}, v{P+2}\nv_permlane32_swap_b32 v{P+1}, v{P+3}')
            e('s_nop 1')
            e(f'v_add_f32 v{P}, v{P}, v{P+2}\nv_add_f32 v{P+1}, v{P+1}, v{P+3}')
            e('s_nop 1')
            e(f'v_permlane16_swap_b32 v{P}, v{P+1}')
            e('s_nop 1')
            e(f'v_add_f32 v{P}, v{P}, v{P+1}')
            e('v_lshrrev_b32 v12, 4, v0')
            e('v_and_b32 v13, 15, v0')
            e('v_lshlrev_b32 v13, 4, v13')
            e('v_lshl_add_u32 v12, v12, 2, v13')
            e(f's_lshl_b32 s38, s3, 8\ns_add_u32 s39, s38, {TAB}')
            e('v_add_u32 v12, s39, v12')
            e(f'ds_write_b32 v12, v{P}'); lg.issue('tab')
            e(f's_add_u32 s39, s38, {TAB+1024}')
            e(f'v_add_u32 v13, s39, v{FL+2}')
            e(f'ds_write_b32 v13, v{PR+40}'); lg.issue('tab')
            lg.drain()
        vm.need([('w', p + 1)])
        if p + 1 >= cfg.prex: vm.need([('x', p + 1)])
        e('s_barrier')
    assert ix == NST and iw == NST
    if cfg.stamps: e('s_memtime s[44:45]')
    e('s_or_b32 s38, s2, s3')
    e('s_cmp_lg_u32 s38, 0')
    e('s_cbranch_scc1 L_noepoch')
    e('v_lshrrev_b32 v12, 3, v0')
    e('v_lshlrev_b32 v12, 10, v12')
    e('v_and_b32 v13, 7, v0')
    e('v_lshl_add_u32 v12, v13, 4, v12')
    e(f's_mov_b32 s38, {cfg.spin}')
    e('L_spin_e:')
    e(f's_mov_b32 s39, {WS_FW}')
    e('buffer_load_dwordx4 v[16:19], v12, s[60:63], s39 offen sc1')
    e('s_waitcnt vmcnt(0)')
    e('s_mov_b64 s[76:77], -1')
    for i in range(4):
        e(f'v_cmp_eq_u32 vcc, s64, v{16+i}')
        e('s_and_b64 s[76:77], s[76:77], vcc')
    e('s_cmp_eq_u64 s[76:77], -1')
    e('s_cbranch_scc1 L_doepoch')
    e('s_sub_u32 s38, s38, 1')
    e('s_cmp_lg_u32 s38, 0')
    e('s_cbranch_scc1 L_spin_e')
    e('L_doepoch:')
    e(f'v_mov_b32 v12, {WS_EPOCH}')
    e('v_mov_b32 v13, s64')
    e('s_mov_b64 exec, 1')
    e('buffer_store_dword v13, v12, s[60:63], 0 offen sc1')
    e('s_mov_b64 exec, -1')
    e('L_noepoch:')
    e('L_end:')
    if cfg.stamps:
        e('s_waitcnt vmcnt(0) lgkmcnt(0)')
        e('s_memtime s[46:47]')
        e('s_memrealtime s[56:57]')
        e('s_waitcnt lgkmcnt(0)')
        e('s_sub_u32 s42, s42, s40\ns_sub_u32 s44, s44, s40\ns_sub_u32 s46, s46, s40\ns_sub_u32 s58, s58, s40')
        e('v_mov_b32 v4, s42\nv_mov_b32 v5, s44\nv_mov_b32 v6, s46\nv_mov_b32 v7, s48\nv_mov_b32 v8, s56\nv_mov_b32 v9, s58\nv_mov_b32 v10, 0\nv_mov_b32 v11, 0')
        for i in range(5): e(f's_sub_u32 s{82+2*i}, s{82+2*i}, s40\nv_mov_b32 v{16+i}, s{82+2*i}')
        e(f's_lshl_b32 s65, s2, 3\ns_add_u32 s65, s65, s66\ns_lshl_b32 s65, s65, 6\ns_add_u32 s65, s65, {WS_STAMP}')
        e('v_mov_b32 v12, s65')
        e('s_mov_b64 exec, 1')
        e('buffer_store_dwordx4 v[4:7], v12, s[60:63], 0 offen')
        e('buffer_store_dwordx4 v[8:11], v12, s[60:63], 0 offen offset:16')
        e('buffer_store_dwordx4 v[16:19], v12, s[60:63], 0 offen offset:32')
        e('buffer_store_dwordx4 v[20:23], v12, s[60:63], 0 offen offset:48')
    e('L_exit:')
    e('s_endpgm')
    e('L_codeend:')
    e('.section .rodata,"a"')
    e(f'.p2align 6\n.amdhsa_kernel {KNAME}')
    e('  .amdhsa_next_free_vgpr 224\n  .amdhsa_next_free_sgpr 96\n  .amdhsa_accum_offset 224')
    e('  .amdhsa_group_segment_fixed_size 0\n  .amdhsa_kernarg_size 56\n  .amdhsa_user_sgpr_count 2')
    e('  .amdhsa_user_sgpr_kernarg_segment_ptr 1\n  .amdhsa_system_sgpr_workgroup_id_x 1\n.end_amdhsa_kernel')
    txt = e.text()
    pf = (f'v_cmp_gt_u32 vcc, L_codeend-{KNAME}, v12\n'
          's_and_saveexec_b64 s[80:81], vcc\n'
          's_cbranch_execz L_nopf\n'
          'global_load_dword v11, v12, s[78:79]\n'
          'L_nopf:\n'
          's_mov_b64 exec, -1')
    txt = txt.replace('CODEPF', pf)
    return txt

if __name__ == '__main__':
    import ast
    kw = {}
    for a in sys.argv[1:]:
        k, v = a.split('=')
        kw[k] = ast.literal_eval(v)
    print(gen(Cfg(**kw)))
```

```python
import sys
sys.path.insert(0, 'gen')
from asmlib import Emitter, Counter

KNAME = 'standalone__layernorm_linear__prompt_kernel'
WS_STATS = 0
WS_EPOCH = 0x8000
WS_FW = 0xC000
WS_FC = 0xA000
WS_FR = 0xB000
WS_PART = 0x10000
WS_STAMP = 0x80000
WS_W = 0x100000
TAG_STEP = 0x9E3779B9

HEADER = '''; LayerNorm(x)*g + b followed by @ w, fused in one launch.
'''

class Cfg:
    NS = 5
    PP = 5
    PC = 9
    PL = 10
    PS = 14
    prew = 3
    prex = 5
    statsplit = 8
    statwhen = 's'
    polldelay = 0
    ntstat = ''; ntslab = ''; ntx = ''; ntout = ' sc1 nt'; ntw = ''
    prex1 = 2
    statdelay0 = 0
    slate = False
    xd = 0
    dprio = 0
    epi2 = True
    LA = 3
    bwearly = False
    partlate = False
    G1 = 16
    P2I = 1
    krot = 0
    xlin = False
    nosc1w = False
    wpf = 0
    xearly = 0
    onepass = True
    xlate = False
    pipepoll = 1
    pollgap = 6
    stamps = False
    xmap = 0
    codepf = True
    mfma = True; reads = True; xdma = True; wdma = True
    wait_flags = True
    earlywait = True
    sleep = 0
    spin = 40000
    def __init__(self, **kw):
        for k, v in kw.items():
            assert hasattr(self, k), k
            setattr(self, k, v)


def gen(cfg):
    e = Emitter()
    def st(i):
        if cfg.stamps: e(f's_memtime s[{82+2*i}:{83+2*i}]')
    NS = cfg.NS; NST = 16
    LDS = NS * 32768
    assert NS == 5
    TAB = ((NST - 5) % NS) * 32768
    STG = ((NST - 4) % NS) * 32768
    e(HEADER.rstrip())
    e(f'; @launch grid=(256,1,1) block=(512,1,1) lds={LDS}')
    e('.amdgcn_target "amdgcn-amd-amdhsa--gfx950"\n.text')
    e(f'.globl {KNAME}\n.p2align 8\n.type {KNAME},@function\n{KNAME}:')
    e('s_cmp_ge_u32 s2, 0x100')
    e('s_cbranch_scc1 L_exit')
    if cfg.stamps: e('s_memtime s[40:41]\ns_memrealtime s[48:49]')
    e('s_load_dwordx2 s[12:13], s[0:1], 24')
    e('s_load_dwordx2 s[16:17], s[0:1], 8')
    e('s_load_dwordx2 s[8:9], s[0:1], 0')
    e('s_load_dwordx2 s[68:69], s[0:1], 16')
    e('s_load_dwordx2 s[60:61], s[0:1], 48')
    e('s_load_dwordx2 s[20:21], s[0:1], 32')
    e('v_lshrrev_b32 v1, 6, v0')
    e('v_and_b32 v0, 63, v0')
    e('v_readfirstlane_b32 s3, v1')
    e('s_mov_b32 s10, 0x800000\ns_mov_b32 s11, 0x20000')
    e('s_mov_b32 s14, 0x200000\ns_mov_b32 s15, 0x20000')
    e('s_mov_b32 s18, 0x800\ns_mov_b32 s19, 0x20000')
    e('s_mov_b32 s70, 0x800\ns_mov_b32 s71, 0x20000')
    e('s_mov_b32 s22, 0x800000\ns_mov_b32 s23, 0x20000')
    e('s_mov_b32 s62, 0x300000\ns_mov_b32 s63, 0x20000')
    e('s_and_b32 s4, s2, 7')
    e('s_lshr_b32 s5, s2, 3')
    if cfg.xmap == 0:
        e('s_and_b32 s6, s5, 3\ns_lshl_b32 s4, s4, 2\ns_add_u32 s4, s4, s6\ns_lshr_b32 s5, s5, 2')
    else:
        e('s_and_b32 s6, s5, 7\ns_lshr_b32 s7, s4, 1\ns_lshl_b32 s7, s7, 3\ns_add_u32 s6, s6, s7')
        e('s_and_b32 s4, s4, 1\ns_lshl_b32 s4, s4, 2\ns_lshr_b32 s5, s5, 3\ns_add_u32 s5, s5, s4\ns_mov_b32 s4, s6')
    e('s_mov_b32 s66, s3')
    if cfg.krot: e(f's_and_b32 s67, s4, 3\ns_mul_i32 s67, s67, {cfg.krot}')
    e('s_mov_b32 s53, 0xffff0000')
    e('s_cmp_ge_u32 s3, 4')
    e('s_cbranch_scc1 L_dma')

    def rot_off(dst, base, q, shift, extra=0):
        if not cfg.krot: return [f's_add_u32 s{dst}, s{base}, {(q << shift) + extra}']
        o = [f's_add_u32 s{dst}, s67, {q}', f's_and_b32 s{dst}, s{dst}, 15', f's_lshl_b32 s{dst}, s{dst}, {shift}', f's_add_u32 s{dst}, s{dst}, s{base}']
        if extra: o.append(f's_add_u32 s{dst}, s{dst}, {extra}')
        return o

    def tagstore(vtmp, addr_sgpr):
        e(f'v_mov_b32 v{vtmp}, s{addr_sgpr}')
        e(f'v_mov_b32 v{vtmp+1}, s64')
        e('s_mov_b64 exec, 1')
        e(f'buffer_store_dword v{vtmp+1}, v{vtmp}, s[60:63], 0 offen sc1')
        e('s_mov_b64 exec, -1')

    ACC = 0; FR = 64; XA = 96; WA = 108; LN = 114; TA_ = 115
    lg = Counter(e, 'lgkmcnt', 15); vm = Counter(e, 'vmcnt', 63)
    T = 116
    e(f'v_mov_b32 v{LN}, v0')
    X = 128; L = 160; A = 192; RW_ = 204; I16 = 205
    e(f'v_lshrrev_b32 v{T}, 4, v{LN}')
    e(f'v_and_b32 v{I16}, 15, v{LN}')
    e('s_lshl_b32 s38, s4, 7\ns_lshl_b32 s39, s5, 4\ns_add_u32 s38, s38, s39\ns_lshl_b32 s39, s3, 2\ns_add_u32 s38, s38, s39')
    e(f'v_add_u32 v{RW_}, s38, v{T}')
    e(f'v_lshlrev_b32 v{T+11}, 11, v{RW_}')
    e(f'v_lshl_add_u32 v{T+11}, v{I16}, 4, v{T+11}')
    e('s_and_b32 s6, s3, 1')
    e('s_lshr_b32 s7, s3, 1')
    e(f'v_and_b32 v{T+1}, 31, v{LN}')
    e(f'v_lshrrev_b32 v{T+2}, 5, v{LN}')
    e(f'v_bfe_u32 v{T+3}, v{LN}, 1, 3')
    e(f'v_xor_b32 v{T+3}, v{T+3}, v{T+2}')
    e(f'v_lshlrev_b32 v{T+3}, 4, v{T+3}')
    e('s_lshl_b32 s37, s6, 13')
    e(f'v_lshl_add_u32 v{T+9}, v{T+1}, 7, v{T+3}')
    e(f'v_add_u32 v{XA}, s37, v{T+9}')
    for ks in range(1, 4): e(f'v_xor_b32 v{XA+ks}, {32*ks}, v{XA}')
    for w in range(1, 3):
        for ks in range(4): e(f'v_add_u32 v{XA+4*w+ks}, {0x10000*w}, v{XA+ks}')
    e(f'v_lshrrev_b32 v{T+1}, 4, v{LN}')
    e(f'v_bfe_u32 v{T+2}, v{LN}, 2, 2')
    e(f'v_and_b32 v{T+3}, 3, v{LN}')
    e(f'v_lshrrev_b32 v{T+9}, 1, v{T+1}')
    e(f'v_lshl_add_u32 v{T+9}, v{T+9}, 3, v{T+2}')
    e(f'v_lshlrev_b32 v{T+9}, 8, v{T+9}')
    e(f'v_and_b32 v{T+1}, 1, v{T+1}')
    e(f'v_lshlrev_b32 v{T+1}, 1, v{T+1}')
    e(f'v_lshrrev_b32 v{T+10}, 1, v{T+3}')
    e(f'v_add_u32 v{T+1}, v{T+1}, v{T+10}')
    e('s_lshl_b32 s37, s7, 3')
    e(f'v_add_u32 v{T+1}, s37, v{T+1}')
    e(f'v_lshlrev_b32 v{T+2}, 2, v{T+2}')
    e(f'v_xor_b32 v{T+1}, v{T+1}, v{T+2}')
    e(f'v_lshlrev_b32 v{T+1}, 4, v{T+1}')
    e(f'v_and_b32 v{T+3}, 1, v{T+3}')
    e(f'v_lshl_add_u32 v{T+1}, v{T+3}, 3, v{T+1}')
    e(f'v_add_u32 v{T+1}, v{T+1}, v{T+9}')
    e(f'v_add_u32 v{WA}, 0x4000, v{T+1}')
    e(f'v_xor_b32 v{WA+1}, 64, v{WA}')
    for w in range(1, 3):
        for nb in range(2): e(f'v_add_u32 v{WA+2*w+nb}, {0x10000*w}, v{WA+nb}')
    e(f'v_lshrrev_b32 v{T+1}, 5, v{LN}')
    e(f'v_lshlrev_b32 v{T+1}, 4, v{T+1}')
    e(f's_lshl_b32 s37, s7, 8\ns_add_u32 s37, s37, {TAB}')
    e(f'v_add_u32 v{TA_}, s37, v{T+1}')
    e('s_waitcnt lgkmcnt(0)')
    st(0)
    e(f's_load_dword s64, s[60:61], {WS_EPOCH}')
    def sload(j):
        e(f'buffer_load_dwordx4 v[{X+4*j}:{X+4*j+3}], v{T+11}, s[8:11], 0 offen offset:{256*j}{cfg.ntstat}'); vm.issue(('sx', j))
    VX = 208
    e(f'v_lshrrev_b32 v{T+1}, 3, v{LN}')
    e(f'v_lshlrev_b32 v{T+1}, 11, v{T+1}')
    e(f'v_and_b32 v{T+2}, 7, v{LN}')
    e(f'v_lshrrev_b32 v{T+3}, 4, v{LN}')
    e(f'v_xor_b32 v{T+2}, v{T+2}, v{T+3}')
    e(f'v_lshl_add_u32 v{VX}, v{T+2}, 4, v{T+1}')
    e(f'v_xor_b32 v{VX+1}, 64, v{VX}')
    e(f'v_add_u32 v{VX+1}, {16384-1024}, v{VX+1}')
    e('s_lshl_b32 s37, s4, 18\ns_lshl_b32 s39, s3, 16\ns_add_u32 s50, s37, s39\ns_lshl_b32 s51, s3, 12')
    def cx(q):
        slot = q % NS
        e(f's_add_u32 m0, s51, {slot*32768}')
        for ins in rot_off(54, 50, q, 7): e(ins)
        e(f'buffer_load_dwordx4 v{VX}, s[8:11], s54 offen{cfg.ntx} lds'); vm.issue(('x', q))
        e(f'buffer_load_dwordx4 v{VX+1}, s[8:11], s54 offen offset:1024{cfg.ntx} lds'); vm.issue(('x', q))
        e(f's_add_u32 m0, s51, {slot*32768+2048}')
        e(f's_add_u32 s54, s54, 32768')
        e(f'buffer_load_dwordx4 v{VX}, s[8:11], s54 offen{cfg.ntx} lds'); vm.issue(('x', q))
        e(f'buffer_load_dwordx4 v{VX+1}, s[8:11], s54 offen offset:1024{cfg.ntx} lds'); vm.issue(('x', q))
    if cfg.statwhen == '0':
        if cfg.statdelay0: e(f's_sleep {cfg.statdelay0}')
        for j in range(8): sload(j)
        e('s_barrier')
    else:
        if cfg.slate:
            assert cfg.statwhen == 's' and cfg.statsplit == 8
            e('s_cmp_lt_u32 s4, 16')
            e('s_cbranch_scc1 L_searly')
            for j in range(8): e(f'buffer_load_dwordx4 v[{X+4*j}:{X+4*j+3}], v{T+11}, s[8:11], 0 offen offset:{256*j}{cfg.ntstat}')
            e('s_barrier')
            e('s_branch L_sjoin')
            e('L_searly:')
            e('s_barrier')
            for j in range(8): sload(j)
            e('L_sjoin:')
            e('s_barrier')
        else:
            if cfg.statwhen == 's': e('s_barrier')
            else: e('s_barrier')
            for j in range(cfg.statsplit): sload(j)
            if cfg.statwhen == 's': e('s_barrier')
        if cfg.statsplit < 8:
            vm.need([('sx', 0)])
            for j in range(cfg.statsplit, 8): sload(j)
    for q in range(cfg.xearly): cx(q)
    st(1)
    if cfg.bwearly: e('s_barrier')
    vm.need([('sx', 7)])
    st(2)
    for q in range(cfg.xearly, cfg.prex1): cx(q)
    M = A + 8; V = A + 10
    if cfg.onepass:
        e('s_mov_b32 s39, 0x3f803f80')
        for a in range(8): e(f'v_mov_b32 v{A+a}, 0')
        for j in range(8):
            for i in range(4): e(f'v_dot2c_f32_bf16 v{A+i}, s39, v{X+4*j+i}')
            for i in range(4): e(f'v_dot2c_f32_bf16 v{A+4+i}, v{X+4*j+i}, v{X+4*j+i}')
        e('s_nop 2')
        e(f'v_add_f32 v{A}, v{A}, v{A+1}\nv_add_f32 v{A+2}, v{A+2}, v{A+3}')
        e(f'v_add_f32 v{A+4}, v{A+4}, v{A+5}\nv_add_f32 v{A+6}, v{A+6}, v{A+7}')
        e(f'v_add_f32 v{M}, v{A}, v{A+2}\nv_add_f32 v{V+1}, v{A+4}, v{A+6}')
        for rot in (8, 4, 2, 1):
            e('s_nop 0')
            e(f'v_add_f32_dpp v{M}, v{M}, v{M} row_ror:{rot} row_mask:0xf bank_mask:0xf')
            e(f'v_add_f32_dpp v{V+1}, v{V+1}, v{V+1} row_ror:{rot} row_mask:0xf bank_mask:0xf')
            e('s_nop 0')
        e(f'v_mul_f32 v{M}, 0xba800000, v{M}')
        e(f'v_mul_f32 v{V+1}, 0x3a800000, v{V+1}')
        e(f'v_fma_f32 v{V+1}, -v{M}, v{M}, v{V+1}')
        e(f'v_max_f32 v{V+1}, 0, v{V+1}')
        e(f'v_add_f32 v{V+1}, 0x3727c5ac, v{V+1}')
    else:
        for d in range(32):
            e(f'v_lshlrev_b32 v{L+d}, 16, v{X+d}')
            e(f'v_and_b32 v{X+d}, s53, v{X+d}')
        for a in range(4):
            e(f'v_pk_add_f32 v[{A+2*a}:{A+2*a+1}], v[{X+2*a}:{X+2*a+1}], v[{L+2*a}:{L+2*a+1}]')
        for d in range(8, 32, 2):
            a = (d // 2) % 4
            e(f'v_pk_add_f32 v[{A+2*a}:{A+2*a+1}], v[{A+2*a}:{A+2*a+1}], v[{X+d}:{X+d+1}]')
            e(f'v_pk_add_f32 v[{A+2*a}:{A+2*a+1}], v[{A+2*a}:{A+2*a+1}], v[{L+d}:{L+d+1}]')
        def fold(dst):
            e(f'v_pk_add_f32 v[{A}:{A+1}], v[{A}:{A+1}], v[{A+2}:{A+3}]')
            e(f'v_pk_add_f32 v[{A+4}:{A+5}], v[{A+4}:{A+5}], v[{A+6}:{A+7}]')
            e(f'v_pk_add_f32 v[{A}:{A+1}], v[{A}:{A+1}], v[{A+4}:{A+5}]')
            e(f'v_add_f32 v{dst}, v{A}, v{A+1}')
            for rot in (8, 4, 2, 1):
                e('s_nop 1')
                e(f'v_add_f32_dpp v{dst}, v{dst}, v{dst} row_ror:{rot} row_mask:0xf bank_mask:0xf')
        M = A + 8
        fold(M)
        e(f'v_mul_f32 v{M}, 0xba800000, v{M}')
        for d in range(0, 32, 2):
            e(f'v_pk_add_f32 v[{X+d}:{X+d+1}], v[{X+d}:{X+d+1}], v[{M}:{M+1}] op_sel_hi:[1,0]')
            e(f'v_pk_add_f32 v[{L+d}:{L+d+1}], v[{L+d}:{L+d+1}], v[{M}:{M+1}] op_sel_hi:[1,0]')
        for a in range(4):
            e(f'v_pk_mul_f32 v[{A+2*a}:{A+2*a+1}], v[{X+2*a}:{X+2*a+1}], v[{X+2*a}:{X+2*a+1}]')
        for d in range(8, 32, 2):
            a = (d // 2) % 4
            e(f'v_pk_fma_f32 v[{A+2*a}:{A+2*a+1}], v[{X+d}:{X+d+1}], v[{X+d}:{X+d+1}], v[{A+2*a}:{A+2*a+1}]')
        for d in range(0, 32, 2):
            a = (d // 2) % 4
            e(f'v_pk_fma_f32 v[{A+2*a}:{A+2*a+1}], v[{L+d}:{L+d+1}], v[{L+d}:{L+d+1}], v[{A+2*a}:{A+2*a+1}]')
        V = A + 10
        fold(V)
        e('s_mov_b32 s39, 0x3727c5ac')
        e(f'v_mov_b32 v{V+1}, s39')
        e(f'v_fmac_f32 v{V+1}, 0x3a800000, v{V}')
    e(f'v_rsq_f32 v{V}, v{V+1}')
    e('s_nop 0')
    e(f'v_mul_f32 v{V+1}, v{M}, v{V}')
    e(f'v_lshlrev_b32 v{RW_}, 3, v{RW_}')
    e(f'v_cmp_eq_u32 vcc, 0, v{I16}')
    e('s_and_saveexec_b64 s[76:77], vcc')
    e(f'buffer_store_dwordx2 v[{V}:{V+1}], v{RW_}, s[60:63], 0 offen sc1')
    e('s_mov_b64 exec, -1')
    if not cfg.xlate:
        for q in range(max(cfg.prex1, cfg.xearly), cfg.prex): cx(q)
    e('s_waitcnt lgkmcnt(0)')
    e(f's_add_u32 s64, s64, {TAG_STEP}')
    st(3)
    if not cfg.bwearly: e('s_barrier')
    if cfg.xlate:
        vm.q = []
        e('s_waitcnt vmcnt(0)')
        e(f's_lshl_b32 s38, s4, 7\ns_lshl_b32 s39, s5, 4\ns_add_u32 s38, s38, s39\ns_lshl_b32 s39, s3, 2\ns_add_u32 s38, s38, s39\ns_add_u32 s38, s38, {WS_FR}')
        tagstore(T + 1, 38)
        for q in range(cfg.prex1, cfg.prex): cx(q)
    if not cfg.xlate:
        e('s_waitcnt vmcnt(0)')
        e(f's_lshl_b32 s38, s4, 7\ns_lshl_b32 s39, s5, 4\ns_add_u32 s38, s38, s39\ns_lshl_b32 s39, s3, 2\ns_add_u32 s38, s38, s39\ns_add_u32 s38, s38, {WS_FR}')
        tagstore(T + 1, 38)
        vm.q = []

    def rd_list(p, ks):
        st_ = FR + 16 * (ks & 1)
        slot = p % NS
        win = slot // 2
        xo = (slot % 2) * 32768
        wo = (slot % 2) * 32768 + ks * 4096
        xr = XA + 4 * win + ks; wr = WA + 2 * win
        return [
            (f'ds_read_b64_tr_b16 v[{st_}:{st_+1}], v{wr} offset:{wo}', ('W0', p, ks)),
            (f'ds_read_b64_tr_b16 v[{st_+2}:{st_+3}], v{wr} offset:{wo+1024}', ('W0', p, ks)),
            (f'ds_read_b128 v[{st_+8}:{st_+11}], v{xr} offset:{xo}', ('x0', p, ks)),
            (f'ds_read_b128 v[{st_+12}:{st_+15}], v{xr} offset:{xo+4096}', ('x1', p, ks)),
            (f'ds_read_b64_tr_b16 v[{st_+4}:{st_+5}], v{wr+1} offset:{wo}', ('W1', p, ks)),
            (f'ds_read_b64_tr_b16 v[{st_+6}:{st_+7}], v{wr+1} offset:{wo+1024}', ('W1', p, ks)),
        ]
    def group(p, ks, reads, last_in_phase=False, order=None):
        st_ = FR + 16 * (ks & 1)
        order = order or [(0, 0), (0, 1), (1, 1), (1, 0)]
        split = [(0, 3), (3, 6), (6, 6), (6, 6)] if last_in_phase else [(0, 2), (2, 4), (4, 6), (6, 6)]
        for i, (nb, mb) in enumerate(order):
            if p >= 0:
                lg.need([(f'W{nb}', p, ks), (f'x{mb}', p, ks)])
                if last_in_phase and i == 3 and cfg.earlywait: lg.drain()
                a = ACC + 16 * (2 * nb + mb)
                c = '0' if (p == 0 and ks == 0) else f'v[{a}:{a+15}]'
                if cfg.mfma: e(f'v_mfma_f32_32x32x16_bf16 v[{a}:{a+15}], v[{st_+4*nb}:{st_+4*nb+3}], v[{st_+8+4*mb}:{st_+8+4*mb+3}], {c}')
                else: e('s_nop 7')
            for (ins, tag) in reads[split[i][0]:split[i][1]]:
                if cfg.reads:
                    e(ins); lg.issue(tag)
    GWR = 128; BWR = 160; RS = 192
    Y = 200; D = 208; SA = 212; SR = 213; GO = 214; XW = 216; SRD_ = 218
    def epi_addresses():
        e(f'v_and_b32 v{T}, 31, v{LN}')
        e(f's_lshl_b32 s38, s6, 9\ns_add_u32 s38, s38, {TAB+1024}')
        e(f'v_lshl_add_u32 v{SRD_}, v{T}, 3, s38')
        e(f'v_and_b32 v{Y}, 7, v{LN}')
        e(f'v_lshlrev_b32 v{Y}, 4, v{Y}')
        e(f'v_lshrrev_b32 v{Y+1}, 5, v{LN}')
        e(f'v_lshl_add_u32 v{Y}, v{Y+1}, 3, v{Y}')
        e(f'v_lshl_add_u32 v{SA}, v{T}, 7, v{Y}')
        e(f's_lshl_b32 s38, s3, 13\ns_add_u32 s38, s38, {STG}')
        e(f'v_add_u32 v{SA}, s38, v{SA}')
        e(f'v_lshrrev_b32 v{Y}, 3, v{LN}')
        e(f'v_and_b32 v{Y+1}, 7, v{LN}')
        e(f'v_xor_b32 v{Y+2}, v{Y+1}, v{Y}')
        e(f'v_lshlrev_b32 v{Y+2}, 4, v{Y+2}')
        e(f'v_lshl_add_u32 v{SR}, v{Y}, 7, v{Y+2}')
        e(f'v_add_u32 v{SR}, s38, v{SR}')
        e(f'v_lshlrev_b32 v{GO}, 11, v{Y}')
        e(f'v_lshl_add_u32 v{GO}, v{Y+1}, 4, v{GO}')
        e('s_lshl_b32 s38, s4, 18\ns_lshl_b32 s39, s6, 17\ns_add_u32 s38, s38, s39')
        e('s_lshl_b32 s39, s5, 8\ns_add_u32 s38, s38, s39\ns_lshl_b32 s39, s7, 7\ns_add_u32 s65, s38, s39')
    def table_reads():
        r = [(f'ds_read_b64 v[{RS}:{RS+1}], v{SRD_}', 'rs'), (f'ds_read_b64 v[{RS+2}:{RS+3}], v{SRD_} offset:256', 'rs')]
        for nb in range(2):
            for j in range(4):
                r.append((f'ds_read_b128 v[{GWR+16*nb+4*j}:{GWR+16*nb+4*j+3}], v{TA_} offset:{(nb*32+8*j)*4}', ('tg', nb, j)))
                r.append((f'ds_read_b128 v[{BWR+16*nb+4*j}:{BWR+16*nb+4*j+3}], v{TA_} offset:{512+(nb*32+8*j)*4}', ('tg', nb, j)))
        return r
    epi_addresses()
    e('s_barrier')
    if cfg.stamps: e('s_memtime s[42:43]')
    for p in range(NST):
        tr = table_reads() if (p == NST - 1 and cfg.epi2) else []
        def extra(k):
            for ins, tag in tr[6*k:6*k+6]:
                e(ins); lg.issue(tag)
        group(p - 1, 3, rd_list(p, 0))
        group(p, 0, rd_list(p, 1)); extra(0)
        group(p, 1, rd_list(p, 2)); extra(1)
        group(p, 2, rd_list(p, 3), last_in_phase=(p < NST - 1)); extra(2)
        if p < NST - 1: e('s_barrier')
    group(NST - 1, 3, [], order=[(0, 0), (1, 0), (1, 1), (0, 1)] if cfg.epi2 else None)
    if not cfg.epi2:
        for ins, tag in table_reads():
            e(ins); lg.issue(tag)
    if cfg.stamps: e('s_memtime s[44:45]')
    def stage_reads(mb):
        r0 = ACC + 16 * mb
        for q in range(4):
            e(f'ds_read_b128 v[{r0+4*q}:{r0+4*q+3}], v{SR} offset:{mb*4096+q*1024}'); lg.issue(('sr', mb, q))
    def out_store(mb, q):
        r0 = ACC + 16 * mb
        lg.need([('sr', mb, q)])
        e(f's_add_u32 s51, s65, {(mb*32+8*q)*2048}')
        e(f'buffer_store_dwordx4 v[{r0+4*q}:{r0+4*q+3}], v{GO}, s[20:23], s51 offen{cfg.ntout}')
    if cfg.epi2: e('s_nop 7')
    for idx in range(16):
        mb, nb, j = idx >> 3, (idx >> 2) & 1, idx & 3
        rs = RS + 2 * mb
        a = ACC + 16 * (2 * nb + mb)
        gw = GWR + 16 * nb + 4 * j; bw = BWR + 16 * nb + 4 * j
        lg.need(['rs', ('tg', nb, j)])
        y = Y + 4 * (j & 1)
        for hh in range(2):
            e(f'v_pk_fma_f32 v[{y+2*hh}:{y+2*hh+1}], v[{gw+2*hh}:{gw+2*hh+1}], v[{rs}:{rs+1}], v[{bw+2*hh}:{bw+2*hh+1}] op_sel:[0,1,0] op_sel_hi:[1,1,1]')
        for hh in range(2):
            e(f'v_pk_fma_f32 v[{y+2*hh}:{y+2*hh+1}], v[{a+4*j+2*hh}:{a+4*j+2*hh+1}], v[{rs}:{rs+1}], v[{y+2*hh}:{y+2*hh+1}] op_sel_hi:[1,0,1]')
        d = D + 2 * (j & 1)
        e(f'v_xor_b32 v{XW+(j&1)}, {(nb*4+j)*16}, v{SA}')
        e(f'v_cvt_pk_bf16_f32 v{d}, v{y}, v{y+1}')
        e(f'v_cvt_pk_bf16_f32 v{d+1}, v{y+2}, v{y+3}')
        e(f'ds_write_b64 v{XW+(j&1)}, v[{d}:{d+1}] offset:{mb*4096}'); lg.issue(('sw', mb))
        if cfg.epi2:
            if idx == 7: stage_reads(0)
            if idx == 9: out_store(0, 0); out_store(0, 1)
            if idx == 10: out_store(0, 2); out_store(0, 3)
            if idx == 15:
                stage_reads(1)
                for q in range(4): out_store(1, q)
        elif idx % 8 == 7:
            lg.need([('sw', mb)])
            stage_reads(mb)
            for q in range(4): out_store(mb, q)
    e('s_branch L_end')

    e('L_dma:')
    vm = Counter(e, 'vmcnt', 63); lg = Counter(e, 'lgkmcnt', 15)
    VXO = 2; FL = 4; VL16 = 10; PR = 16
    T = 96; PW = 64; PG = 72; U = 76; WPK = 84; X = 112; WD = 104
    e('s_sub_u32 s3, s3, 4')
    e(f'v_lshrrev_b32 v{T+4}, 2, v0')
    e(f'v_and_b32 v{T+5}, 3, v0')
    e(f'v_lshlrev_b32 v{T+6}, 11, v{T+4}')
    e(f'v_lshl_add_u32 v{T+6}, v{T+5}, 4, v{T+6}')
    e(f'v_lshlrev_b32 v{T+7}, 1, v{T+4}')
    for r in range(4): e(f'v_mov_b32 v{PG+r}, 0')
    e('s_lshl_b32 s38, s4, 16\ns_lshl_b32 s39, s5, 8\ns_add_u32 s38, s38, s39\ns_lshl_b32 s39, s3, 6\ns_add_u32 s38, s38, s39')
    e('s_add_u32 s39, s38, 0x8000')
    e('s_lshl_b32 s36, s4, 6')
    e('s_waitcnt lgkmcnt(0)')
    st(0)
    e(f'buffer_load_dwordx4 v[{PW}:{PW+3}], v{T+6}, s[12:15], s38 offen{cfg.ntslab}'); vm.issue('pw0')
    e(f'buffer_load_short_d16_hi v{PG}, v{T+7}, s[16:19], s36 offen'); vm.issue('pg0')
    e(f'buffer_load_dwordx4 v[{PW+4}:{PW+7}], v{T+6}, s[12:15], s39 offen{cfg.ntslab}'); vm.issue('pw1')
    e(f'buffer_load_short_d16_hi v{PG+1}, v{T+7}, s[16:19], s36 offen offset:32'); vm.issue('pg1')
    e(f'buffer_load_short_d16_hi v{PG+2}, v{T+7}, s[68:71], s36 offen'); vm.issue('pb')
    e(f'buffer_load_short_d16_hi v{PG+3}, v{T+7}, s[68:71], s36 offen offset:32'); vm.issue('pb')
    e(f's_load_dword s64, s[60:61], {WS_EPOCH}')
    e('v_lshrrev_b32 v8, 3, v0')
    e('v_lshlrev_b32 v8, 11, v8')
    e('v_and_b32 v9, 7, v0')
    e('v_lshrrev_b32 v11, 4, v0')
    e('v_xor_b32 v9, v9, v11')
    e(f'v_lshl_add_u32 v{VXO}, v9, 4, v8')
    e(f'v_xor_b32 v{VXO+1}, 64, v{VXO}')
    e(f'v_add_u32 v{VXO+1}, {16384-1024}, v{VXO+1}')
    e(f'v_lshlrev_b32 v{VL16}, 4, v0')
    e('s_lshl_b32 s37, s4, 18\ns_lshl_b32 s39, s3, 16\ns_add_u32 s50, s37, s39\ns_lshl_b32 s51, s3, 12')
    e(f's_lshl_b32 s37, s5, 18\ns_add_u32 s52, s37, s51\ns_add_u32 s52, s52, {WS_W}')
    def emit_ops(ops):
        for ins, tag in ops:
            e(ins)
            if tag: vm.issue(tag)
    def x_ops(q):
        slot = q % NS
        if not cfg.xdma: return []
        if cfg.xlin:
            o = [(f's_add_u32 m0, s51, {slot*32768}', None), (f's_lshl_b32 s54, s4, 18', None), (f's_add_u32 s54, s54, s51', None), (f's_add_u32 s54, s54, {q*16384}', None)]
            for j in range(4): o.append((f'buffer_load_dwordx4 v{VL16}, s[8:11], s54 offen offset:{1024*j} lds', ('x', q)))
            return o
        return [(f's_add_u32 m0, s51, {slot*32768}', None)] + [(i, None) for i in rot_off(54, 50, q, 7)] + [
                (f'buffer_load_dwordx4 v{VXO}, s[8:11], s54 offen{cfg.ntx} lds', ('x', q)),
                (f'buffer_load_dwordx4 v{VXO+1}, s[8:11], s54 offen offset:1024{cfg.ntx} lds', ('x', q)),
                (f's_add_u32 m0, s51, {slot*32768+2048}', None),
                (f's_add_u32 s54, s54, 32768', None),
                (f'buffer_load_dwordx4 v{VXO}, s[8:11], s54 offen{cfg.ntx} lds', ('x', q)),
                (f'buffer_load_dwordx4 v{VXO+1}, s[8:11], s54 offen offset:1024{cfg.ntx} lds', ('x', q))]
    wsc = '' if cfg.nosc1w else ' sc1'
    def w_ops(q):
        slot = q % NS
        if not cfg.wdma: return []
        o = [(f's_add_u32 m0, s51, {slot*32768+16384}', None)] + [(i, None) for i in rot_off(55, 52, q, 14)]
        for j in range(4):
            o.append((f'buffer_load_dwordx4 v{VL16}, s[60:63], s55 offen offset:{1024*j}{wsc}{cfg.ntw} lds', ('w', q)))
        return o
    e(f'v_and_b32 v{T+1}, 3, v{T+4}')
    e(f'v_lshlrev_b32 v{T+1}, 2, v{T+1}')
    e('s_lshl_b32 s37, s3, 2')
    e(f'v_add_u32 v{T+2}, s37, v{T+5}')
    e(f'v_xor_b32 v{T+1}, v{T+1}, v{T+2}')
    e(f'v_lshlrev_b32 v{T+1}, 4, v{T+1}')
    e(f'v_lshl_add_u32 v{WD}, v{T+4}, 8, v{T+1}')
    e(f's_lshl_b32 s38, s5, 18\ns_lshl_b32 s39, s4, 13\ns_add_u32 s38, s38, s39\ns_add_u32 s38, s38, {WS_W}')
    e('s_add_u32 s39, s38, 0x1000')
    for t in range(2):
        vm.need([f'pw{t}', f'pg{t}'])
        if t == 0: st(1)
        w = PW + 4 * t; gk = PG + t; u = U
        for i in range(4):
            e(f'v_lshlrev_b32 v{u+2*i}, 16, v{w+i}')
            e(f'v_and_b32 v{u+2*i+1}, s53, v{w+i}')
        for i in range(8): e(f'v_mul_f32 v{u+i}, v{gk}, v{u+i}')
        for i in range(4): e(f'v_cvt_pk_bf16_f32 v{WPK+4*t+i}, v{u+2*i}, v{u+2*i+1}')
        e(f'buffer_store_dwordx4 v[{WPK+4*t}:{WPK+4*t+3}], v{WD}, s[60:63], s{38+t} offen sc1'); vm.issue('wst')
    if cfg.statwhen == 's': e('s_barrier')
    st(2)
    vm.need(['wst'])
    st(3)
    e('s_waitcnt lgkmcnt(0)')
    e(f's_add_u32 s64, s64, {TAG_STEP}')
    e('s_barrier')
    e('s_cmp_lg_u32 s3, 0')
    e('s_cbranch_scc1 L_noflagw')
    e(f's_lshl_b32 s38, s5, 10\ns_lshl_b32 s39, s4, 2\ns_add_u32 s38, s38, s39\ns_add_u32 s38, s38, {WS_FW}')
    e(f'v_lshlrev_b32 v{T+1}, 7, v0')
    e(f'v_add_u32 v{T+1}, s38, v{T+1}')
    e(f'v_mov_b32 v{T+2}, s64')
    e('s_mov_b64 exec, 0xff')
    e(f'buffer_store_dword v{T+2}, v{T+1}, s[60:63], 0 offen sc1')
    e('s_mov_b64 exec, -1')
    e('L_noflagw:')
    st(4)
    ix = cfg.prex
    def partial_sums():
        for t in range(2):
            w = PW + 4 * t; bk = PG + 2 + t
            for i in range(4):
                e(f'v_lshlrev_b32 v{U+2*i}, 16, v{w+i}')
                e(f'v_and_b32 v{U+2*i+1}, s53, v{w+i}')
            for i in range(8):
                if t == 0: e(f'v_mul_f32 v{X+8+i}, v{bk}, v{U+i}')
                else: e(f'v_fmac_f32 v{X+8+i}, v{bk}, v{U+i}')
            for i in range(4):
                if t == 0:
                    e(f'v_lshlrev_b32 v{X+2*i}, 16, v{WPK+i}')
                    e(f'v_and_b32 v{X+2*i+1}, s53, v{WPK+i}')
                else:
                    e(f'v_lshlrev_b32 v{U+2*i}, 16, v{WPK+4+i}')
                    e(f'v_and_b32 v{U+2*i+1}, s53, v{WPK+4+i}')
            if t == 1:
                for i in range(8): e(f'v_add_f32 v{X+i}, v{X+i}, v{U+i}')
        e('s_nop 1')
        for j in range(8): e(f'v_permlane32_swap_b32 v{X+j}, v{X+8+j}')
        e('s_nop 1')
        for j in range(8): e(f'v_add_f32 v{X+j}, v{X+j}, v{X+8+j}')
        e('s_nop 1')
        for j in range(4): e(f'v_permlane16_swap_b32 v{X+j}, v{X+4+j}')
        e('s_nop 1')
        for j in range(4): e(f'v_add_f32 v{X+j}, v{X+j}, v{X+4+j}')
        for rot in (8, 4):
            e('s_nop 1')
            for j in range(4): e(f'v_add_f32_dpp v{X+j}, v{X+j}, v{X+j} row_ror:{rot} row_mask:0xf bank_mask:0xf')
        e(f'v_lshrrev_b32 v{T+1}, 4, v0')
        e(f'v_lshrrev_b32 v{T+2}, 1, v{T+1}')
        e(f'v_lshlrev_b32 v{T+2}, 9, v{T+2}')
        e(f'v_and_b32 v{T+1}, 1, v{T+1}')
        e(f'v_lshl_add_u32 v{T+2}, v{T+1}, 4, v{T+2}')
        e(f'v_lshl_add_u32 v{T+2}, v{T+5}, 5, v{T+2}')
        e('s_lshl_b32 s38, s5, 5\ns_add_u32 s38, s38, s4\ns_lshl_b32 s38, s38, 10\ns_lshl_b32 s39, s3, 7\ns_add_u32 s38, s38, s39')
        e(f's_add_u32 s38, s38, {WS_PART}')
        e(f'v_and_b32 v{T+1}, 15, v0')
        e(f'v_cmp_gt_u32 vcc, 4, v{T+1}')
        e('s_and_saveexec_b64 s[76:77], vcc')
        e(f'buffer_store_dwordx4 v[{X}:{X+3}], v{T+2}, s[60:63], s38 offen sc1'); vm.issue('pst')
        e('s_mov_b64 exec, -1')
    if not cfg.partlate: partial_sums()
    for q in range(cfg.prex, cfg.prex + cfg.xd):
        emit_ops(x_ops(q)); ix += 1
    if cfg.codepf:
        e('s_getpc_b64 s[78:79]')
        e('L_pc:')
        e('s_sub_u32 s78, s78, L_pc-' + KNAME)
        e('s_subb_u32 s79, s79, 0')
        e('v_lshlrev_b32 v12, 7, v0')
        e('s_lshl_b32 s38, s3, 13')
        e('v_add_u32 v12, s38, v12')
        e('CODEPF')
    e(f'v_lshlrev_b32 v{FL+2}, 2, v0')
    e('s_cmp_eq_u32 s3, 0')
    e('s_cselect_b32 s37, 0, 0x7fff0000')
    e(f's_lshl_b32 s38, s5, 9\ns_add_u32 s38, s38, {WS_FC}\ns_add_u32 s38, s38, s37')
    e('v_lshlrev_b32 v13, 3, v0')
    e(f'v_add_u32 v{FL+4}, s38, v13')
    e(f's_lshl_b32 s38, s4, 7\ns_add_u32 s38, s38, {WS_FR}\ns_add_u32 s38, s38, s37')
    e('v_and_b32 v13, 31, v0')
    e('v_lshlrev_b32 v13, 2, v13')
    e(f'v_add_u32 v{FL+5}, s38, v13')
    if cfg.wait_flags:
        e('s_cmp_lg_u32 s3, 0')
        e('s_cbranch_scc1 L_notpoller')
        e('v_and_b32 v12, 31, v0')
        if cfg.G1 < 32: e(f'v_min_u32 v12, {cfg.G1-1}, v12')
        e('v_lshlrev_b32 v12, 2, v12')
        e(f's_lshl_b32 s39, s5, 10\ns_lshr_b32 s37, s4, 2\ns_lshl_b32 s37, s37, 7\ns_add_u32 s39, s39, s37\ns_add_u32 s39, s39, {WS_FW}')
        e(f's_mov_b32 s38, {cfg.spin}')
        if cfg.polldelay: e(f's_sleep {cfg.polldelay}')
        n = cfg.pipepoll
        for i in range(n - 1):
            e(f'buffer_load_dword v{16+i}, v12, s[60:63], s39 offen sc1')
            e(f's_sleep {cfg.pollgap}')
        e('L_spin_w:')
        for i in range(n):
            e(f'buffer_load_dword v{16+(i+n-1)%n}, v12, s[60:63], s39 offen sc1')
            e(f's_waitcnt vmcnt({n-1})')
            e(f'v_cmp_eq_u32 vcc, s64, v{16+i}')
            e('s_cmp_eq_u64 vcc, -1')
            e('s_cbranch_scc1 L_found_w')
            if n > 1: e(f's_sleep {cfg.pollgap}')
            elif cfg.sleep: e(f's_sleep {cfg.sleep}')
        e('s_sub_u32 s38, s38, 1')
        e('s_cmp_lg_u32 s38, 0')
        e('s_cbranch_scc1 L_spin_w')
        e('L_found_w:')
        e('s_branch L_ready_w')
        e('L_notpoller:')
        if not cfg.partlate: e('s_waitcnt vmcnt(0)')
        e('L_ready_w:')
    if cfg.stamps: e('s_memtime s[58:59]')
    def fc_tag():
        e(f's_lshl_b32 s38, s5, 9\ns_lshl_b32 s39, s4, 4\ns_add_u32 s38, s38, s39\ns_lshl_b32 s39, s3, 2\ns_add_u32 s38, s38, s39\ns_add_u32 s38, s38, {WS_FC}')
        tagstore(T + 1, 38)
    if not cfg.partlate:
        if not cfg.wait_flags: e('s_waitcnt vmcnt(0)')
        vm.q = []
        fc_tag()
    else:
        vm.q = []
    e('s_barrier')
    iw = 0
    for q in range(cfg.prew):
        emit_ops(w_ops(q)); iw += 1
    if cfg.partlate: partial_sums()
    vm.need([('w', 0)])
    if cfg.prex == 0 and cfg.xd == 0:
        pass
    if cfg.dprio: e(f's_setprio {cfg.dprio}')
    e('s_barrier')
    if cfg.stamps: e('s_memtime s[42:43]')
    if cfg.G1 < 32:
        e('v_and_b32 v13, 31, v0')
        e('v_lshlrev_b32 v13, 2, v13')
        e('s_cmp_eq_u32 s3, 0')
        e('s_cselect_b32 s37, 0, 0x7fff0000')
        e(f's_lshl_b32 s39, s5, 10\ns_lshr_b32 s38, s4, 2\ns_lshl_b32 s38, s38, 7\ns_add_u32 s39, s39, s38\ns_add_u32 s39, s39, {WS_FW}\ns_add_u32 s39, s39, s37')
        e('v_add_u32 v57, s39, v13')
    P2C = cfg.G1 // 2 - cfg.LA - 1 if cfg.G1 < 32 else -1
    PO = 58
    def check_final():
        e(f'v_cmp_eq_u32 vcc, s64, v{PO}')
        e(f'v_cmp_eq_u32 s[76:77], s64, v{PO+1}')
        e(f'v_cmp_eq_u32 s[80:81], s64, v{PO+2}')
        e('s_and_b64 vcc, vcc, s[76:77]')
        e('s_and_b64 vcc, vcc, s[80:81]')
        e('s_cmp_eq_u64 vcc, -1')
    for p in range(NST - 1):
        if cfg.wpf and p + cfg.wpf < NST:
            e(f's_add_u32 s56, s57, {(p + cfg.wpf) * 16384}')
            e(f'buffer_load_dwordx4 v[120:123], v{VL16}, s[60:63], s56 offen sc1'); vm.issue(('pf', p))
        if cfg.partlate and p == 2:
            vm.need(['pst']); fc_tag()
        lim = min(NST - 1, p + cfg.LA)
        for _ in range(2):
            if iw <= lim:
                assert iw < cfg.G1 // 2 or p > P2C, (p, iw)
                emit_ops(w_ops(iw)); iw += 1
            if ix <= lim:
                emit_ops(x_ops(ix)); ix += 1
        if p == cfg.P2I and cfg.G1 < 32:
            e('buffer_load_dword v61, v57, s[60:63], 0 offen sc1'); vm.issue('poll2')
        if p == P2C and cfg.G1 < 32:
            vm.need(['poll2'])
            e('s_cmp_lg_u32 s3, 0')
            e('s_cbranch_scc1 L_ready_w2')
            e('v_cmp_eq_u32 vcc, s64, v61')
            e('s_cmp_eq_u64 vcc, -1')
            e('s_cbranch_scc1 L_ready_w2')
            if cfg.wait_flags:
                e(f's_mov_b32 s38, {cfg.spin}')
                e('L_spin_w2:')
                e('buffer_load_dword v61, v57, s[60:63], 0 offen sc1')
                e('s_waitcnt vmcnt(0)')
                e('v_cmp_eq_u32 vcc, s64, v61')
                e('s_cmp_eq_u64 vcc, -1')
                e('s_cbranch_scc1 L_ready_w2')
                e('s_sub_u32 s38, s38, 1')
                e('s_cmp_lg_u32 s38, 0')
                e('s_cbranch_scc1 L_spin_w2')
            e('L_ready_w2:')
        if p == cfg.PP:
            e(f'buffer_load_dwordx2 v[{PO}:{PO+1}], v{FL+4}, s[60:63], 0 offen sc1'); vm.issue('poll')
            e(f'buffer_load_dword v{PO+2}, v{FL+5}, s[60:63], 0 offen sc1'); vm.issue('poll')
        if p == cfg.PC:
            vm.need(['poll'])
            e('s_cmp_lg_u32 s3, 0')
            e('s_cbranch_scc1 L_ready_a')
            check_final()
            e('s_cbranch_scc1 L_ready_a')
            if cfg.wait_flags:
                e(f's_mov_b32 s38, {cfg.spin}')
                e('L_spin_a:')
                e(f'buffer_load_dwordx2 v[{PO}:{PO+1}], v{FL+4}, s[60:63], 0 offen sc1')
                e(f'buffer_load_dword v{PO+2}, v{FL+5}, s[60:63], 0 offen sc1')
                e('s_waitcnt vmcnt(0)')
                check_final()
                e('s_cbranch_scc1 L_ready_a')
                e('s_sub_u32 s38, s38, 1')
                e('s_cmp_lg_u32 s38, 0')
                e('s_cbranch_scc1 L_spin_a')
            e('L_ready_a:')
        if p == cfg.PL:
            e('v_lshrrev_b32 v12, 4, v0')
            e('v_lshlrev_b32 v12, 10, v12')
            e('v_and_b32 v13, 15, v0')
            e('v_lshl_add_u32 v12, v13, 4, v12')
            e(f's_lshl_b32 s38, s5, 15\ns_lshl_b32 s39, s3, 8\ns_add_u32 s38, s38, s39\ns_add_u32 s38, s38, {WS_PART}')
            for t in range(8):
                if t: e('s_add_u32 s38, s38, 0x1000')
                e(f'buffer_load_dwordx4 v[{PR+8+4*t}:{PR+8+4*t+3}], v12, s[60:63], s38 offen sc1'); vm.issue('pp')
            e('s_lshl_b32 s38, s4, 10\ns_lshl_b32 s39, s3, 8\ns_add_u32 s38, s38, s39')
            e(f'buffer_load_dword v{PR+40}, v{FL+2}, s[60:63], s38 offen sc1'); vm.issue('ps')
        if p == cfg.PS:
            vm.need(['pp', 'ps'])
            P = PR + 8
            for h in (16, 8, 4):
                for i in range(h): e(f'v_add_f32 v{P+i}, v{P+i}, v{P+h+i}')
            e('s_nop 1')
            e(f'v_permlane32_swap_b32 v{P}, v{P+2}\nv_permlane32_swap_b32 v{P+1}, v{P+3}')
            e('s_nop 1')
            e(f'v_add_f32 v{P}, v{P}, v{P+2}\nv_add_f32 v{P+1}, v{P+1}, v{P+3}')
            e('s_nop 1')
            e(f'v_permlane16_swap_b32 v{P}, v{P+1}')
            e('s_nop 1')
            e(f'v_add_f32 v{P}, v{P}, v{P+1}')
            e('v_lshrrev_b32 v12, 4, v0')
            e('v_and_b32 v13, 15, v0')
            e('v_lshlrev_b32 v13, 4, v13')
            e('v_lshl_add_u32 v12, v12, 2, v13')
            e(f's_lshl_b32 s38, s3, 8\ns_add_u32 s39, s38, {TAB}')
            e('v_add_u32 v12, s39, v12')
            e(f'ds_write_b32 v12, v{P}'); lg.issue('tab')
            e(f's_add_u32 s39, s38, {TAB+1024}')
            e(f'v_add_u32 v13, s39, v{FL+2}')
            e(f'ds_write_b32 v13, v{PR+40}'); lg.issue('tab')
            lg.drain()
        vm.need([('w', p + 1)])
        if p + 1 >= cfg.prex: vm.need([('x', p + 1)])
        e('s_barrier')
    assert ix == NST and iw == NST
    if cfg.stamps: e('s_memtime s[44:45]')
    e('s_or_b32 s38, s2, s3')
    e('s_cmp_lg_u32 s38, 0')
    e('s_cbranch_scc1 L_noepoch')
    e('v_lshrrev_b32 v12, 3, v0')
    e('v_lshlrev_b32 v12, 10, v12')
    e('v_and_b32 v13, 7, v0')
    e('v_lshl_add_u32 v12, v13, 4, v12')
    e(f's_mov_b32 s38, {cfg.spin}')
    e('L_spin_e:')
    e(f's_mov_b32 s39, {WS_FW}')
    e('buffer_load_dwordx4 v[16:19], v12, s[60:63], s39 offen sc1')
    e('s_waitcnt vmcnt(0)')
    e('s_mov_b64 s[76:77], -1')
    for i in range(4):
        e(f'v_cmp_eq_u32 vcc, s64, v{16+i}')
        e('s_and_b64 s[76:77], s[76:77], vcc')
    e('s_cmp_eq_u64 s[76:77], -1')
    e('s_cbranch_scc1 L_doepoch')
    e('s_sub_u32 s38, s38, 1')
    e('s_cmp_lg_u32 s38, 0')
    e('s_cbranch_scc1 L_spin_e')
    e('L_doepoch:')
    e(f'v_mov_b32 v12, {WS_EPOCH}')
    e('v_mov_b32 v13, s64')
    e('s_mov_b64 exec, 1')
    e('buffer_store_dword v13, v12, s[60:63], 0 offen sc1')
    e('s_mov_b64 exec, -1')
    e('L_noepoch:')
    e('L_end:')
    if cfg.stamps:
        e('s_waitcnt vmcnt(0) lgkmcnt(0)')
        e('s_memtime s[46:47]')
        e('s_memrealtime s[56:57]')
        e('s_waitcnt lgkmcnt(0)')
        e('s_sub_u32 s42, s42, s40\ns_sub_u32 s44, s44, s40\ns_sub_u32 s46, s46, s40\ns_sub_u32 s58, s58, s40')
        e('v_mov_b32 v4, s42\nv_mov_b32 v5, s44\nv_mov_b32 v6, s46\nv_mov_b32 v7, s48\nv_mov_b32 v8, s56\nv_mov_b32 v9, s58\nv_mov_b32 v10, 0\nv_mov_b32 v11, 0')
        for i in range(5): e(f's_sub_u32 s{82+2*i}, s{82+2*i}, s40\nv_mov_b32 v{16+i}, s{82+2*i}')
        e(f's_lshl_b32 s65, s2, 3\ns_add_u32 s65, s65, s66\ns_lshl_b32 s65, s65, 6\ns_add_u32 s65, s65, {WS_STAMP}')
        e('v_mov_b32 v12, s65')
        e('s_mov_b64 exec, 1')
        e('buffer_store_dwordx4 v[4:7], v12, s[60:63], 0 offen')
        e('buffer_store_dwordx4 v[8:11], v12, s[60:63], 0 offen offset:16')
        e('buffer_store_dwordx4 v[16:19], v12, s[60:63], 0 offen offset:32')
        e('buffer_store_dwordx4 v[20:23], v12, s[60:63], 0 offen offset:48')
    e('L_exit:')
    e('s_endpgm')
    e('L_codeend:')
    e('.section .rodata,"a"')
    e(f'.p2align 6\n.amdhsa_kernel {KNAME}')
    e('  .amdhsa_next_free_vgpr 224\n  .amdhsa_next_free_sgpr 96\n  .amdhsa_accum_offset 224')
    e('  .amdhsa_group_segment_fixed_size 0\n  .amdhsa_kernarg_size 56\n  .amdhsa_user_sgpr_count 2')
    e('  .amdhsa_user_sgpr_kernarg_segment_ptr 1\n  .amdhsa_system_sgpr_workgroup_id_x 1\n.end_amdhsa_kernel')
    txt = e.text()
    pf = (f'v_cmp_gt_u32 vcc, L_codeend-{KNAME}, v12\n'
          's_and_saveexec_b64 s[80:81], vcc\n'
          's_cbranch_execz L_nopf\n'
          'global_load_dword v11, v12, s[78:79]\n'
          'L_nopf:\n'
          's_mov_b64 exec, -1')
    txt = txt.replace('CODEPF', pf)
    return txt

if __name__ == '__main__':
    import ast
    kw = {}
    for a in sys.argv[1:]:
        k, v = a.split('=')
        kw[k] = ast.literal_eval(v)
    print(gen(Cfg(**kw)))
```

```python
import sys
sys.path.insert(0, 'gen')
from asmlib import Emitter, Counter

KNAME = 'standalone__layernorm_linear__prompt_kernel'
WS_STATS = 0
WS_EPOCH = 0x8000
WS_FW = 0xC000
WS_FC = 0xA000
WS_FR = 0xB000
WS_FT = 0xE000
WS_FIN = 0x60000
WS_PART = 0x10000
WS_STAMP = 0x80000
WS_W = 0x100000
TAG_STEP = 0x9E3779B9

HEADER = '''; LayerNorm(x)*g + b followed by @ w, fused in one launch.
;
;
;
'''

class Cfg:
    NS = 5
    PP = 5
    PC = 9
    PL = 10
    PS = 14
    prew = 3
    prex = 5
    statsplit = 8
    statwhen = 's'
    polldelay = 0
    ntstat = ''; ntslab = ''; ntx = ''; ntout = ' sc1 nt'; ntw = ''
    prex1 = 2
    statdelay0 = 0
    two = True
    TA = (1, 3, 5, 7)
    TBP = (10, 12, 14)
    npp = 8
    half = 0
    SB = 4
    slate = False
    xd = 0
    dprio = 0
    epi2 = True
    LA = 3
    bwearly = False
    partlate = False
    G1 = 16
    P2I = 1
    krot = 0
    xlin = False
    nosc1w = False
    wpf = 0
    xearly = 0
    onepass = True
    xlate = False
    pipepoll = 1
    pollgap = 6
    stamps = False
    xmap = 0
    codepf = False
    mfma = True; reads = True; xdma = True; wdma = True
    wait_flags = True
    earlywait = True
    sleep = 0
    spin = 40000
    def __init__(self, **kw):
        for k, v in kw.items():
            assert hasattr(self, k), k
            setattr(self, k, v)


def gen(cfg):
    e = Emitter()
    def st(i):
        if cfg.stamps: e(f's_memtime s[{82+2*i}:{83+2*i}]')
    NS = cfg.NS; NST = 16
    LDS = NS * 32768
    assert NS == 5
    TAB = ((NST - 5) % NS) * 32768
    STG = ((NST - 4) % NS) * 32768
    e(HEADER.rstrip())
    e(f'; @launch grid=(256,1,1) block=(512,1,1) lds={LDS}')
    e('.amdgcn_target "amdgcn-amd-amdhsa--gfx950"\n.text')
    e(f'.globl {KNAME}\n.p2align 8\n.type {KNAME},@function\n{KNAME}:')
    e('s_cmp_ge_u32 s2, 0x100')
    e('s_cbranch_scc1 L_exit')
    if cfg.stamps: e('s_memtime s[40:41]\ns_memrealtime s[48:49]')
    e('s_load_dwordx2 s[12:13], s[0:1], 24')
    e('s_load_dwordx2 s[16:17], s[0:1], 8')
    e('s_load_dwordx2 s[8:9], s[0:1], 0')
    e('s_load_dwordx2 s[68:69], s[0:1], 16')
    e('s_load_dwordx2 s[60:61], s[0:1], 48')
    e('s_load_dwordx2 s[20:21], s[0:1], 32')
    e('v_lshrrev_b32 v1, 6, v0')
    e('v_and_b32 v0, 63, v0')
    e('v_readfirstlane_b32 s3, v1')
    e('s_mov_b32 s10, 0x800000\ns_mov_b32 s11, 0x20000')
    e('s_mov_b32 s14, 0x200000\ns_mov_b32 s15, 0x20000')
    e('s_mov_b32 s18, 0x800\ns_mov_b32 s19, 0x20000')
    e('s_mov_b32 s70, 0x800\ns_mov_b32 s71, 0x20000')
    e('s_mov_b32 s22, 0x800000\ns_mov_b32 s23, 0x20000')
    e('s_mov_b32 s62, 0x300000\ns_mov_b32 s63, 0x20000')
    e('s_and_b32 s4, s2, 7')
    e('s_lshr_b32 s5, s2, 3')
    if cfg.xmap == 0:
        e('s_and_b32 s6, s5, 3\ns_lshl_b32 s4, s4, 2\ns_add_u32 s4, s4, s6\ns_lshr_b32 s5, s5, 2')
    else:
        e('s_and_b32 s6, s5, 7\ns_lshr_b32 s7, s4, 1\ns_lshl_b32 s7, s7, 3\ns_add_u32 s6, s6, s7')
        e('s_and_b32 s4, s4, 1\ns_lshl_b32 s4, s4, 2\ns_lshr_b32 s5, s5, 3\ns_add_u32 s5, s5, s4\ns_mov_b32 s4, s6')
    e('s_mov_b32 s66, s3')
    if cfg.krot: e(f's_and_b32 s67, s4, 3\ns_mul_i32 s67, s67, {cfg.krot}')
    e('s_mov_b32 s53, 0xffff0000')
    e('s_cmp_ge_u32 s3, 4')
    e('s_cbranch_scc1 L_dma')

    def rot_off(dst, base, q, shift, extra=0):
        if not cfg.krot: return [f's_add_u32 s{dst}, s{base}, {(q << shift) + extra}']
        o = [f's_add_u32 s{dst}, s67, {q}', f's_and_b32 s{dst}, s{dst}, 15', f's_lshl_b32 s{dst}, s{dst}, {shift}', f's_add_u32 s{dst}, s{dst}, s{base}']
        if extra: o.append(f's_add_u32 s{dst}, s{dst}, {extra}')
        return o

    def tagstore(vtmp, addr_sgpr):
        e(f'v_mov_b32 v{vtmp}, s{addr_sgpr}')
        e(f'v_mov_b32 v{vtmp+1}, s64')
        e('s_mov_b64 exec, 1')
        e(f'buffer_store_dword v{vtmp+1}, v{vtmp}, s[60:63], 0 offen sc1')
        e('s_mov_b64 exec, -1')

    ACC = 0; FR = 64; XA = 96; WA = 108; LN = 114; TA_ = 115
    lg = Counter(e, 'lgkmcnt', 15); vm = Counter(e, 'vmcnt', 63)
    T = 116
    e(f'v_mov_b32 v{LN}, v0')
    X = 128; L = 160; A = 192; RW_ = 204; I16 = 205
    e(f'v_lshrrev_b32 v{T}, 4, v{LN}')
    e(f'v_and_b32 v{I16}, 15, v{LN}')
    e('s_lshl_b32 s38, s4, 7\ns_lshl_b32 s39, s5, 4\ns_add_u32 s38, s38, s39\ns_lshl_b32 s39, s3, 2\ns_add_u32 s38, s38, s39')
    e(f'v_add_u32 v{RW_}, s38, v{T}')
    e(f'v_lshlrev_b32 v{T+11}, 11, v{RW_}')
    e(f'v_lshl_add_u32 v{T+11}, v{I16}, 4, v{T+11}')
    e('s_and_b32 s6, s3, 1')
    e('s_lshr_b32 s7, s3, 1')
    e(f'v_and_b32 v{T+1}, 31, v{LN}')
    e(f'v_lshrrev_b32 v{T+2}, 5, v{LN}')
    e(f'v_bfe_u32 v{T+3}, v{LN}, 1, 3')
    e(f'v_xor_b32 v{T+3}, v{T+3}, v{T+2}')
    e(f'v_lshlrev_b32 v{T+3}, 4, v{T+3}')
    e('s_lshl_b32 s37, s6, 13')
    e(f'v_lshl_add_u32 v{T+9}, v{T+1}, 7, v{T+3}')
    e(f'v_add_u32 v{XA}, s37, v{T+9}')
    for ks in range(1, 4): e(f'v_xor_b32 v{XA+ks}, {32*ks}, v{XA}')
    for w in range(1, 3):
        for ks in range(4): e(f'v_add_u32 v{XA+4*w+ks}, {0x10000*w}, v{XA+ks}')
    e(f'v_lshrrev_b32 v{T+1}, 4, v{LN}')
    e(f'v_bfe_u32 v{T+2}, v{LN}, 2, 2')
    e(f'v_and_b32 v{T+3}, 3, v{LN}')
    e(f'v_lshrrev_b32 v{T+9}, 1, v{T+1}')
    e(f'v_lshl_add_u32 v{T+9}, v{T+9}, 3, v{T+2}')
    e(f'v_lshlrev_b32 v{T+9}, 8, v{T+9}')
    e(f'v_and_b32 v{T+1}, 1, v{T+1}')
    e(f'v_lshlrev_b32 v{T+1}, 1, v{T+1}')
    e(f'v_lshrrev_b32 v{T+10}, 1, v{T+3}')
    e(f'v_add_u32 v{T+1}, v{T+1}, v{T+10}')
    e('s_lshl_b32 s37, s7, 3')
    e(f'v_add_u32 v{T+1}, s37, v{T+1}')
    e(f'v_lshlrev_b32 v{T+2}, 2, v{T+2}')
    e(f'v_xor_b32 v{T+1}, v{T+1}, v{T+2}')
    e(f'v_lshlrev_b32 v{T+1}, 4, v{T+1}')
    e(f'v_and_b32 v{T+3}, 1, v{T+3}')
    e(f'v_lshl_add_u32 v{T+1}, v{T+3}, 3, v{T+1}')
    e(f'v_add_u32 v{T+1}, v{T+1}, v{T+9}')
    e(f'v_add_u32 v{WA}, 0x4000, v{T+1}')
    e(f'v_xor_b32 v{WA+1}, 64, v{WA}')
    for w in range(1, 3):
        for nb in range(2): e(f'v_add_u32 v{WA+2*w+nb}, {0x10000*w}, v{WA+nb}')
    e(f'v_lshrrev_b32 v{T+1}, 5, v{LN}')
    e(f'v_lshlrev_b32 v{T+1}, 4, v{T+1}')
    e(f's_lshl_b32 s37, s7, 8\ns_add_u32 s37, s37, {TAB}')
    e(f'v_add_u32 v{TA_}, s37, v{T+1}')
    e('s_waitcnt lgkmcnt(0)')
    st(0)
    e(f's_load_dword s64, s[60:61], {WS_EPOCH}')
    def sload(j):
        e(f'buffer_load_dwordx4 v[{X+4*j}:{X+4*j+3}], v{T+11}, s[8:11], 0 offen offset:{256*j}{cfg.ntstat}'); vm.issue(('sx', j))
    VX = 208
    e(f'v_lshrrev_b32 v{T+1}, 3, v{LN}')
    e(f'v_lshlrev_b32 v{T+1}, 11, v{T+1}')
    e(f'v_and_b32 v{T+2}, 7, v{LN}')
    e(f'v_lshrrev_b32 v{T+3}, 4, v{LN}')
    e(f'v_xor_b32 v{T+2}, v{T+2}, v{T+3}')
    e(f'v_lshl_add_u32 v{VX}, v{T+2}, 4, v{T+1}')
    e(f'v_xor_b32 v{VX+1}, 64, v{VX}')
    e(f'v_add_u32 v{VX+1}, {16384-1024}, v{VX+1}')
    e('s_lshl_b32 s37, s4, 18\ns_lshl_b32 s39, s3, 16\ns_add_u32 s50, s37, s39\ns_lshl_b32 s51, s3, 12')
    def cx(q):
        slot = q % NS
        e(f's_add_u32 m0, s51, {slot*32768}')
        for ins in rot_off(54, 50, q, 7): e(ins)
        e(f'buffer_load_dwordx4 v{VX}, s[8:11], s54 offen{cfg.ntx} lds'); vm.issue(('x', q))
        e(f'buffer_load_dwordx4 v{VX+1}, s[8:11], s54 offen offset:1024{cfg.ntx} lds'); vm.issue(('x', q))
        e(f's_add_u32 m0, s51, {slot*32768+2048}')
        e(f's_add_u32 s54, s54, 32768')
        e(f'buffer_load_dwordx4 v{VX}, s[8:11], s54 offen{cfg.ntx} lds'); vm.issue(('x', q))
        e(f'buffer_load_dwordx4 v{VX+1}, s[8:11], s54 offen offset:1024{cfg.ntx} lds'); vm.issue(('x', q))
    def stats_rest():
        M = A + 8; V = A + 10
        vm.need([('sx', 7)])
        e('s_mov_b32 s39, 0x3f803f80')
        for j in range(cfg.half, 8):
            for i in range(4): e(f'v_dot2c_f32_bf16 v{A+i}, s39, v{X+4*j+i}')
            for i in range(4): e(f'v_dot2c_f32_bf16 v{A+4+i}, v{X+4*j+i}, v{X+4*j+i}')
        e('s_nop 2')
        e(f'v_add_f32 v{A}, v{A}, v{A+1}\nv_add_f32 v{A+2}, v{A+2}, v{A+3}')
        e(f'v_add_f32 v{A+4}, v{A+4}, v{A+5}\nv_add_f32 v{A+6}, v{A+6}, v{A+7}')
        e(f'v_add_f32 v{M}, v{A}, v{A+2}\nv_add_f32 v{V+1}, v{A+4}, v{A+6}')
        for rot in (8, 4, 2, 1):
            e('s_nop 0')
            e(f'v_add_f32_dpp v{M}, v{M}, v{M} row_ror:{rot} row_mask:0xf bank_mask:0xf')
            e(f'v_add_f32_dpp v{V+1}, v{V+1}, v{V+1} row_ror:{rot} row_mask:0xf bank_mask:0xf')
            e('s_nop 0')
        e(f'v_mul_f32 v{M}, 0xba800000, v{M}')
        e(f'v_mul_f32 v{V+1}, 0x3a800000, v{V+1}')
        e(f'v_fma_f32 v{V+1}, -v{M}, v{M}, v{V+1}')
        e(f'v_max_f32 v{V+1}, 0, v{V+1}')
        e(f'v_add_f32 v{V+1}, 0x3727c5ac, v{V+1}')
        e(f'v_rsq_f32 v{V}, v{V+1}')
        e('s_nop 0')
        e(f'v_mul_f32 v{V+1}, v{M}, v{V}')
        e(f'v_lshlrev_b32 v{RW_}, 3, v{RW_}')
        e(f'v_cmp_eq_u32 vcc, 0, v{I16}')
        e('s_and_saveexec_b64 s[76:77], vcc')
        e(f'buffer_store_dwordx2 v[{V}:{V+1}], v{RW_}, s[60:63], 0 offen sc1'); vm.issue('st')
        e('s_mov_b64 exec, -1')
    def stats_tag():
        vm.need(['st'])
        e(f's_lshl_b32 s38, s4, 7\ns_lshl_b32 s39, s5, 4\ns_add_u32 s38, s38, s39\ns_lshl_b32 s39, s3, 2\ns_add_u32 s38, s38, s39\ns_add_u32 s38, s38, {WS_FR}')
        tagstore(T + 1, 38)
    if cfg.half:
        H = cfg.half
        e('s_barrier')
        for j in range(H): sload(j)
        e('s_barrier')
        st(1)
        e('s_mov_b32 s39, 0x3f803f80')
        for a in range(8): e(f'v_mov_b32 v{A+a}, 0')
        vm.need([('sx', H - 1)])
        st(2)
        for j in range(H):
            for i in range(4): e(f'v_dot2c_f32_bf16 v{A+i}, s39, v{X+4*j+i}')
            for i in range(4): e(f'v_dot2c_f32_bf16 v{A+4+i}, v{X+4*j+i}, v{X+4*j+i}')
        for q in range(cfg.prex): cx(q)
        e('s_waitcnt lgkmcnt(0)')
        e(f's_add_u32 s64, s64, {TAG_STEP}')
        st(3)
        e('s_barrier')
        e('s_waitcnt vmcnt(0)')
        vm.q = []
    else:
        if cfg.statwhen == '0':
            if cfg.statdelay0: e(f's_sleep {cfg.statdelay0}')
            for j in range(8): sload(j)
            e('s_barrier')
        else:
            if cfg.slate:
                assert cfg.statwhen == 's' and cfg.statsplit == 8
                e('s_cmp_lt_u32 s4, 16')
                e('s_cbranch_scc1 L_searly')
                for j in range(8): e(f'buffer_load_dwordx4 v[{X+4*j}:{X+4*j+3}], v{T+11}, s[8:11], 0 offen offset:{256*j}{cfg.ntstat}')
                e('s_barrier')
                e('s_branch L_sjoin')
                e('L_searly:')
                e('s_barrier')
                for j in range(8): sload(j)
                e('L_sjoin:')
                e('s_barrier')
            else:
                if cfg.statwhen == 's': e('s_barrier')
                else: e('s_barrier')
                for j in range(cfg.statsplit): sload(j)
                if cfg.statwhen == 's': e('s_barrier')
            if cfg.statsplit < 8:
                vm.need([('sx', 0)])
                for j in range(cfg.statsplit, 8): sload(j)
        for q in range(cfg.xearly): cx(q)
        st(1)
        if cfg.bwearly: e('s_barrier')
        vm.need([('sx', 7)])
        st(2)
        for q in range(cfg.xearly, cfg.prex1): cx(q)
        M = A + 8; V = A + 10
        if cfg.onepass:
            e('s_mov_b32 s39, 0x3f803f80')
            for a in range(8): e(f'v_mov_b32 v{A+a}, 0')
            for j in range(8):
                for i in range(4): e(f'v_dot2c_f32_bf16 v{A+i}, s39, v{X+4*j+i}')
                for i in range(4): e(f'v_dot2c_f32_bf16 v{A+4+i}, v{X+4*j+i}, v{X+4*j+i}')
            e('s_nop 2')
            e(f'v_add_f32 v{A}, v{A}, v{A+1}\nv_add_f32 v{A+2}, v{A+2}, v{A+3}')
            e(f'v_add_f32 v{A+4}, v{A+4}, v{A+5}\nv_add_f32 v{A+6}, v{A+6}, v{A+7}')
            e(f'v_add_f32 v{M}, v{A}, v{A+2}\nv_add_f32 v{V+1}, v{A+4}, v{A+6}')
            for rot in (8, 4, 2, 1):
                e('s_nop 0')
                e(f'v_add_f32_dpp v{M}, v{M}, v{M} row_ror:{rot} row_mask:0xf bank_mask:0xf')
                e(f'v_add_f32_dpp v{V+1}, v{V+1}, v{V+1} row_ror:{rot} row_mask:0xf bank_mask:0xf')
                e('s_nop 0')
            e(f'v_mul_f32 v{M}, 0xba800000, v{M}')
            e(f'v_mul_f32 v{V+1}, 0x3a800000, v{V+1}')
            e(f'v_fma_f32 v{V+1}, -v{M}, v{M}, v{V+1}')
            e(f'v_max_f32 v{V+1}, 0, v{V+1}')
            e(f'v_add_f32 v{V+1}, 0x3727c5ac, v{V+1}')
        else:
            for d in range(32):
                e(f'v_lshlrev_b32 v{L+d}, 16, v{X+d}')
                e(f'v_and_b32 v{X+d}, s53, v{X+d}')
            for a in range(4):
                e(f'v_pk_add_f32 v[{A+2*a}:{A+2*a+1}], v[{X+2*a}:{X+2*a+1}], v[{L+2*a}:{L+2*a+1}]')
            for d in range(8, 32, 2):
                a = (d // 2) % 4
                e(f'v_pk_add_f32 v[{A+2*a}:{A+2*a+1}], v[{A+2*a}:{A+2*a+1}], v[{X+d}:{X+d+1}]')
                e(f'v_pk_add_f32 v[{A+2*a}:{A+2*a+1}], v[{A+2*a}:{A+2*a+1}], v[{L+d}:{L+d+1}]')
            def fold(dst):
                e(f'v_pk_add_f32 v[{A}:{A+1}], v[{A}:{A+1}], v[{A+2}:{A+3}]')
                e(f'v_pk_add_f32 v[{A+4}:{A+5}], v[{A+4}:{A+5}], v[{A+6}:{A+7}]')
                e(f'v_pk_add_f32 v[{A}:{A+1}], v[{A}:{A+1}], v[{A+4}:{A+5}]')
                e(f'v_add_f32 v{dst}, v{A}, v{A+1}')
                for rot in (8, 4, 2, 1):
                    e('s_nop 1')
                    e(f'v_add_f32_dpp v{dst}, v{dst}, v{dst} row_ror:{rot} row_mask:0xf bank_mask:0xf')
            M = A + 8
            fold(M)
            e(f'v_mul_f32 v{M}, 0xba800000, v{M}')
            for d in range(0, 32, 2):
                e(f'v_pk_add_f32 v[{X+d}:{X+d+1}], v[{X+d}:{X+d+1}], v[{M}:{M+1}] op_sel_hi:[1,0]')
                e(f'v_pk_add_f32 v[{L+d}:{L+d+1}], v[{L+d}:{L+d+1}], v[{M}:{M+1}] op_sel_hi:[1,0]')
            for a in range(4):
                e(f'v_pk_mul_f32 v[{A+2*a}:{A+2*a+1}], v[{X+2*a}:{X+2*a+1}], v[{X+2*a}:{X+2*a+1}]')
            for d in range(8, 32, 2):
                a = (d // 2) % 4
                e(f'v_pk_fma_f32 v[{A+2*a}:{A+2*a+1}], v[{X+d}:{X+d+1}], v[{X+d}:{X+d+1}], v[{A+2*a}:{A+2*a+1}]')
            for d in range(0, 32, 2):
                a = (d // 2) % 4
                e(f'v_pk_fma_f32 v[{A+2*a}:{A+2*a+1}], v[{L+d}:{L+d+1}], v[{L+d}:{L+d+1}], v[{A+2*a}:{A+2*a+1}]')
            V = A + 10
            fold(V)
            e('s_mov_b32 s39, 0x3727c5ac')
            e(f'v_mov_b32 v{V+1}, s39')
            e(f'v_fmac_f32 v{V+1}, 0x3a800000, v{V}')
        e(f'v_rsq_f32 v{V}, v{V+1}')
        e('s_nop 0')
        e(f'v_mul_f32 v{V+1}, v{M}, v{V}')
        e(f'v_lshlrev_b32 v{RW_}, 3, v{RW_}')
        e(f'v_cmp_eq_u32 vcc, 0, v{I16}')
        e('s_and_saveexec_b64 s[76:77], vcc')
        e(f'buffer_store_dwordx2 v[{V}:{V+1}], v{RW_}, s[60:63], 0 offen sc1')
        e('s_mov_b64 exec, -1')
        if not cfg.xlate:
            for q in range(max(cfg.prex1, cfg.xearly), cfg.prex): cx(q)
        e('s_waitcnt lgkmcnt(0)')
        e(f's_add_u32 s64, s64, {TAG_STEP}')
        st(3)
        if not cfg.bwearly: e('s_barrier')
        if cfg.xlate:
            vm.q = []
            e('s_waitcnt vmcnt(0)')
            e(f's_lshl_b32 s38, s4, 7\ns_lshl_b32 s39, s5, 4\ns_add_u32 s38, s38, s39\ns_lshl_b32 s39, s3, 2\ns_add_u32 s38, s38, s39\ns_add_u32 s38, s38, {WS_FR}')
            tagstore(T + 1, 38)
            for q in range(cfg.prex1, cfg.prex): cx(q)
        if not cfg.xlate:
            e('s_waitcnt vmcnt(0)')
            e(f's_lshl_b32 s38, s4, 7\ns_lshl_b32 s39, s5, 4\ns_add_u32 s38, s38, s39\ns_lshl_b32 s39, s3, 2\ns_add_u32 s38, s38, s39\ns_add_u32 s38, s38, {WS_FR}')
            tagstore(T + 1, 38)
            vm.q = []

    def rd_list(p, ks):
        st_ = FR + 16 * (ks & 1)
        slot = p % NS
        win = slot // 2
        xo = (slot % 2) * 32768
        wo = (slot % 2) * 32768 + ks * 4096
        xr = XA + 4 * win + ks; wr = WA + 2 * win
        return [
            (f'ds_read_b64_tr_b16 v[{st_}:{st_+1}], v{wr} offset:{wo}', ('W0', p, ks)),
            (f'ds_read_b64_tr_b16 v[{st_+2}:{st_+3}], v{wr} offset:{wo+1024}', ('W0', p, ks)),
            (f'ds_read_b128 v[{st_+8}:{st_+11}], v{xr} offset:{xo}', ('x0', p, ks)),
            (f'ds_read_b128 v[{st_+12}:{st_+15}], v{xr} offset:{xo+4096}', ('x1', p, ks)),
            (f'ds_read_b64_tr_b16 v[{st_+4}:{st_+5}], v{wr+1} offset:{wo}', ('W1', p, ks)),
            (f'ds_read_b64_tr_b16 v[{st_+6}:{st_+7}], v{wr+1} offset:{wo+1024}', ('W1', p, ks)),
        ]
    def group(p, ks, reads, last_in_phase=False, order=None):
        st_ = FR + 16 * (ks & 1)
        order = order or [(0, 0), (0, 1), (1, 1), (1, 0)]
        split = [(0, 3), (3, 6), (6, 6), (6, 6)] if last_in_phase else [(0, 2), (2, 4), (4, 6), (6, 6)]
        for i, (nb, mb) in enumerate(order):
            if p >= 0:
                lg.need([(f'W{nb}', p, ks), (f'x{mb}', p, ks)])
                if last_in_phase and i == 3 and cfg.earlywait: lg.drain()
                a = ACC + 16 * (2 * nb + mb)
                c = '0' if (p == 0 and ks == 0) else f'v[{a}:{a+15}]'
                if cfg.mfma: e(f'v_mfma_f32_32x32x16_bf16 v[{a}:{a+15}], v[{st_+4*nb}:{st_+4*nb+3}], v[{st_+8+4*mb}:{st_+8+4*mb+3}], {c}')
                else: e('s_nop 7')
            for (ins, tag) in reads[split[i][0]:split[i][1]]:
                if cfg.reads:
                    e(ins); lg.issue(tag)
    GWR = 128; BWR = 160; RS = 192
    Y = 200; D = 208; SA = 212; SR = 213; GO = 214; XW = 216; SRD_ = 218
    def epi_addresses():
        e(f'v_and_b32 v{T}, 31, v{LN}')
        e(f's_lshl_b32 s38, s6, 9\ns_add_u32 s38, s38, {TAB+1024}')
        e(f'v_lshl_add_u32 v{SRD_}, v{T}, 3, s38')
        e(f'v_and_b32 v{Y}, 7, v{LN}')
        e(f'v_lshlrev_b32 v{Y}, 4, v{Y}')
        e(f'v_lshrrev_b32 v{Y+1}, 5, v{LN}')
        e(f'v_lshl_add_u32 v{Y}, v{Y+1}, 3, v{Y}')
        e(f'v_lshl_add_u32 v{SA}, v{T}, 7, v{Y}')
        e(f's_lshl_b32 s38, s3, 13\ns_add_u32 s38, s38, {STG}')
        e(f'v_add_u32 v{SA}, s38, v{SA}')
        e(f'v_lshrrev_b32 v{Y}, 3, v{LN}')
        e(f'v_and_b32 v{Y+1}, 7, v{LN}')
        e(f'v_xor_b32 v{Y+2}, v{Y+1}, v{Y}')
        e(f'v_lshlrev_b32 v{Y+2}, 4, v{Y+2}')
        e(f'v_lshl_add_u32 v{SR}, v{Y}, 7, v{Y+2}')
        e(f'v_add_u32 v{SR}, s38, v{SR}')
        e(f'v_lshlrev_b32 v{GO}, 11, v{Y}')
        e(f'v_lshl_add_u32 v{GO}, v{Y+1}, 4, v{GO}')
        e('s_lshl_b32 s38, s4, 18\ns_lshl_b32 s39, s6, 17\ns_add_u32 s38, s38, s39')
        e('s_lshl_b32 s39, s5, 8\ns_add_u32 s38, s38, s39\ns_lshl_b32 s39, s7, 7\ns_add_u32 s65, s38, s39')
    def table_reads():
        r = [(f'ds_read_b64 v[{RS}:{RS+1}], v{SRD_}', 'rs'), (f'ds_read_b64 v[{RS+2}:{RS+3}], v{SRD_} offset:256', 'rs')]
        for nb in range(2):
            for j in range(4):
                r.append((f'ds_read_b128 v[{GWR+16*nb+4*j}:{GWR+16*nb+4*j+3}], v{TA_} offset:{(nb*32+8*j)*4}', ('tg', nb, j)))
                r.append((f'ds_read_b128 v[{BWR+16*nb+4*j}:{BWR+16*nb+4*j+3}], v{TA_} offset:{512+(nb*32+8*j)*4}', ('tg', nb, j)))
        return r
    epi_addresses()
    e('s_barrier')
    if cfg.stamps: e('s_memtime s[42:43]')
    for p in range(NST):
        tr = table_reads() if (p == NST - 1 and cfg.epi2) else []
        def extra(k):
            for ins, tag in tr[6*k:6*k+6]:
                e(ins); lg.issue(tag)
        group(p - 1, 3, rd_list(p, 0))
        group(p, 0, rd_list(p, 1)); extra(0)
        group(p, 1, rd_list(p, 2)); extra(1)
        group(p, 2, rd_list(p, 3), last_in_phase=(p < NST - 1)); extra(2)
        if cfg.half:
            if p == 0:
                for j in range(cfg.half, 8): sload(j)
            if p == cfg.SB: stats_rest()
            if p == cfg.SB + 2: stats_tag()
        if p < NST - 1: e('s_barrier')
    group(NST - 1, 3, [], order=[(0, 0), (1, 0), (1, 1), (0, 1)] if cfg.epi2 else None)
    if not cfg.epi2:
        for ins, tag in table_reads():
            e(ins); lg.issue(tag)
    if cfg.stamps: e('s_memtime s[44:45]')
    def stage_reads(mb):
        r0 = ACC + 16 * mb
        for q in range(4):
            e(f'ds_read_b128 v[{r0+4*q}:{r0+4*q+3}], v{SR} offset:{mb*4096+q*1024}'); lg.issue(('sr', mb, q))
    def out_store(mb, q):
        r0 = ACC + 16 * mb
        lg.need([('sr', mb, q)])
        e(f's_add_u32 s51, s65, {(mb*32+8*q)*2048}')
        e(f'buffer_store_dwordx4 v[{r0+4*q}:{r0+4*q+3}], v{GO}, s[20:23], s51 offen{cfg.ntout}')
    if cfg.epi2: e('s_nop 7')
    for idx in range(16):
        mb, nb, j = idx >> 3, (idx >> 2) & 1, idx & 3
        rs = RS + 2 * mb
        a = ACC + 16 * (2 * nb + mb)
        gw = GWR + 16 * nb + 4 * j; bw = BWR + 16 * nb + 4 * j
        lg.need(['rs', ('tg', nb, j)])
        y = Y + 4 * (j & 1)
        for hh in range(2):
            e(f'v_pk_fma_f32 v[{y+2*hh}:{y+2*hh+1}], v[{gw+2*hh}:{gw+2*hh+1}], v[{rs}:{rs+1}], v[{bw+2*hh}:{bw+2*hh+1}] op_sel:[0,1,0] op_sel_hi:[1,1,1]')
        for hh in range(2):
            e(f'v_pk_fma_f32 v[{y+2*hh}:{y+2*hh+1}], v[{a+4*j+2*hh}:{a+4*j+2*hh+1}], v[{rs}:{rs+1}], v[{y+2*hh}:{y+2*hh+1}] op_sel_hi:[1,0,1]')
        d = D + 2 * (j & 1)
        e(f'v_xor_b32 v{XW+(j&1)}, {(nb*4+j)*16}, v{SA}')
        e(f'v_cvt_pk_bf16_f32 v{d}, v{y}, v{y+1}')
        e(f'v_cvt_pk_bf16_f32 v{d+1}, v{y+2}, v{y+3}')
        e(f'ds_write_b64 v{XW+(j&1)}, v[{d}:{d+1}] offset:{mb*4096}'); lg.issue(('sw', mb))
        if cfg.epi2:
            if idx == 7: stage_reads(0)
            if idx == 9: out_store(0, 0); out_store(0, 1)
            if idx == 10: out_store(0, 2); out_store(0, 3)
            if idx == 15:
                stage_reads(1)
                for q in range(4): out_store(1, q)
        elif idx % 8 == 7:
            lg.need([('sw', mb)])
            stage_reads(mb)
            for q in range(4): out_store(mb, q)
    e('s_branch L_end')

    e('L_dma:')
    vm = Counter(e, 'vmcnt', 63); lg = Counter(e, 'lgkmcnt', 15)
    VXO = 2; FL = 4; VL16 = 10; PR = 16
    T = 96; PW = 64; PG = 72; U = 76; WPK = 84; X = 112; WD = 104
    e('s_sub_u32 s3, s3, 4')
    e(f'v_lshrrev_b32 v{T+4}, 2, v0')
    e(f'v_and_b32 v{T+5}, 3, v0')
    e(f'v_lshlrev_b32 v{T+6}, 11, v{T+4}')
    e(f'v_lshl_add_u32 v{T+6}, v{T+5}, 4, v{T+6}')
    e(f'v_lshlrev_b32 v{T+7}, 1, v{T+4}')
    for r in range(4): e(f'v_mov_b32 v{PG+r}, 0')
    e('s_lshl_b32 s38, s4, 16\ns_lshl_b32 s39, s5, 8\ns_add_u32 s38, s38, s39\ns_lshl_b32 s39, s3, 6\ns_add_u32 s38, s38, s39')
    e('s_add_u32 s39, s38, 0x8000')
    e('s_lshl_b32 s36, s4, 6')
    e('s_waitcnt lgkmcnt(0)')
    st(0)
    e(f'buffer_load_dwordx4 v[{PW}:{PW+3}], v{T+6}, s[12:15], s38 offen{cfg.ntslab}'); vm.issue('pw0')
    e(f'buffer_load_short_d16_hi v{PG}, v{T+7}, s[16:19], s36 offen'); vm.issue('pg0')
    e(f'buffer_load_dwordx4 v[{PW+4}:{PW+7}], v{T+6}, s[12:15], s39 offen{cfg.ntslab}'); vm.issue('pw1')
    e(f'buffer_load_short_d16_hi v{PG+1}, v{T+7}, s[16:19], s36 offen offset:32'); vm.issue('pg1')
    e(f'buffer_load_short_d16_hi v{PG+2}, v{T+7}, s[68:71], s36 offen'); vm.issue('pb')
    e(f'buffer_load_short_d16_hi v{PG+3}, v{T+7}, s[68:71], s36 offen offset:32'); vm.issue('pb')
    e(f's_load_dword s64, s[60:61], {WS_EPOCH}')
    e('v_lshrrev_b32 v8, 3, v0')
    e('v_lshlrev_b32 v8, 11, v8')
    e('v_and_b32 v9, 7, v0')
    e('v_lshrrev_b32 v11, 4, v0')
    e('v_xor_b32 v9, v9, v11')
    e(f'v_lshl_add_u32 v{VXO}, v9, 4, v8')
    e(f'v_xor_b32 v{VXO+1}, 64, v{VXO}')
    e(f'v_add_u32 v{VXO+1}, {16384-1024}, v{VXO+1}')
    e(f'v_lshlrev_b32 v{VL16}, 4, v0')
    e('s_lshl_b32 s37, s4, 18\ns_lshl_b32 s39, s3, 16\ns_add_u32 s50, s37, s39\ns_lshl_b32 s51, s3, 12')
    e(f's_lshl_b32 s37, s5, 18\ns_add_u32 s52, s37, s51\ns_add_u32 s52, s52, {WS_W}')
    def emit_ops(ops):
        for ins, tag in ops:
            e(ins)
            if tag: vm.issue(tag)
    def x_ops(q):
        slot = q % NS
        if not cfg.xdma: return []
        if cfg.xlin:
            o = [(f's_add_u32 m0, s51, {slot*32768}', None), (f's_lshl_b32 s54, s4, 18', None), (f's_add_u32 s54, s54, s51', None), (f's_add_u32 s54, s54, {q*16384}', None)]
            for j in range(4): o.append((f'buffer_load_dwordx4 v{VL16}, s[8:11], s54 offen offset:{1024*j} lds', ('x', q)))
            return o
        return [(f's_add_u32 m0, s51, {slot*32768}', None)] + [(i, None) for i in rot_off(54, 50, q, 7)] + [
                (f'buffer_load_dwordx4 v{VXO}, s[8:11], s54 offen{cfg.ntx} lds', ('x', q)),
                (f'buffer_load_dwordx4 v{VXO+1}, s[8:11], s54 offen offset:1024{cfg.ntx} lds', ('x', q)),
                (f's_add_u32 m0, s51, {slot*32768+2048}', None),
                (f's_add_u32 s54, s54, 32768', None),
                (f'buffer_load_dwordx4 v{VXO}, s[8:11], s54 offen{cfg.ntx} lds', ('x', q)),
                (f'buffer_load_dwordx4 v{VXO+1}, s[8:11], s54 offen offset:1024{cfg.ntx} lds', ('x', q))]
    wsc = '' if cfg.nosc1w else ' sc1'
    def w_ops(q):
        slot = q % NS
        if not cfg.wdma: return []
        o = [(f's_add_u32 m0, s51, {slot*32768+16384}', None)] + [(i, None) for i in rot_off(55, 52, q, 14)]
        for j in range(4):
            o.append((f'buffer_load_dwordx4 v{VL16}, s[60:63], s55 offen offset:{1024*j}{wsc}{cfg.ntw} lds', ('w', q)))
        return o
    e(f'v_and_b32 v{T+1}, 3, v{T+4}')
    e(f'v_lshlrev_b32 v{T+1}, 2, v{T+1}')
    e('s_lshl_b32 s37, s3, 2')
    e(f'v_add_u32 v{T+2}, s37, v{T+5}')
    e(f'v_xor_b32 v{T+1}, v{T+1}, v{T+2}')
    e(f'v_lshlrev_b32 v{T+1}, 4, v{T+1}')
    e(f'v_lshl_add_u32 v{WD}, v{T+4}, 8, v{T+1}')
    e(f's_lshl_b32 s38, s5, 18\ns_lshl_b32 s39, s4, 13\ns_add_u32 s38, s38, s39\ns_add_u32 s38, s38, {WS_W}')
    e('s_add_u32 s39, s38, 0x1000')
    for t in range(2):
        vm.need([f'pw{t}', f'pg{t}'])
        if t == 0: st(1)
        w = PW + 4 * t; gk = PG + t; u = U
        for i in range(4):
            e(f'v_lshlrev_b32 v{u+2*i}, 16, v{w+i}')
            e(f'v_and_b32 v{u+2*i+1}, s53, v{w+i}')
        for i in range(8): e(f'v_mul_f32 v{u+i}, v{gk}, v{u+i}')
        for i in range(4): e(f'v_cvt_pk_bf16_f32 v{WPK+4*t+i}, v{u+2*i}, v{u+2*i+1}')
        e(f'buffer_store_dwordx4 v[{WPK+4*t}:{WPK+4*t+3}], v{WD}, s[60:63], s{38+t} offen sc1'); vm.issue('wst')
    if cfg.statwhen == 's': e('s_barrier')
    st(2)
    vm.need(['wst'])
    st(3)
    e('s_waitcnt lgkmcnt(0)')
    e(f's_add_u32 s64, s64, {TAG_STEP}')
    e('s_barrier')
    e('s_cmp_lg_u32 s3, 0')
    e('s_cbranch_scc1 L_noflagw')
    e(f's_lshl_b32 s38, s5, 10\ns_lshl_b32 s39, s4, 2\ns_add_u32 s38, s38, s39\ns_add_u32 s38, s38, {WS_FW}')
    e(f'v_lshlrev_b32 v{T+1}, 7, v0')
    e(f'v_add_u32 v{T+1}, s38, v{T+1}')
    e(f'v_mov_b32 v{T+2}, s64')
    e('s_mov_b64 exec, 0xff')
    e(f'buffer_store_dword v{T+2}, v{T+1}, s[60:63], 0 offen sc1')
    e('s_mov_b64 exec, -1')
    e('L_noflagw:')
    st(4)
    ix = cfg.prex
    def partial_sums():
        for t in range(2):
            w = PW + 4 * t; bk = PG + 2 + t
            for i in range(4):
                e(f'v_lshlrev_b32 v{U+2*i}, 16, v{w+i}')
                e(f'v_and_b32 v{U+2*i+1}, s53, v{w+i}')
            for i in range(8):
                if t == 0: e(f'v_mul_f32 v{X+8+i}, v{bk}, v{U+i}')
                else: e(f'v_fmac_f32 v{X+8+i}, v{bk}, v{U+i}')
            for i in range(4):
                if t == 0:
                    e(f'v_lshlrev_b32 v{X+2*i}, 16, v{WPK+i}')
                    e(f'v_and_b32 v{X+2*i+1}, s53, v{WPK+i}')
                else:
                    e(f'v_lshlrev_b32 v{U+2*i}, 16, v{WPK+4+i}')
                    e(f'v_and_b32 v{U+2*i+1}, s53, v{WPK+4+i}')
            if t == 1:
                for i in range(8): e(f'v_add_f32 v{X+i}, v{X+i}, v{U+i}')
        e('s_nop 1')
        for j in range(8): e(f'v_permlane32_swap_b32 v{X+j}, v{X+8+j}')
        e('s_nop 1')
        for j in range(8): e(f'v_add_f32 v{X+j}, v{X+j}, v{X+8+j}')
        e('s_nop 1')
        for j in range(4): e(f'v_permlane16_swap_b32 v{X+j}, v{X+4+j}')
        e('s_nop 1')
        for j in range(4): e(f'v_add_f32 v{X+j}, v{X+j}, v{X+4+j}')
        for rot in (8, 4):
            e('s_nop 1')
            for j in range(4): e(f'v_add_f32_dpp v{X+j}, v{X+j}, v{X+j} row_ror:{rot} row_mask:0xf bank_mask:0xf')
        e(f'v_lshrrev_b32 v{T+1}, 4, v0')
        e(f'v_lshrrev_b32 v{T+2}, 1, v{T+1}')
        e(f'v_lshlrev_b32 v{T+2}, 9, v{T+2}')
        e(f'v_and_b32 v{T+1}, 1, v{T+1}')
        e(f'v_lshl_add_u32 v{T+2}, v{T+1}, 4, v{T+2}')
        e(f'v_lshl_add_u32 v{T+2}, v{T+5}, 5, v{T+2}')
        e('s_lshl_b32 s38, s5, 5\ns_add_u32 s38, s38, s4\ns_lshl_b32 s38, s38, 10\ns_lshl_b32 s39, s3, 7\ns_add_u32 s38, s38, s39')
        e(f's_add_u32 s38, s38, {WS_PART}')
        e(f'v_and_b32 v{T+1}, 15, v0')
        e(f'v_cmp_gt_u32 vcc, 4, v{T+1}')
        e('s_and_saveexec_b64 s[76:77], vcc')
        e(f'buffer_store_dwordx4 v[{X}:{X+3}], v{T+2}, s[60:63], s38 offen sc1'); vm.issue('pst')
        e('s_mov_b64 exec, -1')
    if not cfg.partlate: partial_sums()
    for q in range(cfg.prex, cfg.prex + cfg.xd):
        emit_ops(x_ops(q)); ix += 1
    if cfg.codepf:
        e('s_getpc_b64 s[78:79]')
        e('L_pc:')
        e('s_sub_u32 s78, s78, L_pc-' + KNAME)
        e('s_subb_u32 s79, s79, 0')
        e('v_lshlrev_b32 v12, 7, v0')
        e('s_lshl_b32 s38, s3, 13')
        e('v_add_u32 v12, s38, v12')
        e('CODEPF')
    e(f'v_lshlrev_b32 v{FL+2}, 2, v0')
    e('s_cmp_eq_u32 s3, 0')
    e('s_cselect_b32 s37, 0, 0x7fff0000')
    e(f's_lshl_b32 s38, s5, 9\ns_add_u32 s38, s38, {WS_FC}\ns_add_u32 s38, s38, s37')
    e('v_lshlrev_b32 v13, 3, v0')
    e(f'v_add_u32 v{FL+4}, s38, v13')
    e(f's_lshl_b32 s38, s4, 7\ns_add_u32 s38, s38, {WS_FR}\ns_add_u32 s38, s38, s37')
    e('v_and_b32 v13, 31, v0')
    e('v_lshlrev_b32 v13, 2, v13')
    e(f'v_add_u32 v{FL+5}, s38, v13')
    if cfg.wait_flags:
        e('s_cmp_lg_u32 s3, 0')
        e('s_cbranch_scc1 L_notpoller')
        e('v_and_b32 v12, 31, v0')
        if cfg.G1 < 32: e(f'v_min_u32 v12, {cfg.G1-1}, v12')
        e('v_lshlrev_b32 v12, 2, v12')
        e(f's_lshl_b32 s39, s5, 10\ns_lshr_b32 s37, s4, 2\ns_lshl_b32 s37, s37, 7\ns_add_u32 s39, s39, s37\ns_add_u32 s39, s39, {WS_FW}')
        e(f's_mov_b32 s38, {cfg.spin}')
        if cfg.polldelay: e(f's_sleep {cfg.polldelay}')
        n = cfg.pipepoll
        for i in range(n - 1):
            e(f'buffer_load_dword v{16+i}, v12, s[60:63], s39 offen sc1')
            e(f's_sleep {cfg.pollgap}')
        e('L_spin_w:')
        for i in range(n):
            e(f'buffer_load_dword v{16+(i+n-1)%n}, v12, s[60:63], s39 offen sc1')
            e(f's_waitcnt vmcnt({n-1})')
            e(f'v_cmp_eq_u32 vcc, s64, v{16+i}')
            e('s_cmp_eq_u64 vcc, -1')
            e('s_cbranch_scc1 L_found_w')
            if n > 1: e(f's_sleep {cfg.pollgap}')
            elif cfg.sleep: e(f's_sleep {cfg.sleep}')
        e('s_sub_u32 s38, s38, 1')
        e('s_cmp_lg_u32 s38, 0')
        e('s_cbranch_scc1 L_spin_w')
        e('L_found_w:')
        e('s_branch L_ready_w')
        e('L_notpoller:')
        if not cfg.partlate: e('s_waitcnt vmcnt(0)')
        e('L_ready_w:')
    if cfg.stamps: e('s_memtime s[58:59]')
    def fc_tag():
        e(f's_lshl_b32 s38, s5, 9\ns_lshl_b32 s39, s4, 4\ns_add_u32 s38, s38, s39\ns_lshl_b32 s39, s3, 2\ns_add_u32 s38, s38, s39\ns_add_u32 s38, s38, {WS_FC}')
        tagstore(T + 1, 38)
    if not cfg.partlate:
        if not cfg.wait_flags: e('s_waitcnt vmcnt(0)')
        vm.q = []
        fc_tag()
    else:
        vm.q = []
    e('s_barrier')
    iw = 0
    for q in range(cfg.prew):
        emit_ops(w_ops(q)); iw += 1
    if cfg.partlate: partial_sums()
    vm.need([('w', 0)])
    if cfg.prex == 0 and cfg.xd == 0:
        pass
    if cfg.dprio: e(f's_setprio {cfg.dprio}')
    e('s_barrier')
    if cfg.stamps: e('s_memtime s[42:43]')
    if cfg.G1 < 32:
        e('v_and_b32 v13, 31, v0')
        e('v_lshlrev_b32 v13, 2, v13')
        e('s_cmp_eq_u32 s3, 0')
        e('s_cselect_b32 s37, 0, 0x7fff0000')
        e(f's_lshl_b32 s39, s5, 10\ns_lshr_b32 s38, s4, 2\ns_lshl_b32 s38, s38, 7\ns_add_u32 s39, s39, s38\ns_add_u32 s39, s39, {WS_FW}\ns_add_u32 s39, s39, s37')
        e('v_add_u32 v57, s39, v13')
    P2C = cfg.G1 // 2 - cfg.LA - 1 if cfg.G1 < 32 else -1
    PO = 58
    def check_final():
        e(f'v_cmp_eq_u32 vcc, s64, v{PO}')
        e(f'v_cmp_eq_u32 s[76:77], s64, v{PO+1}')
        e(f'v_cmp_eq_u32 s[80:81], s64, v{PO+2}')
        e('s_and_b64 vcc, vcc, s[76:77]')
        e('s_and_b64 vcc, vcc, s[80:81]')
        e('s_cmp_eq_u64 vcc, -1')
    if cfg.two:
        e('s_cmp_eq_u32 s3, 0')
        e('s_cselect_b32 s37, 0, 0x7fff0000')
        e('v_lshrrev_b32 v12, 1, v0')
        e('v_lshlrev_b32 v12, 10, v12')
        e('v_and_b32 v13, 1, v0')
        e('v_lshl_add_u32 v12, v13, 4, v12')
        e(f's_lshl_b32 s38, s5, 15\ns_lshl_b32 s39, s4, 5\ns_add_u32 s38, s38, s39\ns_add_u32 s38, s38, {WS_PART}\ns_add_u32 s38, s38, s37')
        e('v_add_u32 v62, s38, v12')
        e(f's_lshl_b32 s38, s5, 10\ns_lshl_b32 s39, s4, 5\ns_add_u32 s38, s38, s39\ns_add_u32 s38, s38, {WS_FIN}\ns_add_u32 s38, s38, s37')
        e('v_lshlrev_b32 v13, 4, v13')
        e('v_add_u32 v63, s38, v13')
        e('v_and_b32 v13, 31, v0')
        e('v_lshlrev_b32 v13, 2, v13')
        e(f's_lshl_b32 s38, s5, 7\ns_add_u32 s38, s38, {WS_FT}\ns_add_u32 s38, s38, s37')
        e('v_add_u32 v92, s38, v13')
        e(f's_lshl_b32 s38, s5, 10\ns_add_u32 s38, s38, {WS_FIN}\ns_add_u32 s38, s38, s37')
        e(f'v_add_u32 v93, s38, v{VL16}')
        e(f's_lshl_b32 s38, s4, 10\ns_add_u32 s38, s38, s37')
        e(f'v_add_u32 v94, s38, v{VL16}')
    def spin_check(name, loads, cmps):
        e('s_cmp_lg_u32 s3, 0')
        e(f's_cbranch_scc1 L_ok_{name}')
        def chk():
            for i, r in enumerate(cmps):
                dst = 'vcc' if i == 0 else 's[76:77]'
                e(f'v_cmp_eq_u32 {dst}, s64, v{r}')
                if i: e('s_and_b64 vcc, vcc, s[76:77]')
            e('s_cmp_eq_u64 vcc, -1')
            e(f's_cbranch_scc1 L_ok_{name}')
        chk()
        if cfg.wait_flags:
            e(f's_mov_b32 s38, {cfg.spin}')
            e(f'L_spin_{name}:')
            for l in loads: e(l)
            e('s_waitcnt vmcnt(0)')
            chk()
            e('s_sub_u32 s38, s38, 1')
            e('s_cmp_lg_u32 s38, 0')
            e(f's_cbranch_scc1 L_spin_{name}')
        e(f'L_ok_{name}:')
    def two_stage(p):
        P = PR + 8
        la = [f'buffer_load_dwordx2 v[{PO}:{PO+1}], v{FL+4}, s[60:63], 0 offen sc1']
        lb = [f'buffer_load_dword v{PO}, v92, s[60:63], 0 offen sc1', f'buffer_load_dword v{PO+2}, v{FL+5}, s[60:63], 0 offen sc1']
        if p == cfg.TA[0]:
            for l in la:
                e(l); vm.issue('pollA')
        if p == cfg.TA[1]:
            vm.need(['pollA'])
            spin_check('a', la, [PO, PO + 1])
            e(f'buffer_load_dwordx4 v[{P}:{P+3}], v62, s[60:63], 0 offen sc1'); vm.issue('ldA')
        if p == cfg.TA[2]:
            vm.need(['ldA'])
            for rot in (2, 4, 8):
                e('s_nop 1')
                for i in range(4): e(f'v_add_f32_dpp v{P+i}, v{P+i}, v{P+i} row_ror:{rot} row_mask:0xf bank_mask:0xf')
            for sw in ('v_permlane16_swap_b32', 'v_permlane32_swap_b32'):
                for i in range(4): e(f'v_mov_b32 v{P+4+i}, v{P+i}')
                e('s_nop 1')
                for i in range(4): e(f'{sw} v{P+i}, v{P+4+i}')
                e('s_nop 1')
                for i in range(4): e(f'v_add_f32 v{P+i}, v{P+i}, v{P+4+i}')
            e('s_mov_b64 exec, 3')
            e(f'buffer_store_dwordx4 v[{P}:{P+3}], v63, s[60:63], 0 offen sc1'); vm.issue('stA')
            e('s_mov_b64 exec, -1')
        if p == cfg.TA[3]:
            vm.need(['stA'])
            e('s_cmp_lg_u32 s3, 0')
            e('s_cbranch_scc1 L_notagA')
            e(f's_lshl_b32 s38, s5, 7\ns_lshl_b32 s39, s4, 2\ns_add_u32 s38, s38, s39\ns_add_u32 s38, s38, {WS_FT}')
            tagstore(T + 1, 38)
            e('L_notagA:')
        if p == cfg.TBP[0]:
            for l in lb:
                e(l); vm.issue('pollB')
        if p == cfg.TBP[1]:
            vm.need(['pollB'])
            spin_check('b', lb, [PO, PO + 2])
            e(f'buffer_load_dwordx4 v[{P}:{P+3}], v93, s[60:63], 0 offen sc1'); vm.issue('ldB')
            e(f'buffer_load_dwordx4 v[{P+4}:{P+7}], v94, s[60:63], 0 offen sc1'); vm.issue('ldB')
        if p == cfg.TBP[2]:
            vm.need(['ldB'])
            e('s_cmp_lg_u32 s3, 0')
            e('s_cbranch_scc1 L_notab')
            e(f'v_add_u32 v12, {TAB}, v{VL16}')
            e(f'ds_write_b128 v12, v[{P}:{P+3}]')
            e(f'ds_write_b128 v12, v[{P+4}:{P+7}] offset:1024')
            e('s_waitcnt lgkmcnt(0)')
            e('L_notab:')
    for p in range(NST - 1):
        if cfg.wpf and p + cfg.wpf < NST:
            e(f's_add_u32 s56, s57, {(p + cfg.wpf) * 16384}')
            e(f'buffer_load_dwordx4 v[120:123], v{VL16}, s[60:63], s56 offen sc1'); vm.issue(('pf', p))
        if cfg.partlate and p == 2:
            vm.need(['pst']); fc_tag()
        lim = min(NST - 1, p + cfg.LA)
        for _ in range(2):
            if iw <= lim:
                assert iw < cfg.G1 // 2 or p > P2C, (p, iw)
                emit_ops(w_ops(iw)); iw += 1
            if ix <= lim:
                emit_ops(x_ops(ix)); ix += 1
        if p == cfg.P2I and cfg.G1 < 32:
            e('buffer_load_dword v61, v57, s[60:63], 0 offen sc1'); vm.issue('poll2')
        if p == P2C and cfg.G1 < 32:
            vm.need(['poll2'])
            e('s_cmp_lg_u32 s3, 0')
            e('s_cbranch_scc1 L_ready_w2')
            e('v_cmp_eq_u32 vcc, s64, v61')
            e('s_cmp_eq_u64 vcc, -1')
            e('s_cbranch_scc1 L_ready_w2')
            if cfg.wait_flags:
                e(f's_mov_b32 s38, {cfg.spin}')
                e('L_spin_w2:')
                e('buffer_load_dword v61, v57, s[60:63], 0 offen sc1')
                e('s_waitcnt vmcnt(0)')
                e('v_cmp_eq_u32 vcc, s64, v61')
                e('s_cmp_eq_u64 vcc, -1')
                e('s_cbranch_scc1 L_ready_w2')
                e('s_sub_u32 s38, s38, 1')
                e('s_cmp_lg_u32 s38, 0')
                e('s_cbranch_scc1 L_spin_w2')
            e('L_ready_w2:')
        if cfg.two: two_stage(p)
        else:
            if p == cfg.PP:
                e(f'buffer_load_dwordx2 v[{PO}:{PO+1}], v{FL+4}, s[60:63], 0 offen sc1'); vm.issue('poll')
                e(f'buffer_load_dword v{PO+2}, v{FL+5}, s[60:63], 0 offen sc1'); vm.issue('poll')
            if p == cfg.PC:
                vm.need(['poll'])
                e('s_cmp_lg_u32 s3, 0')
                e('s_cbranch_scc1 L_ready_a')
                check_final()
                e('s_cbranch_scc1 L_ready_a')
                if cfg.wait_flags:
                    e(f's_mov_b32 s38, {cfg.spin}')
                    e('L_spin_a:')
                    e(f'buffer_load_dwordx2 v[{PO}:{PO+1}], v{FL+4}, s[60:63], 0 offen sc1')
                    e(f'buffer_load_dword v{PO+2}, v{FL+5}, s[60:63], 0 offen sc1')
                    e('s_waitcnt vmcnt(0)')
                    check_final()
                    e('s_cbranch_scc1 L_ready_a')
                    e('s_sub_u32 s38, s38, 1')
                    e('s_cmp_lg_u32 s38, 0')
                    e('s_cbranch_scc1 L_spin_a')
                e('L_ready_a:')
            if p == cfg.PL:
                e('v_lshrrev_b32 v12, 4, v0')
                e('v_lshlrev_b32 v12, 10, v12')
                e('v_and_b32 v13, 15, v0')
                e('v_lshl_add_u32 v12, v13, 4, v12')
                e(f's_lshl_b32 s38, s5, 15\ns_lshl_b32 s39, s3, 8\ns_add_u32 s38, s38, s39\ns_add_u32 s38, s38, {WS_PART}')
                for t in range(cfg.npp):
                    if t: e('s_add_u32 s38, s38, 0x1000')
                    e(f'buffer_load_dwordx4 v[{PR+8+4*t}:{PR+8+4*t+3}], v12, s[60:63], s38 offen sc1'); vm.issue('pp')
                e('s_lshl_b32 s38, s4, 10\ns_lshl_b32 s39, s3, 8\ns_add_u32 s38, s38, s39')
                e(f'buffer_load_dword v{PR+40}, v{FL+2}, s[60:63], s38 offen sc1'); vm.issue('ps')
            if p == cfg.PS:
                vm.need(['pp', 'ps'])
                P = PR + 8
                for h in (16, 8, 4):
                    for i in range(h): e(f'v_add_f32 v{P+i}, v{P+i}, v{P+h+i}')
                e('s_nop 1')
                e(f'v_permlane32_swap_b32 v{P}, v{P+2}\nv_permlane32_swap_b32 v{P+1}, v{P+3}')
                e('s_nop 1')
                e(f'v_add_f32 v{P}, v{P}, v{P+2}\nv_add_f32 v{P+1}, v{P+1}, v{P+3}')
                e('s_nop 1')
                e(f'v_permlane16_swap_b32 v{P}, v{P+1}')
                e('s_nop 1')
                e(f'v_add_f32 v{P}, v{P}, v{P+1}')
                e('v_lshrrev_b32 v12, 4, v0')
                e('v_and_b32 v13, 15, v0')
                e('v_lshlrev_b32 v13, 4, v13')
                e('v_lshl_add_u32 v12, v12, 2, v13')
                e(f's_lshl_b32 s38, s3, 8\ns_add_u32 s39, s38, {TAB}')
                e('v_add_u32 v12, s39, v12')
                e(f'ds_write_b32 v12, v{P}'); lg.issue('tab')
                e(f's_add_u32 s39, s38, {TAB+1024}')
                e(f'v_add_u32 v13, s39, v{FL+2}')
                e(f'ds_write_b32 v13, v{PR+40}'); lg.issue('tab')
                lg.drain()
        vm.need([('w', p + 1)])
        if p + 1 >= cfg.prex: vm.need([('x', p + 1)])
        e('s_barrier')
    assert ix == NST and iw == NST
    if cfg.stamps: e('s_memtime s[44:45]')
    e('s_or_b32 s38, s2, s3')
    e('s_cmp_lg_u32 s38, 0')
    e('s_cbranch_scc1 L_noepoch')
    e('v_lshrrev_b32 v12, 3, v0')
    e('v_lshlrev_b32 v12, 10, v12')
    e('v_and_b32 v13, 7, v0')
    e('v_lshl_add_u32 v12, v13, 4, v12')
    e(f's_mov_b32 s38, {cfg.spin}')
    e('L_spin_e:')
    e(f's_mov_b32 s39, {WS_FW}')
    e('buffer_load_dwordx4 v[16:19], v12, s[60:63], s39 offen sc1')
    e('s_waitcnt vmcnt(0)')
    e('s_mov_b64 s[76:77], -1')
    for i in range(4):
        e(f'v_cmp_eq_u32 vcc, s64, v{16+i}')
        e('s_and_b64 s[76:77], s[76:77], vcc')
    e('s_cmp_eq_u64 s[76:77], -1')
    e('s_cbranch_scc1 L_doepoch')
    e('s_sub_u32 s38, s38, 1')
    e('s_cmp_lg_u32 s38, 0')
    e('s_cbranch_scc1 L_spin_e')
    e('L_doepoch:')
    e(f'v_mov_b32 v12, {WS_EPOCH}')
    e('v_mov_b32 v13, s64')
    e('s_mov_b64 exec, 1')
    e('buffer_store_dword v13, v12, s[60:63], 0 offen sc1')
    e('s_mov_b64 exec, -1')
    e('L_noepoch:')
    e('L_end:')
    if cfg.stamps:
        e('s_waitcnt vmcnt(0) lgkmcnt(0)')
        e('s_memtime s[46:47]')
        e('s_memrealtime s[56:57]')
        e('s_waitcnt lgkmcnt(0)')
        e('s_sub_u32 s42, s42, s40\ns_sub_u32 s44, s44, s40\ns_sub_u32 s46, s46, s40\ns_sub_u32 s58, s58, s40')
        e('v_mov_b32 v4, s42\nv_mov_b32 v5, s44\nv_mov_b32 v6, s46\nv_mov_b32 v7, s48\nv_mov_b32 v8, s56\nv_mov_b32 v9, s58\nv_mov_b32 v10, 0\nv_mov_b32 v11, 0')
        for i in range(5): e(f's_sub_u32 s{82+2*i}, s{82+2*i}, s40\nv_mov_b32 v{16+i}, s{82+2*i}')
        e(f's_lshl_b32 s65, s2, 3\ns_add_u32 s65, s65, s66\ns_lshl_b32 s65, s65, 6\ns_add_u32 s65, s65, {WS_STAMP}')
        e('v_mov_b32 v12, s65')
        e('s_mov_b64 exec, 1')
        e('buffer_store_dwordx4 v[4:7], v12, s[60:63], 0 offen')
        e('buffer_store_dwordx4 v[8:11], v12, s[60:63], 0 offen offset:16')
        e('buffer_store_dwordx4 v[16:19], v12, s[60:63], 0 offen offset:32')
        e('buffer_store_dwordx4 v[20:23], v12, s[60:63], 0 offen offset:48')
    e('L_exit:')
    e('s_endpgm')
    e('L_codeend:')
    e('.section .rodata,"a"')
    e(f'.p2align 6\n.amdhsa_kernel {KNAME}')
    e('  .amdhsa_next_free_vgpr 224\n  .amdhsa_next_free_sgpr 96\n  .amdhsa_accum_offset 224')
    e('  .amdhsa_group_segment_fixed_size 0\n  .amdhsa_kernarg_size 56\n  .amdhsa_user_sgpr_count 2')
    e('  .amdhsa_user_sgpr_kernarg_segment_ptr 1\n  .amdhsa_system_sgpr_workgroup_id_x 1\n.end_amdhsa_kernel')
    txt = e.text()
    pf = (f'v_cmp_gt_u32 vcc, L_codeend-{KNAME}, v12\n'
          's_and_saveexec_b64 s[80:81], vcc\n'
          's_cbranch_execz L_nopf\n'
          'global_load_dword v11, v12, s[78:79]\n'
          'L_nopf:\n'
          's_mov_b64 exec, -1')
    txt = txt.replace('CODEPF', pf)
    return txt

if __name__ == '__main__':
    import ast
    kw = {}
    for a in sys.argv[1:]:
        k, v = a.split('=')
        kw[k] = ast.literal_eval(v)
    print(gen(Cfg(**kw)))
```

```python
import sys
sys.path.insert(0, 'gen')
from asmlib import Emitter, Counter

KNAME = 'standalone__layernorm_linear__prompt_kernel'
WS_STATS = 0
WS_EPOCH = 0x8000
WS_FW = 0xC000
WS_FC = 0xA000
WS_FR = 0xB000
WS_FT = 0xE000
WS_FIN = 0x60000
WS_PART = 0x10000
WS_STAMP = 0x80000
WS_W = 0x100000
TAG_STEP = 0x9E3779B9

HEADER = '''; LayerNorm(x)*g + b followed by @ w, fused in one launch.
;
;
;
'''

class Cfg:
    NS = 5
    PP = 5
    PC = 9
    PL = 10
    PS = 14
    prew = 3
    prex = 5
    statsplit = 8
    statwhen = 's'
    polldelay = 0
    ntstat = ''; ntslab = ''; ntx = ''; ntout = ' sc1 nt'; ntw = ''
    prex1 = 2
    statdelay0 = 0
    dmafirst = True
    two = True
    TA = (1, 3, 5, 7)
    TBP = (10, 12, 14)
    npp = 8
    half = 0
    SB = 4
    slate = False
    xd = 0
    dprio = 0
    epi2 = True
    LA = 3
    bwearly = False
    partlate = False
    G1 = 16
    P2I = 1
    krot = 0
    xlin = False
    nosc1w = False
    wpf = 0
    xearly = 0
    onepass = True
    xlate = False
    pipepoll = 1
    pollgap = 6
    stamps = False
    xmap = 0
    codepf = False
    mfma = True; reads = True; xdma = True; wdma = True
    wait_flags = True
    earlywait = True
    sleep = 0
    spin = 40000
    def __init__(self, **kw):
        for k, v in kw.items():
            assert hasattr(self, k), k
            setattr(self, k, v)


def gen(cfg):
    e = Emitter()
    def st(i):
        if cfg.stamps: e(f's_memtime s[{82+2*i}:{83+2*i}]')
    NS = cfg.NS; NST = 16
    LDS = NS * 32768
    assert NS == 5
    TAB = ((NST - 5) % NS) * 32768
    STG = ((NST - 4) % NS) * 32768
    e(HEADER.rstrip())
    e(f'; @launch grid=(256,1,1) block=(512,1,1) lds={LDS}')
    e('.amdgcn_target "amdgcn-amd-amdhsa--gfx950"\n.text')
    e(f'.globl {KNAME}\n.p2align 8\n.type {KNAME},@function\n{KNAME}:')
    e('s_cmp_ge_u32 s2, 0x100')
    e('s_cbranch_scc1 L_exit')
    if cfg.stamps: e('s_memtime s[40:41]\ns_memrealtime s[48:49]')
    e('s_load_dwordx2 s[12:13], s[0:1], 24')
    e('s_load_dwordx2 s[16:17], s[0:1], 8')
    e('s_load_dwordx2 s[8:9], s[0:1], 0')
    e('s_load_dwordx2 s[68:69], s[0:1], 16')
    e('s_load_dwordx2 s[60:61], s[0:1], 48')
    e('s_load_dwordx2 s[20:21], s[0:1], 32')
    e('v_lshrrev_b32 v1, 6, v0')
    e('v_and_b32 v0, 63, v0')
    e('v_readfirstlane_b32 s3, v1')
    e('s_mov_b32 s10, 0x800000\ns_mov_b32 s11, 0x20000')
    e('s_mov_b32 s14, 0x200000\ns_mov_b32 s15, 0x20000')
    e('s_mov_b32 s18, 0x800\ns_mov_b32 s19, 0x20000')
    e('s_mov_b32 s70, 0x800\ns_mov_b32 s71, 0x20000')
    e('s_mov_b32 s22, 0x800000\ns_mov_b32 s23, 0x20000')
    e('s_mov_b32 s62, 0x300000\ns_mov_b32 s63, 0x20000')
    e('s_and_b32 s4, s2, 7')
    e('s_lshr_b32 s5, s2, 3')
    if cfg.xmap == 0:
        e('s_and_b32 s6, s5, 3\ns_lshl_b32 s4, s4, 2\ns_add_u32 s4, s4, s6\ns_lshr_b32 s5, s5, 2')
    else:
        e('s_and_b32 s6, s5, 7\ns_lshr_b32 s7, s4, 1\ns_lshl_b32 s7, s7, 3\ns_add_u32 s6, s6, s7')
        e('s_and_b32 s4, s4, 1\ns_lshl_b32 s4, s4, 2\ns_lshr_b32 s5, s5, 3\ns_add_u32 s5, s5, s4\ns_mov_b32 s4, s6')
    e('s_mov_b32 s66, s3')
    if cfg.krot: e(f's_and_b32 s67, s4, 3\ns_mul_i32 s67, s67, {cfg.krot}')
    e('s_mov_b32 s53, 0xffff0000')
    e('s_cmp_ge_u32 s3, 4')
    e('s_cbranch_scc1 L_dma')
    mark_compute = len(e.lines)

    def rot_off(dst, base, q, shift, extra=0):
        if not cfg.krot: return [f's_add_u32 s{dst}, s{base}, {(q << shift) + extra}']
        o = [f's_add_u32 s{dst}, s67, {q}', f's_and_b32 s{dst}, s{dst}, 15', f's_lshl_b32 s{dst}, s{dst}, {shift}', f's_add_u32 s{dst}, s{dst}, s{base}']
        if extra: o.append(f's_add_u32 s{dst}, s{dst}, {extra}')
        return o

    def tagstore(vtmp, addr_sgpr):
        e(f'v_mov_b32 v{vtmp}, s{addr_sgpr}')
        e(f'v_mov_b32 v{vtmp+1}, s64')
        e('s_mov_b64 exec, 1')
        e(f'buffer_store_dword v{vtmp+1}, v{vtmp}, s[60:63], 0 offen sc1')
        e('s_mov_b64 exec, -1')

    ACC = 0; FR = 64; XA = 96; WA = 108; LN = 114; TA_ = 115
    lg = Counter(e, 'lgkmcnt', 15); vm = Counter(e, 'vmcnt', 63)
    T = 116
    e(f'v_mov_b32 v{LN}, v0')
    X = 128; L = 160; A = 192; RW_ = 204; I16 = 205
    e(f'v_lshrrev_b32 v{T}, 4, v{LN}')
    e(f'v_and_b32 v{I16}, 15, v{LN}')
    e('s_lshl_b32 s38, s4, 7\ns_lshl_b32 s39, s5, 4\ns_add_u32 s38, s38, s39\ns_lshl_b32 s39, s3, 2\ns_add_u32 s38, s38, s39')
    e(f'v_add_u32 v{RW_}, s38, v{T}')
    e(f'v_lshlrev_b32 v{T+11}, 11, v{RW_}')
    e(f'v_lshl_add_u32 v{T+11}, v{I16}, 4, v{T+11}')
    e('s_and_b32 s6, s3, 1')
    e('s_lshr_b32 s7, s3, 1')
    e(f'v_and_b32 v{T+1}, 31, v{LN}')
    e(f'v_lshrrev_b32 v{T+2}, 5, v{LN}')
    e(f'v_bfe_u32 v{T+3}, v{LN}, 1, 3')
    e(f'v_xor_b32 v{T+3}, v{T+3}, v{T+2}')
    e(f'v_lshlrev_b32 v{T+3}, 4, v{T+3}')
    e('s_lshl_b32 s37, s6, 13')
    e(f'v_lshl_add_u32 v{T+9}, v{T+1}, 7, v{T+3}')
    e(f'v_add_u32 v{XA}, s37, v{T+9}')
    for ks in range(1, 4): e(f'v_xor_b32 v{XA+ks}, {32*ks}, v{XA}')
    for w in range(1, 3):
        for ks in range(4): e(f'v_add_u32 v{XA+4*w+ks}, {0x10000*w}, v{XA+ks}')
    e(f'v_lshrrev_b32 v{T+1}, 4, v{LN}')
    e(f'v_bfe_u32 v{T+2}, v{LN}, 2, 2')
    e(f'v_and_b32 v{T+3}, 3, v{LN}')
    e(f'v_lshrrev_b32 v{T+9}, 1, v{T+1}')
    e(f'v_lshl_add_u32 v{T+9}, v{T+9}, 3, v{T+2}')
    e(f'v_lshlrev_b32 v{T+9}, 8, v{T+9}')
    e(f'v_and_b32 v{T+1}, 1, v{T+1}')
    e(f'v_lshlrev_b32 v{T+1}, 1, v{T+1}')
    e(f'v_lshrrev_b32 v{T+10}, 1, v{T+3}')
    e(f'v_add_u32 v{T+1}, v{T+1}, v{T+10}')
    e('s_lshl_b32 s37, s7, 3')
    e(f'v_add_u32 v{T+1}, s37, v{T+1}')
    e(f'v_lshlrev_b32 v{T+2}, 2, v{T+2}')
    e(f'v_xor_b32 v{T+1}, v{T+1}, v{T+2}')
    e(f'v_lshlrev_b32 v{T+1}, 4, v{T+1}')
    e(f'v_and_b32 v{T+3}, 1, v{T+3}')
    e(f'v_lshl_add_u32 v{T+1}, v{T+3}, 3, v{T+1}')
    e(f'v_add_u32 v{T+1}, v{T+1}, v{T+9}')
    e(f'v_add_u32 v{WA}, 0x4000, v{T+1}')
    e(f'v_xor_b32 v{WA+1}, 64, v{WA}')
    for w in range(1, 3):
        for nb in range(2): e(f'v_add_u32 v{WA+2*w+nb}, {0x10000*w}, v{WA+nb}')
    e(f'v_lshrrev_b32 v{T+1}, 5, v{LN}')
    e(f'v_lshlrev_b32 v{T+1}, 4, v{T+1}')
    e(f's_lshl_b32 s37, s7, 8\ns_add_u32 s37, s37, {TAB}')
    e(f'v_add_u32 v{TA_}, s37, v{T+1}')
    e('s_waitcnt lgkmcnt(0)')
    st(0)
    e(f's_load_dword s64, s[60:61], {WS_EPOCH}')
    def sload(j):
        e(f'buffer_load_dwordx4 v[{X+4*j}:{X+4*j+3}], v{T+11}, s[8:11], 0 offen offset:{256*j}{cfg.ntstat}'); vm.issue(('sx', j))
    VX = 208
    e(f'v_lshrrev_b32 v{T+1}, 3, v{LN}')
    e(f'v_lshlrev_b32 v{T+1}, 11, v{T+1}')
    e(f'v_and_b32 v{T+2}, 7, v{LN}')
    e(f'v_lshrrev_b32 v{T+3}, 4, v{LN}')
    e(f'v_xor_b32 v{T+2}, v{T+2}, v{T+3}')
    e(f'v_lshl_add_u32 v{VX}, v{T+2}, 4, v{T+1}')
    e(f'v_xor_b32 v{VX+1}, 64, v{VX}')
    e(f'v_add_u32 v{VX+1}, {16384-1024}, v{VX+1}')
    e('s_lshl_b32 s37, s4, 18\ns_lshl_b32 s39, s3, 16\ns_add_u32 s50, s37, s39\ns_lshl_b32 s51, s3, 12')
    def cx(q):
        slot = q % NS
        e(f's_add_u32 m0, s51, {slot*32768}')
        for ins in rot_off(54, 50, q, 7): e(ins)
        e(f'buffer_load_dwordx4 v{VX}, s[8:11], s54 offen{cfg.ntx} lds'); vm.issue(('x', q))
        e(f'buffer_load_dwordx4 v{VX+1}, s[8:11], s54 offen offset:1024{cfg.ntx} lds'); vm.issue(('x', q))
        e(f's_add_u32 m0, s51, {slot*32768+2048}')
        e(f's_add_u32 s54, s54, 32768')
        e(f'buffer_load_dwordx4 v{VX}, s[8:11], s54 offen{cfg.ntx} lds'); vm.issue(('x', q))
        e(f'buffer_load_dwordx4 v{VX+1}, s[8:11], s54 offen offset:1024{cfg.ntx} lds'); vm.issue(('x', q))
    def stats_rest():
        M = A + 8; V = A + 10
        vm.need([('sx', 7)])
        e('s_mov_b32 s39, 0x3f803f80')
        for j in range(cfg.half, 8):
            for i in range(4): e(f'v_dot2c_f32_bf16 v{A+i}, s39, v{X+4*j+i}')
            for i in range(4): e(f'v_dot2c_f32_bf16 v{A+4+i}, v{X+4*j+i}, v{X+4*j+i}')
        e('s_nop 2')
        e(f'v_add_f32 v{A}, v{A}, v{A+1}\nv_add_f32 v{A+2}, v{A+2}, v{A+3}')
        e(f'v_add_f32 v{A+4}, v{A+4}, v{A+5}\nv_add_f32 v{A+6}, v{A+6}, v{A+7}')
        e(f'v_add_f32 v{M}, v{A}, v{A+2}\nv_add_f32 v{V+1}, v{A+4}, v{A+6}')
        for rot in (8, 4, 2, 1):
            e('s_nop 0')
            e(f'v_add_f32_dpp v{M}, v{M}, v{M} row_ror:{rot} row_mask:0xf bank_mask:0xf')
            e(f'v_add_f32_dpp v{V+1}, v{V+1}, v{V+1} row_ror:{rot} row_mask:0xf bank_mask:0xf')
            e('s_nop 0')
        e(f'v_mul_f32 v{M}, 0xba800000, v{M}')
        e(f'v_mul_f32 v{V+1}, 0x3a800000, v{V+1}')
        e(f'v_fma_f32 v{V+1}, -v{M}, v{M}, v{V+1}')
        e(f'v_max_f32 v{V+1}, 0, v{V+1}')
        e(f'v_add_f32 v{V+1}, 0x3727c5ac, v{V+1}')
        e(f'v_rsq_f32 v{V}, v{V+1}')
        e('s_nop 0')
        e(f'v_mul_f32 v{V+1}, v{M}, v{V}')
        e(f'v_lshlrev_b32 v{RW_}, 3, v{RW_}')
        e(f'v_cmp_eq_u32 vcc, 0, v{I16}')
        e('s_and_saveexec_b64 s[76:77], vcc')
        e(f'buffer_store_dwordx2 v[{V}:{V+1}], v{RW_}, s[60:63], 0 offen sc1'); vm.issue('st')
        e('s_mov_b64 exec, -1')
    def stats_tag():
        vm.need(['st'])
        e(f's_lshl_b32 s38, s4, 7\ns_lshl_b32 s39, s5, 4\ns_add_u32 s38, s38, s39\ns_lshl_b32 s39, s3, 2\ns_add_u32 s38, s38, s39\ns_add_u32 s38, s38, {WS_FR}')
        tagstore(T + 1, 38)
    if cfg.half:
        H = cfg.half
        e('s_barrier')
        for j in range(H): sload(j)
        e('s_barrier')
        st(1)
        e('s_mov_b32 s39, 0x3f803f80')
        for a in range(8): e(f'v_mov_b32 v{A+a}, 0')
        vm.need([('sx', H - 1)])
        st(2)
        for j in range(H):
            for i in range(4): e(f'v_dot2c_f32_bf16 v{A+i}, s39, v{X+4*j+i}')
            for i in range(4): e(f'v_dot2c_f32_bf16 v{A+4+i}, v{X+4*j+i}, v{X+4*j+i}')
        for q in range(cfg.prex): cx(q)
        e('s_waitcnt lgkmcnt(0)')
        e(f's_add_u32 s64, s64, {TAG_STEP}')
        st(3)
        e('s_barrier')
        e('s_waitcnt vmcnt(0)')
        vm.q = []
    else:
        if cfg.statwhen == '0':
            if cfg.statdelay0: e(f's_sleep {cfg.statdelay0}')
            for j in range(8): sload(j)
            e('s_barrier')
        else:
            if cfg.slate:
                assert cfg.statwhen == 's' and cfg.statsplit == 8
                e('s_cmp_lt_u32 s4, 16')
                e('s_cbranch_scc1 L_searly')
                for j in range(8): e(f'buffer_load_dwordx4 v[{X+4*j}:{X+4*j+3}], v{T+11}, s[8:11], 0 offen offset:{256*j}{cfg.ntstat}')
                e('s_barrier')
                e('s_branch L_sjoin')
                e('L_searly:')
                e('s_barrier')
                for j in range(8): sload(j)
                e('L_sjoin:')
                e('s_barrier')
            else:
                if cfg.statwhen == 's': e('s_barrier')
                else: e('s_barrier')
                for j in range(cfg.statsplit): sload(j)
                if cfg.statwhen == 's': e('s_barrier')
            if cfg.statsplit < 8:
                vm.need([('sx', 0)])
                for j in range(cfg.statsplit, 8): sload(j)
        for q in range(cfg.xearly): cx(q)
        st(1)
        if cfg.bwearly: e('s_barrier')
        vm.need([('sx', 7)])
        st(2)
        for q in range(cfg.xearly, cfg.prex1): cx(q)
        M = A + 8; V = A + 10
        if cfg.onepass:
            e('s_mov_b32 s39, 0x3f803f80')
            for a in range(8): e(f'v_mov_b32 v{A+a}, 0')
            for j in range(8):
                for i in range(4): e(f'v_dot2c_f32_bf16 v{A+i}, s39, v{X+4*j+i}')
                for i in range(4): e(f'v_dot2c_f32_bf16 v{A+4+i}, v{X+4*j+i}, v{X+4*j+i}')
            e('s_nop 2')
            e(f'v_add_f32 v{A}, v{A}, v{A+1}\nv_add_f32 v{A+2}, v{A+2}, v{A+3}')
            e(f'v_add_f32 v{A+4}, v{A+4}, v{A+5}\nv_add_f32 v{A+6}, v{A+6}, v{A+7}')
            e(f'v_add_f32 v{M}, v{A}, v{A+2}\nv_add_f32 v{V+1}, v{A+4}, v{A+6}')
            for rot in (8, 4, 2, 1):
                e('s_nop 0')
                e(f'v_add_f32_dpp v{M}, v{M}, v{M} row_ror:{rot} row_mask:0xf bank_mask:0xf')
                e(f'v_add_f32_dpp v{V+1}, v{V+1}, v{V+1} row_ror:{rot} row_mask:0xf bank_mask:0xf')
                e('s_nop 0')
            e(f'v_mul_f32 v{M}, 0xba800000, v{M}')
            e(f'v_mul_f32 v{V+1}, 0x3a800000, v{V+1}')
            e(f'v_fma_f32 v{V+1}, -v{M}, v{M}, v{V+1}')
            e(f'v_max_f32 v{V+1}, 0, v{V+1}')
            e(f'v_add_f32 v{V+1}, 0x3727c5ac, v{V+1}')
        else:
            for d in range(32):
                e(f'v_lshlrev_b32 v{L+d}, 16, v{X+d}')
                e(f'v_and_b32 v{X+d}, s53, v{X+d}')
            for a in range(4):
                e(f'v_pk_add_f32 v[{A+2*a}:{A+2*a+1}], v[{X+2*a}:{X+2*a+1}], v[{L+2*a}:{L+2*a+1}]')
            for d in range(8, 32, 2):
                a = (d // 2) % 4
                e(f'v_pk_add_f32 v[{A+2*a}:{A+2*a+1}], v[{A+2*a}:{A+2*a+1}], v[{X+d}:{X+d+1}]')
                e(f'v_pk_add_f32 v[{A+2*a}:{A+2*a+1}], v[{A+2*a}:{A+2*a+1}], v[{L+d}:{L+d+1}]')
            def fold(dst):
                e(f'v_pk_add_f32 v[{A}:{A+1}], v[{A}:{A+1}], v[{A+2}:{A+3}]')
                e(f'v_pk_add_f32 v[{A+4}:{A+5}], v[{A+4}:{A+5}], v[{A+6}:{A+7}]')
                e(f'v_pk_add_f32 v[{A}:{A+1}], v[{A}:{A+1}], v[{A+4}:{A+5}]')
                e(f'v_add_f32 v{dst}, v{A}, v{A+1}')
                for rot in (8, 4, 2, 1):
                    e('s_nop 1')
                    e(f'v_add_f32_dpp v{dst}, v{dst}, v{dst} row_ror:{rot} row_mask:0xf bank_mask:0xf')
            M = A + 8
            fold(M)
            e(f'v_mul_f32 v{M}, 0xba800000, v{M}')
            for d in range(0, 32, 2):
                e(f'v_pk_add_f32 v[{X+d}:{X+d+1}], v[{X+d}:{X+d+1}], v[{M}:{M+1}] op_sel_hi:[1,0]')
                e(f'v_pk_add_f32 v[{L+d}:{L+d+1}], v[{L+d}:{L+d+1}], v[{M}:{M+1}] op_sel_hi:[1,0]')
            for a in range(4):
                e(f'v_pk_mul_f32 v[{A+2*a}:{A+2*a+1}], v[{X+2*a}:{X+2*a+1}], v[{X+2*a}:{X+2*a+1}]')
            for d in range(8, 32, 2):
                a = (d // 2) % 4
                e(f'v_pk_fma_f32 v[{A+2*a}:{A+2*a+1}], v[{X+d}:{X+d+1}], v[{X+d}:{X+d+1}], v[{A+2*a}:{A+2*a+1}]')
            for d in range(0, 32, 2):
                a = (d // 2) % 4
                e(f'v_pk_fma_f32 v[{A+2*a}:{A+2*a+1}], v[{L+d}:{L+d+1}], v[{L+d}:{L+d+1}], v[{A+2*a}:{A+2*a+1}]')
            V = A + 10
            fold(V)
            e('s_mov_b32 s39, 0x3727c5ac')
            e(f'v_mov_b32 v{V+1}, s39')
            e(f'v_fmac_f32 v{V+1}, 0x3a800000, v{V}')
        e(f'v_rsq_f32 v{V}, v{V+1}')
        e('s_nop 0')
        e(f'v_mul_f32 v{V+1}, v{M}, v{V}')
        e(f'v_lshlrev_b32 v{RW_}, 3, v{RW_}')
        e(f'v_cmp_eq_u32 vcc, 0, v{I16}')
        e('s_and_saveexec_b64 s[76:77], vcc')
        e(f'buffer_store_dwordx2 v[{V}:{V+1}], v{RW_}, s[60:63], 0 offen sc1')
        e('s_mov_b64 exec, -1')
        if not cfg.xlate:
            for q in range(max(cfg.prex1, cfg.xearly), cfg.prex): cx(q)
        e('s_waitcnt lgkmcnt(0)')
        e(f's_add_u32 s64, s64, {TAG_STEP}')
        st(3)
        if not cfg.bwearly: e('s_barrier')
        if cfg.xlate:
            vm.q = []
            e('s_waitcnt vmcnt(0)')
            e(f's_lshl_b32 s38, s4, 7\ns_lshl_b32 s39, s5, 4\ns_add_u32 s38, s38, s39\ns_lshl_b32 s39, s3, 2\ns_add_u32 s38, s38, s39\ns_add_u32 s38, s38, {WS_FR}')
            tagstore(T + 1, 38)
            for q in range(cfg.prex1, cfg.prex): cx(q)
        if not cfg.xlate:
            e('s_waitcnt vmcnt(0)')
            e(f's_lshl_b32 s38, s4, 7\ns_lshl_b32 s39, s5, 4\ns_add_u32 s38, s38, s39\ns_lshl_b32 s39, s3, 2\ns_add_u32 s38, s38, s39\ns_add_u32 s38, s38, {WS_FR}')
            tagstore(T + 1, 38)
            vm.q = []

    def rd_list(p, ks):
        st_ = FR + 16 * (ks & 1)
        slot = p % NS
        win = slot // 2
        xo = (slot % 2) * 32768
        wo = (slot % 2) * 32768 + ks * 4096
        xr = XA + 4 * win + ks; wr = WA + 2 * win
        return [
            (f'ds_read_b64_tr_b16 v[{st_}:{st_+1}], v{wr} offset:{wo}', ('W0', p, ks)),
            (f'ds_read_b64_tr_b16 v[{st_+2}:{st_+3}], v{wr} offset:{wo+1024}', ('W0', p, ks)),
            (f'ds_read_b128 v[{st_+8}:{st_+11}], v{xr} offset:{xo}', ('x0', p, ks)),
            (f'ds_read_b128 v[{st_+12}:{st_+15}], v{xr} offset:{xo+4096}', ('x1', p, ks)),
            (f'ds_read_b64_tr_b16 v[{st_+4}:{st_+5}], v{wr+1} offset:{wo}', ('W1', p, ks)),
            (f'ds_read_b64_tr_b16 v[{st_+6}:{st_+7}], v{wr+1} offset:{wo+1024}', ('W1', p, ks)),
        ]
    def group(p, ks, reads, last_in_phase=False, order=None):
        st_ = FR + 16 * (ks & 1)
        order = order or [(0, 0), (0, 1), (1, 1), (1, 0)]
        split = [(0, 3), (3, 6), (6, 6), (6, 6)] if last_in_phase else [(0, 2), (2, 4), (4, 6), (6, 6)]
        for i, (nb, mb) in enumerate(order):
            if p >= 0:
                lg.need([(f'W{nb}', p, ks), (f'x{mb}', p, ks)])
                if last_in_phase and i == 3 and cfg.earlywait: lg.drain()
                a = ACC + 16 * (2 * nb + mb)
                c = '0' if (p == 0 and ks == 0) else f'v[{a}:{a+15}]'
                if cfg.mfma: e(f'v_mfma_f32_32x32x16_bf16 v[{a}:{a+15}], v[{st_+4*nb}:{st_+4*nb+3}], v[{st_+8+4*mb}:{st_+8+4*mb+3}], {c}')
                else: e('s_nop 7')
            for (ins, tag) in reads[split[i][0]:split[i][1]]:
                if cfg.reads:
                    e(ins); lg.issue(tag)
    GWR = 128; BWR = 160; RS = 192
    Y = 200; D = 208; SA = 212; SR = 213; GO = 214; XW = 216; SRD_ = 218
    def epi_addresses():
        e(f'v_and_b32 v{T}, 31, v{LN}')
        e(f's_lshl_b32 s38, s6, 9\ns_add_u32 s38, s38, {TAB+1024}')
        e(f'v_lshl_add_u32 v{SRD_}, v{T}, 3, s38')
        e(f'v_and_b32 v{Y}, 7, v{LN}')
        e(f'v_lshlrev_b32 v{Y}, 4, v{Y}')
        e(f'v_lshrrev_b32 v{Y+1}, 5, v{LN}')
        e(f'v_lshl_add_u32 v{Y}, v{Y+1}, 3, v{Y}')
        e(f'v_lshl_add_u32 v{SA}, v{T}, 7, v{Y}')
        e(f's_lshl_b32 s38, s3, 13\ns_add_u32 s38, s38, {STG}')
        e(f'v_add_u32 v{SA}, s38, v{SA}')
        e(f'v_lshrrev_b32 v{Y}, 3, v{LN}')
        e(f'v_and_b32 v{Y+1}, 7, v{LN}')
        e(f'v_xor_b32 v{Y+2}, v{Y+1}, v{Y}')
        e(f'v_lshlrev_b32 v{Y+2}, 4, v{Y+2}')
        e(f'v_lshl_add_u32 v{SR}, v{Y}, 7, v{Y+2}')
        e(f'v_add_u32 v{SR}, s38, v{SR}')
        e(f'v_lshlrev_b32 v{GO}, 11, v{Y}')
        e(f'v_lshl_add_u32 v{GO}, v{Y+1}, 4, v{GO}')
        e('s_lshl_b32 s38, s4, 18\ns_lshl_b32 s39, s6, 17\ns_add_u32 s38, s38, s39')
        e('s_lshl_b32 s39, s5, 8\ns_add_u32 s38, s38, s39\ns_lshl_b32 s39, s7, 7\ns_add_u32 s65, s38, s39')
    def table_reads():
        r = [(f'ds_read_b64 v[{RS}:{RS+1}], v{SRD_}', 'rs'), (f'ds_read_b64 v[{RS+2}:{RS+3}], v{SRD_} offset:256', 'rs')]
        for nb in range(2):
            for j in range(4):
                r.append((f'ds_read_b128 v[{GWR+16*nb+4*j}:{GWR+16*nb+4*j+3}], v{TA_} offset:{(nb*32+8*j)*4}', ('tg', nb, j)))
                r.append((f'ds_read_b128 v[{BWR+16*nb+4*j}:{BWR+16*nb+4*j+3}], v{TA_} offset:{512+(nb*32+8*j)*4}', ('tg', nb, j)))
        return r
    epi_addresses()
    e('s_barrier')
    if cfg.stamps: e('s_memtime s[42:43]')
    for p in range(NST):
        tr = table_reads() if (p == NST - 1 and cfg.epi2) else []
        def extra(k):
            for ins, tag in tr[6*k:6*k+6]:
                e(ins); lg.issue(tag)
        group(p - 1, 3, rd_list(p, 0))
        group(p, 0, rd_list(p, 1)); extra(0)
        group(p, 1, rd_list(p, 2)); extra(1)
        group(p, 2, rd_list(p, 3), last_in_phase=(p < NST - 1)); extra(2)
        if cfg.half:
            if p == 0:
                for j in range(cfg.half, 8): sload(j)
            if p == cfg.SB: stats_rest()
            if p == cfg.SB + 2: stats_tag()
        if p < NST - 1: e('s_barrier')
    group(NST - 1, 3, [], order=[(0, 0), (1, 0), (1, 1), (0, 1)] if cfg.epi2 else None)
    if not cfg.epi2:
        for ins, tag in table_reads():
            e(ins); lg.issue(tag)
    if cfg.stamps: e('s_memtime s[44:45]')
    def stage_reads(mb):
        r0 = ACC + 16 * mb
        for q in range(4):
            e(f'ds_read_b128 v[{r0+4*q}:{r0+4*q+3}], v{SR} offset:{mb*4096+q*1024}'); lg.issue(('sr', mb, q))
    def out_store(mb, q):
        r0 = ACC + 16 * mb
        lg.need([('sr', mb, q)])
        e(f's_add_u32 s51, s65, {(mb*32+8*q)*2048}')
        e(f'buffer_store_dwordx4 v[{r0+4*q}:{r0+4*q+3}], v{GO}, s[20:23], s51 offen{cfg.ntout}')
    if cfg.epi2: e('s_nop 7')
    for idx in range(16):
        mb, nb, j = idx >> 3, (idx >> 2) & 1, idx & 3
        rs = RS + 2 * mb
        a = ACC + 16 * (2 * nb + mb)
        gw = GWR + 16 * nb + 4 * j; bw = BWR + 16 * nb + 4 * j
        lg.need(['rs', ('tg', nb, j)])
        y = Y + 4 * (j & 1)
        for hh in range(2):
            e(f'v_pk_fma_f32 v[{y+2*hh}:{y+2*hh+1}], v[{gw+2*hh}:{gw+2*hh+1}], v[{rs}:{rs+1}], v[{bw+2*hh}:{bw+2*hh+1}] op_sel:[0,1,0] op_sel_hi:[1,1,1]')
        for hh in range(2):
            e(f'v_pk_fma_f32 v[{y+2*hh}:{y+2*hh+1}], v[{a+4*j+2*hh}:{a+4*j+2*hh+1}], v[{rs}:{rs+1}], v[{y+2*hh}:{y+2*hh+1}] op_sel_hi:[1,0,1]')
        d = D + 2 * (j & 1)
        e(f'v_xor_b32 v{XW+(j&1)}, {(nb*4+j)*16}, v{SA}')
        e(f'v_cvt_pk_bf16_f32 v{d}, v{y}, v{y+1}')
        e(f'v_cvt_pk_bf16_f32 v{d+1}, v{y+2}, v{y+3}')
        e(f'ds_write_b64 v{XW+(j&1)}, v[{d}:{d+1}] offset:{mb*4096}'); lg.issue(('sw', mb))
        if cfg.epi2:
            if idx == 7: stage_reads(0)
            if idx == 9: out_store(0, 0); out_store(0, 1)
            if idx == 10: out_store(0, 2); out_store(0, 3)
            if idx == 15:
                stage_reads(1)
                for q in range(4): out_store(1, q)
        elif idx % 8 == 7:
            lg.need([('sw', mb)])
            stage_reads(mb)
            for q in range(4): out_store(mb, q)
    e('s_branch L_end')

    mark_dma = len(e.lines)
    e('L_dma:')
    vm = Counter(e, 'vmcnt', 63); lg = Counter(e, 'lgkmcnt', 15)
    VXO = 2; FL = 4; VL16 = 10; PR = 16
    T = 96; PW = 64; PG = 72; U = 76; WPK = 84; X = 112; WD = 104
    e('s_sub_u32 s3, s3, 4')
    e(f'v_lshrrev_b32 v{T+4}, 2, v0')
    e(f'v_and_b32 v{T+5}, 3, v0')
    e(f'v_lshlrev_b32 v{T+6}, 11, v{T+4}')
    e(f'v_lshl_add_u32 v{T+6}, v{T+5}, 4, v{T+6}')
    e(f'v_lshlrev_b32 v{T+7}, 1, v{T+4}')
    for r in range(4): e(f'v_mov_b32 v{PG+r}, 0')
    e('s_lshl_b32 s38, s4, 16\ns_lshl_b32 s39, s5, 8\ns_add_u32 s38, s38, s39\ns_lshl_b32 s39, s3, 6\ns_add_u32 s38, s38, s39')
    e('s_add_u32 s39, s38, 0x8000')
    e('s_lshl_b32 s36, s4, 6')
    e('s_waitcnt lgkmcnt(0)')
    st(0)
    e(f'buffer_load_dwordx4 v[{PW}:{PW+3}], v{T+6}, s[12:15], s38 offen{cfg.ntslab}'); vm.issue('pw0')
    e(f'buffer_load_short_d16_hi v{PG}, v{T+7}, s[16:19], s36 offen'); vm.issue('pg0')
    e(f'buffer_load_dwordx4 v[{PW+4}:{PW+7}], v{T+6}, s[12:15], s39 offen{cfg.ntslab}'); vm.issue('pw1')
    e(f'buffer_load_short_d16_hi v{PG+1}, v{T+7}, s[16:19], s36 offen offset:32'); vm.issue('pg1')
    e(f'buffer_load_short_d16_hi v{PG+2}, v{T+7}, s[68:71], s36 offen'); vm.issue('pb')
    e(f'buffer_load_short_d16_hi v{PG+3}, v{T+7}, s[68:71], s36 offen offset:32'); vm.issue('pb')
    e(f's_load_dword s64, s[60:61], {WS_EPOCH}')
    e('v_lshrrev_b32 v8, 3, v0')
    e('v_lshlrev_b32 v8, 11, v8')
    e('v_and_b32 v9, 7, v0')
    e('v_lshrrev_b32 v11, 4, v0')
    e('v_xor_b32 v9, v9, v11')
    e(f'v_lshl_add_u32 v{VXO}, v9, 4, v8')
    e(f'v_xor_b32 v{VXO+1}, 64, v{VXO}')
    e(f'v_add_u32 v{VXO+1}, {16384-1024}, v{VXO+1}')
    e(f'v_lshlrev_b32 v{VL16}, 4, v0')
    e('s_lshl_b32 s37, s4, 18\ns_lshl_b32 s39, s3, 16\ns_add_u32 s50, s37, s39\ns_lshl_b32 s51, s3, 12')
    e(f's_lshl_b32 s37, s5, 18\ns_add_u32 s52, s37, s51\ns_add_u32 s52, s52, {WS_W}')
    def emit_ops(ops):
        for ins, tag in ops:
            e(ins)
            if tag: vm.issue(tag)
    def x_ops(q):
        slot = q % NS
        if not cfg.xdma: return []
        if cfg.xlin:
            o = [(f's_add_u32 m0, s51, {slot*32768}', None), (f's_lshl_b32 s54, s4, 18', None), (f's_add_u32 s54, s54, s51', None), (f's_add_u32 s54, s54, {q*16384}', None)]
            for j in range(4): o.append((f'buffer_load_dwordx4 v{VL16}, s[8:11], s54 offen offset:{1024*j} lds', ('x', q)))
            return o
        return [(f's_add_u32 m0, s51, {slot*32768}', None)] + [(i, None) for i in rot_off(54, 50, q, 7)] + [
                (f'buffer_load_dwordx4 v{VXO}, s[8:11], s54 offen{cfg.ntx} lds', ('x', q)),
                (f'buffer_load_dwordx4 v{VXO+1}, s[8:11], s54 offen offset:1024{cfg.ntx} lds', ('x', q)),
                (f's_add_u32 m0, s51, {slot*32768+2048}', None),
                (f's_add_u32 s54, s54, 32768', None),
                (f'buffer_load_dwordx4 v{VXO}, s[8:11], s54 offen{cfg.ntx} lds', ('x', q)),
                (f'buffer_load_dwordx4 v{VXO+1}, s[8:11], s54 offen offset:1024{cfg.ntx} lds', ('x', q))]
    wsc = '' if cfg.nosc1w else ' sc1'
    def w_ops(q):
        slot = q % NS
        if not cfg.wdma: return []
        o = [(f's_add_u32 m0, s51, {slot*32768+16384}', None)] + [(i, None) for i in rot_off(55, 52, q, 14)]
        for j in range(4):
            o.append((f'buffer_load_dwordx4 v{VL16}, s[60:63], s55 offen offset:{1024*j}{wsc}{cfg.ntw} lds', ('w', q)))
        return o
    e(f'v_and_b32 v{T+1}, 3, v{T+4}')
    e(f'v_lshlrev_b32 v{T+1}, 2, v{T+1}')
    e('s_lshl_b32 s37, s3, 2')
    e(f'v_add_u32 v{T+2}, s37, v{T+5}')
    e(f'v_xor_b32 v{T+1}, v{T+1}, v{T+2}')
    e(f'v_lshlrev_b32 v{T+1}, 4, v{T+1}')
    e(f'v_lshl_add_u32 v{WD}, v{T+4}, 8, v{T+1}')
    e(f's_lshl_b32 s38, s5, 18\ns_lshl_b32 s39, s4, 13\ns_add_u32 s38, s38, s39\ns_add_u32 s38, s38, {WS_W}')
    e('s_add_u32 s39, s38, 0x1000')
    for t in range(2):
        vm.need([f'pw{t}', f'pg{t}'])
        if t == 0: st(1)
        w = PW + 4 * t; gk = PG + t; u = U
        for i in range(4):
            e(f'v_lshlrev_b32 v{u+2*i}, 16, v{w+i}')
            e(f'v_and_b32 v{u+2*i+1}, s53, v{w+i}')
        for i in range(8): e(f'v_mul_f32 v{u+i}, v{gk}, v{u+i}')
        for i in range(4): e(f'v_cvt_pk_bf16_f32 v{WPK+4*t+i}, v{u+2*i}, v{u+2*i+1}')
        e(f'buffer_store_dwordx4 v[{WPK+4*t}:{WPK+4*t+3}], v{WD}, s[60:63], s{38+t} offen sc1'); vm.issue('wst')
    if cfg.statwhen == 's': e('s_barrier')
    st(2)
    vm.need(['wst'])
    st(3)
    e('s_waitcnt lgkmcnt(0)')
    e(f's_add_u32 s64, s64, {TAG_STEP}')
    e('s_barrier')
    e('s_cmp_lg_u32 s3, 0')
    e('s_cbranch_scc1 L_noflagw')
    e(f's_lshl_b32 s38, s5, 10\ns_lshl_b32 s39, s4, 2\ns_add_u32 s38, s38, s39\ns_add_u32 s38, s38, {WS_FW}')
    e(f'v_lshlrev_b32 v{T+1}, 7, v0')
    e(f'v_add_u32 v{T+1}, s38, v{T+1}')
    e(f'v_mov_b32 v{T+2}, s64')
    e('s_mov_b64 exec, 0xff')
    e(f'buffer_store_dword v{T+2}, v{T+1}, s[60:63], 0 offen sc1')
    e('s_mov_b64 exec, -1')
    e('L_noflagw:')
    st(4)
    ix = cfg.prex
    def partial_sums():
        for t in range(2):
            w = PW + 4 * t; bk = PG + 2 + t
            for i in range(4):
                e(f'v_lshlrev_b32 v{U+2*i}, 16, v{w+i}')
                e(f'v_and_b32 v{U+2*i+1}, s53, v{w+i}')
            for i in range(8):
                if t == 0: e(f'v_mul_f32 v{X+8+i}, v{bk}, v{U+i}')
                else: e(f'v_fmac_f32 v{X+8+i}, v{bk}, v{U+i}')
            for i in range(4):
                if t == 0:
                    e(f'v_lshlrev_b32 v{X+2*i}, 16, v{WPK+i}')
                    e(f'v_and_b32 v{X+2*i+1}, s53, v{WPK+i}')
                else:
                    e(f'v_lshlrev_b32 v{U+2*i}, 16, v{WPK+4+i}')
                    e(f'v_and_b32 v{U+2*i+1}, s53, v{WPK+4+i}')
            if t == 1:
                for i in range(8): e(f'v_add_f32 v{X+i}, v{X+i}, v{U+i}')
        e('s_nop 1')
        for j in range(8): e(f'v_permlane32_swap_b32 v{X+j}, v{X+8+j}')
        e('s_nop 1')
        for j in range(8): e(f'v_add_f32 v{X+j}, v{X+j}, v{X+8+j}')
        e('s_nop 1')
        for j in range(4): e(f'v_permlane16_swap_b32 v{X+j}, v{X+4+j}')
        e('s_nop 1')
        for j in range(4): e(f'v_add_f32 v{X+j}, v{X+j}, v{X+4+j}')
        for rot in (8, 4):
            e('s_nop 1')
            for j in range(4): e(f'v_add_f32_dpp v{X+j}, v{X+j}, v{X+j} row_ror:{rot} row_mask:0xf bank_mask:0xf')
        e(f'v_lshrrev_b32 v{T+1}, 4, v0')
        e(f'v_lshrrev_b32 v{T+2}, 1, v{T+1}')
        e(f'v_lshlrev_b32 v{T+2}, 9, v{T+2}')
        e(f'v_and_b32 v{T+1}, 1, v{T+1}')
        e(f'v_lshl_add_u32 v{T+2}, v{T+1}, 4, v{T+2}')
        e(f'v_lshl_add_u32 v{T+2}, v{T+5}, 5, v{T+2}')
        e('s_lshl_b32 s38, s5, 5\ns_add_u32 s38, s38, s4\ns_lshl_b32 s38, s38, 10\ns_lshl_b32 s39, s3, 7\ns_add_u32 s38, s38, s39')
        e(f's_add_u32 s38, s38, {WS_PART}')
        e(f'v_and_b32 v{T+1}, 15, v0')
        e(f'v_cmp_gt_u32 vcc, 4, v{T+1}')
        e('s_and_saveexec_b64 s[76:77], vcc')
        e(f'buffer_store_dwordx4 v[{X}:{X+3}], v{T+2}, s[60:63], s38 offen sc1'); vm.issue('pst')
        e('s_mov_b64 exec, -1')
    if not cfg.partlate: partial_sums()
    for q in range(cfg.prex, cfg.prex + cfg.xd):
        emit_ops(x_ops(q)); ix += 1
    if cfg.codepf:
        e('s_getpc_b64 s[78:79]')
        e('L_pc:')
        e('s_sub_u32 s78, s78, L_pc-' + KNAME)
        e('s_subb_u32 s79, s79, 0')
        e('v_lshlrev_b32 v12, 7, v0')
        e('s_lshl_b32 s38, s3, 13')
        e('v_add_u32 v12, s38, v12')
        e('CODEPF')
    e(f'v_lshlrev_b32 v{FL+2}, 2, v0')
    e('s_cmp_eq_u32 s3, 0')
    e('s_cselect_b32 s37, 0, 0x7fff0000')
    e(f's_lshl_b32 s38, s5, 9\ns_add_u32 s38, s38, {WS_FC}\ns_add_u32 s38, s38, s37')
    e('v_lshlrev_b32 v13, 3, v0')
    e(f'v_add_u32 v{FL+4}, s38, v13')
    e(f's_lshl_b32 s38, s4, 7\ns_add_u32 s38, s38, {WS_FR}\ns_add_u32 s38, s38, s37')
    e('v_and_b32 v13, 31, v0')
    e('v_lshlrev_b32 v13, 2, v13')
    e(f'v_add_u32 v{FL+5}, s38, v13')
    if cfg.wait_flags:
        e('s_cmp_lg_u32 s3, 0')
        e('s_cbranch_scc1 L_notpoller')
        e('v_and_b32 v12, 31, v0')
        if cfg.G1 < 32: e(f'v_min_u32 v12, {cfg.G1-1}, v12')
        e('v_lshlrev_b32 v12, 2, v12')
        e(f's_lshl_b32 s39, s5, 10\ns_lshr_b32 s37, s4, 2\ns_lshl_b32 s37, s37, 7\ns_add_u32 s39, s39, s37\ns_add_u32 s39, s39, {WS_FW}')
        e(f's_mov_b32 s38, {cfg.spin}')
        if cfg.polldelay: e(f's_sleep {cfg.polldelay}')
        n = cfg.pipepoll
        for i in range(n - 1):
            e(f'buffer_load_dword v{16+i}, v12, s[60:63], s39 offen sc1')
            e(f's_sleep {cfg.pollgap}')
        e('L_spin_w:')
        for i in range(n):
            e(f'buffer_load_dword v{16+(i+n-1)%n}, v12, s[60:63], s39 offen sc1')
            e(f's_waitcnt vmcnt({n-1})')
            e(f'v_cmp_eq_u32 vcc, s64, v{16+i}')
            e('s_cmp_eq_u64 vcc, -1')
            e('s_cbranch_scc1 L_found_w')
            if n > 1: e(f's_sleep {cfg.pollgap}')
            elif cfg.sleep: e(f's_sleep {cfg.sleep}')
        e('s_sub_u32 s38, s38, 1')
        e('s_cmp_lg_u32 s38, 0')
        e('s_cbranch_scc1 L_spin_w')
        e('L_found_w:')
        e('s_branch L_ready_w')
        e('L_notpoller:')
        if not cfg.partlate: e('s_waitcnt vmcnt(0)')
        e('L_ready_w:')
    if cfg.stamps: e('s_memtime s[58:59]')
    def fc_tag():
        e(f's_lshl_b32 s38, s5, 9\ns_lshl_b32 s39, s4, 4\ns_add_u32 s38, s38, s39\ns_lshl_b32 s39, s3, 2\ns_add_u32 s38, s38, s39\ns_add_u32 s38, s38, {WS_FC}')
        tagstore(T + 1, 38)
    if not cfg.partlate:
        if not cfg.wait_flags: e('s_waitcnt vmcnt(0)')
        vm.q = []
        fc_tag()
    else:
        vm.q = []
    e('s_barrier')
    iw = 0
    for q in range(cfg.prew):
        emit_ops(w_ops(q)); iw += 1
    if cfg.partlate: partial_sums()
    vm.need([('w', 0)])
    if cfg.prex == 0 and cfg.xd == 0:
        pass
    if cfg.dprio: e(f's_setprio {cfg.dprio}')
    e('s_barrier')
    if cfg.stamps: e('s_memtime s[42:43]')
    if cfg.G1 < 32:
        e('v_and_b32 v13, 31, v0')
        e('v_lshlrev_b32 v13, 2, v13')
        e('s_cmp_eq_u32 s3, 0')
        e('s_cselect_b32 s37, 0, 0x7fff0000')
        e(f's_lshl_b32 s39, s5, 10\ns_lshr_b32 s38, s4, 2\ns_lshl_b32 s38, s38, 7\ns_add_u32 s39, s39, s38\ns_add_u32 s39, s39, {WS_FW}\ns_add_u32 s39, s39, s37')
        e('v_add_u32 v57, s39, v13')
    P2C = cfg.G1 // 2 - cfg.LA - 1 if cfg.G1 < 32 else -1
    PO = 58
    def check_final():
        e(f'v_cmp_eq_u32 vcc, s64, v{PO}')
        e(f'v_cmp_eq_u32 s[76:77], s64, v{PO+1}')
        e(f'v_cmp_eq_u32 s[80:81], s64, v{PO+2}')
        e('s_and_b64 vcc, vcc, s[76:77]')
        e('s_and_b64 vcc, vcc, s[80:81]')
        e('s_cmp_eq_u64 vcc, -1')
    if cfg.two:
        e('s_cmp_eq_u32 s3, 0')
        e('s_cselect_b32 s37, 0, 0x7fff0000')
        e('v_lshrrev_b32 v12, 1, v0')
        e('v_lshlrev_b32 v12, 10, v12')
        e('v_and_b32 v13, 1, v0')
        e('v_lshl_add_u32 v12, v13, 4, v12')
        e(f's_lshl_b32 s38, s5, 15\ns_lshl_b32 s39, s4, 5\ns_add_u32 s38, s38, s39\ns_add_u32 s38, s38, {WS_PART}\ns_add_u32 s38, s38, s37')
        e('v_add_u32 v62, s38, v12')
        e(f's_lshl_b32 s38, s5, 10\ns_lshl_b32 s39, s4, 5\ns_add_u32 s38, s38, s39\ns_add_u32 s38, s38, {WS_FIN}\ns_add_u32 s38, s38, s37')
        e('v_lshlrev_b32 v13, 4, v13')
        e('v_add_u32 v63, s38, v13')
        e('v_and_b32 v13, 31, v0')
        e('v_lshlrev_b32 v13, 2, v13')
        e(f's_lshl_b32 s38, s5, 7\ns_add_u32 s38, s38, {WS_FT}\ns_add_u32 s38, s38, s37')
        e('v_add_u32 v92, s38, v13')
        e(f's_lshl_b32 s38, s5, 10\ns_add_u32 s38, s38, {WS_FIN}\ns_add_u32 s38, s38, s37')
        e(f'v_add_u32 v93, s38, v{VL16}')
        e(f's_lshl_b32 s38, s4, 10\ns_add_u32 s38, s38, s37')
        e(f'v_add_u32 v94, s38, v{VL16}')
    def spin_check(name, loads, cmps):
        e('s_cmp_lg_u32 s3, 0')
        e(f's_cbranch_scc1 L_ok_{name}')
        def chk():
            for i, r in enumerate(cmps):
                dst = 'vcc' if i == 0 else 's[76:77]'
                e(f'v_cmp_eq_u32 {dst}, s64, v{r}')
                if i: e('s_and_b64 vcc, vcc, s[76:77]')
            e('s_cmp_eq_u64 vcc, -1')
            e(f's_cbranch_scc1 L_ok_{name}')
        chk()
        if cfg.wait_flags:
            e(f's_mov_b32 s38, {cfg.spin}')
            e(f'L_spin_{name}:')
            for l in loads: e(l)
            e('s_waitcnt vmcnt(0)')
            chk()
            e('s_sub_u32 s38, s38, 1')
            e('s_cmp_lg_u32 s38, 0')
            e(f's_cbranch_scc1 L_spin_{name}')
        e(f'L_ok_{name}:')
    def two_stage(p):
        P = PR + 8
        la = [f'buffer_load_dwordx2 v[{PO}:{PO+1}], v{FL+4}, s[60:63], 0 offen sc1']
        lb = [f'buffer_load_dword v{PO}, v92, s[60:63], 0 offen sc1', f'buffer_load_dword v{PO+2}, v{FL+5}, s[60:63], 0 offen sc1']
        if p == cfg.TA[0]:
            for l in la:
                e(l); vm.issue('pollA')
        if p == cfg.TA[1]:
            vm.need(['pollA'])
            spin_check('a', la, [PO, PO + 1])
            e(f'buffer_load_dwordx4 v[{P}:{P+3}], v62, s[60:63], 0 offen sc1'); vm.issue('ldA')
        if p == cfg.TA[2]:
            vm.need(['ldA'])
            for rot in (2, 4, 8):
                e('s_nop 1')
                for i in range(4): e(f'v_add_f32_dpp v{P+i}, v{P+i}, v{P+i} row_ror:{rot} row_mask:0xf bank_mask:0xf')
            for sw in ('v_permlane16_swap_b32', 'v_permlane32_swap_b32'):
                for i in range(4): e(f'v_mov_b32 v{P+4+i}, v{P+i}')
                e('s_nop 1')
                for i in range(4): e(f'{sw} v{P+i}, v{P+4+i}')
                e('s_nop 1')
                for i in range(4): e(f'v_add_f32 v{P+i}, v{P+i}, v{P+4+i}')
            e('s_mov_b64 exec, 3')
            e(f'buffer_store_dwordx4 v[{P}:{P+3}], v63, s[60:63], 0 offen sc1'); vm.issue('stA')
            e('s_mov_b64 exec, -1')
        if p == cfg.TA[3]:
            vm.need(['stA'])
            e('s_cmp_lg_u32 s3, 0')
            e('s_cbranch_scc1 L_notagA')
            e(f's_lshl_b32 s38, s5, 7\ns_lshl_b32 s39, s4, 2\ns_add_u32 s38, s38, s39\ns_add_u32 s38, s38, {WS_FT}')
            tagstore(T + 1, 38)
            e('L_notagA:')
        if p == cfg.TBP[0]:
            for l in lb:
                e(l); vm.issue('pollB')
        if p == cfg.TBP[1]:
            vm.need(['pollB'])
            spin_check('b', lb, [PO, PO + 2])
            e(f'buffer_load_dwordx4 v[{P}:{P+3}], v93, s[60:63], 0 offen sc1'); vm.issue('ldB')
            e(f'buffer_load_dwordx4 v[{P+4}:{P+7}], v94, s[60:63], 0 offen sc1'); vm.issue('ldB')
        if p == cfg.TBP[2]:
            vm.need(['ldB'])
            e('s_cmp_lg_u32 s3, 0')
            e('s_cbranch_scc1 L_notab')
            e(f'v_add_u32 v12, {TAB}, v{VL16}')
            e(f'ds_write_b128 v12, v[{P}:{P+3}]')
            e(f'ds_write_b128 v12, v[{P+4}:{P+7}] offset:1024')
            e('s_waitcnt lgkmcnt(0)')
            e('L_notab:')
    for p in range(NST - 1):
        if cfg.wpf and p + cfg.wpf < NST:
            e(f's_add_u32 s56, s57, {(p + cfg.wpf) * 16384}')
            e(f'buffer_load_dwordx4 v[120:123], v{VL16}, s[60:63], s56 offen sc1'); vm.issue(('pf', p))
        if cfg.partlate and p == 2:
            vm.need(['pst']); fc_tag()
        lim = min(NST - 1, p + cfg.LA)
        for _ in range(2):
            if iw <= lim:
                assert iw < cfg.G1 // 2 or p > P2C, (p, iw)
                emit_ops(w_ops(iw)); iw += 1
            if ix <= lim:
                emit_ops(x_ops(ix)); ix += 1
        if p == cfg.P2I and cfg.G1 < 32:
            e('buffer_load_dword v61, v57, s[60:63], 0 offen sc1'); vm.issue('poll2')
        if p == P2C and cfg.G1 < 32:
            vm.need(['poll2'])
            e('s_cmp_lg_u32 s3, 0')
            e('s_cbranch_scc1 L_ready_w2')
            e('v_cmp_eq_u32 vcc, s64, v61')
            e('s_cmp_eq_u64 vcc, -1')
            e('s_cbranch_scc1 L_ready_w2')
            if cfg.wait_flags:
                e(f's_mov_b32 s38, {cfg.spin}')
                e('L_spin_w2:')
                e('buffer_load_dword v61, v57, s[60:63], 0 offen sc1')
                e('s_waitcnt vmcnt(0)')
                e('v_cmp_eq_u32 vcc, s64, v61')
                e('s_cmp_eq_u64 vcc, -1')
                e('s_cbranch_scc1 L_ready_w2')
                e('s_sub_u32 s38, s38, 1')
                e('s_cmp_lg_u32 s38, 0')
                e('s_cbranch_scc1 L_spin_w2')
            e('L_ready_w2:')
        if cfg.two: two_stage(p)
        else:
            if p == cfg.PP:
                e(f'buffer_load_dwordx2 v[{PO}:{PO+1}], v{FL+4}, s[60:63], 0 offen sc1'); vm.issue('poll')
                e(f'buffer_load_dword v{PO+2}, v{FL+5}, s[60:63], 0 offen sc1'); vm.issue('poll')
            if p == cfg.PC:
                vm.need(['poll'])
                e('s_cmp_lg_u32 s3, 0')
                e('s_cbranch_scc1 L_ready_a')
                check_final()
                e('s_cbranch_scc1 L_ready_a')
                if cfg.wait_flags:
                    e(f's_mov_b32 s38, {cfg.spin}')
                    e('L_spin_a:')
                    e(f'buffer_load_dwordx2 v[{PO}:{PO+1}], v{FL+4}, s[60:63], 0 offen sc1')
                    e(f'buffer_load_dword v{PO+2}, v{FL+5}, s[60:63], 0 offen sc1')
                    e('s_waitcnt vmcnt(0)')
                    check_final()
                    e('s_cbranch_scc1 L_ready_a')
                    e('s_sub_u32 s38, s38, 1')
                    e('s_cmp_lg_u32 s38, 0')
                    e('s_cbranch_scc1 L_spin_a')
                e('L_ready_a:')
            if p == cfg.PL:
                e('v_lshrrev_b32 v12, 4, v0')
                e('v_lshlrev_b32 v12, 10, v12')
                e('v_and_b32 v13, 15, v0')
                e('v_lshl_add_u32 v12, v13, 4, v12')
                e(f's_lshl_b32 s38, s5, 15\ns_lshl_b32 s39, s3, 8\ns_add_u32 s38, s38, s39\ns_add_u32 s38, s38, {WS_PART}')
                for t in range(cfg.npp):
                    if t: e('s_add_u32 s38, s38, 0x1000')
                    e(f'buffer_load_dwordx4 v[{PR+8+4*t}:{PR+8+4*t+3}], v12, s[60:63], s38 offen sc1'); vm.issue('pp')
                e('s_lshl_b32 s38, s4, 10\ns_lshl_b32 s39, s3, 8\ns_add_u32 s38, s38, s39')
                e(f'buffer_load_dword v{PR+40}, v{FL+2}, s[60:63], s38 offen sc1'); vm.issue('ps')
            if p == cfg.PS:
                vm.need(['pp', 'ps'])
                P = PR + 8
                for h in (16, 8, 4):
                    for i in range(h): e(f'v_add_f32 v{P+i}, v{P+i}, v{P+h+i}')
                e('s_nop 1')
                e(f'v_permlane32_swap_b32 v{P}, v{P+2}\nv_permlane32_swap_b32 v{P+1}, v{P+3}')
                e('s_nop 1')
                e(f'v_add_f32 v{P}, v{P}, v{P+2}\nv_add_f32 v{P+1}, v{P+1}, v{P+3}')
                e('s_nop 1')
                e(f'v_permlane16_swap_b32 v{P}, v{P+1}')
                e('s_nop 1')
                e(f'v_add_f32 v{P}, v{P}, v{P+1}')
                e('v_lshrrev_b32 v12, 4, v0')
                e('v_and_b32 v13, 15, v0')
                e('v_lshlrev_b32 v13, 4, v13')
                e('v_lshl_add_u32 v12, v12, 2, v13')
                e(f's_lshl_b32 s38, s3, 8\ns_add_u32 s39, s38, {TAB}')
                e('v_add_u32 v12, s39, v12')
                e(f'ds_write_b32 v12, v{P}'); lg.issue('tab')
                e(f's_add_u32 s39, s38, {TAB+1024}')
                e(f'v_add_u32 v13, s39, v{FL+2}')
                e(f'ds_write_b32 v13, v{PR+40}'); lg.issue('tab')
                lg.drain()
        vm.need([('w', p + 1)])
        if p + 1 >= cfg.prex: vm.need([('x', p + 1)])
        e('s_barrier')
    assert ix == NST and iw == NST
    if cfg.stamps: e('s_memtime s[44:45]')
    e('s_or_b32 s38, s2, s3')
    e('s_cmp_lg_u32 s38, 0')
    e('s_cbranch_scc1 L_noepoch')
    e('v_lshrrev_b32 v12, 3, v0')
    e('v_lshlrev_b32 v12, 10, v12')
    e('v_and_b32 v13, 7, v0')
    e('v_lshl_add_u32 v12, v13, 4, v12')
    e(f's_mov_b32 s38, {cfg.spin}')
    e('L_spin_e:')
    e(f's_mov_b32 s39, {WS_FW}')
    e('buffer_load_dwordx4 v[16:19], v12, s[60:63], s39 offen sc1')
    e('s_waitcnt vmcnt(0)')
    e('s_mov_b64 s[76:77], -1')
    for i in range(4):
        e(f'v_cmp_eq_u32 vcc, s64, v{16+i}')
        e('s_and_b64 s[76:77], s[76:77], vcc')
    e('s_cmp_eq_u64 s[76:77], -1')
    e('s_cbranch_scc1 L_doepoch')
    e('s_sub_u32 s38, s38, 1')
    e('s_cmp_lg_u32 s38, 0')
    e('s_cbranch_scc1 L_spin_e')
    e('L_doepoch:')
    e(f'v_mov_b32 v12, {WS_EPOCH}')
    e('v_mov_b32 v13, s64')
    e('s_mov_b64 exec, 1')
    e('buffer_store_dword v13, v12, s[60:63], 0 offen sc1')
    e('s_mov_b64 exec, -1')
    e('L_noepoch:')
    mark_end = len(e.lines)
    if cfg.dmafirst:
        head = e.lines[:mark_compute - 2]; comp = e.lines[mark_compute:mark_dma]; dma = e.lines[mark_dma:mark_end]
        assert comp[-1].strip() in ('s_branch L_end', ''), comp[-1]
        while comp[-1].strip() == '': comp.pop()
        comp.pop()
        e.lines = head + ['s_cmp_lt_u32 s3, 4', 's_cbranch_scc1 L_compute'] + dma + ['s_branch L_end', 'L_compute:'] + comp
    e('L_end:')
    if cfg.stamps:
        e('s_waitcnt vmcnt(0) lgkmcnt(0)')
        e('s_memtime s[46:47]')
        e('s_memrealtime s[56:57]')
        e('s_waitcnt lgkmcnt(0)')
        e('s_sub_u32 s42, s42, s40\ns_sub_u32 s44, s44, s40\ns_sub_u32 s46, s46, s40\ns_sub_u32 s58, s58, s40')
        e('v_mov_b32 v4, s42\nv_mov_b32 v5, s44\nv_mov_b32 v6, s46\nv_mov_b32 v7, s48\nv_mov_b32 v8, s56\nv_mov_b32 v9, s58\nv_mov_b32 v10, 0\nv_mov_b32 v11, 0')
        for i in range(5): e(f's_sub_u32 s{82+2*i}, s{82+2*i}, s40\nv_mov_b32 v{16+i}, s{82+2*i}')
        e(f's_lshl_b32 s65, s2, 3\ns_add_u32 s65, s65, s66\ns_lshl_b32 s65, s65, 6\ns_add_u32 s65, s65, {WS_STAMP}')
        e('v_mov_b32 v12, s65')
        e('s_mov_b64 exec, 1')
        e('buffer_store_dwordx4 v[4:7], v12, s[60:63], 0 offen')
        e('buffer_store_dwordx4 v[8:11], v12, s[60:63], 0 offen offset:16')
        e('buffer_store_dwordx4 v[16:19], v12, s[60:63], 0 offen offset:32')
        e('buffer_store_dwordx4 v[20:23], v12, s[60:63], 0 offen offset:48')
    e('L_exit:')
    e('s_endpgm')
    e('L_codeend:')
    e('.section .rodata,"a"')
    e(f'.p2align 6\n.amdhsa_kernel {KNAME}')
    e('  .amdhsa_next_free_vgpr 224\n  .amdhsa_next_free_sgpr 96\n  .amdhsa_accum_offset 224')
    e('  .amdhsa_group_segment_fixed_size 0\n  .amdhsa_kernarg_size 56\n  .amdhsa_user_sgpr_count 2')
    e('  .amdhsa_user_sgpr_kernarg_segment_ptr 1\n  .amdhsa_system_sgpr_workgroup_id_x 1\n.end_amdhsa_kernel')
    txt = e.text()
    pf = (f'v_cmp_gt_u32 vcc, L_codeend-{KNAME}, v12\n'
          's_and_saveexec_b64 s[80:81], vcc\n'
          's_cbranch_execz L_nopf\n'
          'global_load_dword v11, v12, s[78:79]\n'
          'L_nopf:\n'
          's_mov_b64 exec, -1')
    txt = txt.replace('CODEPF', pf)
    return txt

if __name__ == '__main__':
    import ast
    kw = {}
    for a in sys.argv[1:]:
        k, v = a.split('=')
        kw[k] = ast.literal_eval(v)
    print(gen(Cfg(**kw)))
```

```python
import sys
sys.path.insert(0, 'gen')
from asmlib import Emitter, Counter

KNAME = 'standalone__layernorm_linear__prompt_kernel'
WS_STATS = 0
WS_EPOCH = 0x8000
WS_FW = 0xC000
WS_FC = 0xA000
WS_FR = 0xB000
WS_FT = 0xE000
WS_FIN = 0x60000
WS_PART = 0x10000
WS_STAMP = 0x80000
WS_W = 0x100000
TAG_STEP = 0x9E3779B9

HEADER = '''; LayerNorm(x)*g + b followed by @ w, fused in one launch.
;
;
;
'''

class Cfg:
    NS = 5
    PP = 5
    PC = 9
    PL = 10
    PS = 14
    prew = 3
    prex = 0
    statsplit = 8
    statwhen = 's'
    polldelay = 0
    ntstat = ''; ntslab = ''; ntx = ''; ntout = ' sc1 nt'; ntw = ''
    prex1 = 0
    statdelay0 = 0
    dmafirst = False
    two = True
    TA = (1, 3, 5, 7)
    TBP = (10, 12, 14)
    npp = 8
    half = 4
    SB = 3
    SP = 0
    slate = False
    xd = 5
    dprio = 0
    epi2 = True
    LA = 3
    bwearly = False
    partlate = False
    G1 = 16
    P2I = 1
    krot = 0
    xlin = False
    nosc1w = False
    wpf = 0
    xearly = 0
    onepass = True
    xlate = False
    pipepoll = 1
    pollgap = 6
    stamps = False
    xmap = 0
    codepf = False
    mfma = True; reads = True; xdma = True; wdma = True
    wait_flags = True
    earlywait = True
    sleep = 0
    spin = 40000
    def __init__(self, **kw):
        for k, v in kw.items():
            assert hasattr(self, k), k
            setattr(self, k, v)


def gen(cfg):
    e = Emitter()
    def st(i):
        if cfg.stamps: e(f's_memtime s[{82+2*i}:{83+2*i}]')
    NS = cfg.NS; NST = 16
    LDS = NS * 32768
    assert NS == 5
    TAB = ((NST - 5) % NS) * 32768
    STG = ((NST - 4) % NS) * 32768
    e(HEADER.rstrip())
    e(f'; @launch grid=(256,1,1) block=(512,1,1) lds={LDS}')
    e('.amdgcn_target "amdgcn-amd-amdhsa--gfx950"\n.text')
    e(f'.globl {KNAME}\n.p2align 8\n.type {KNAME},@function\n{KNAME}:')
    e('s_cmp_ge_u32 s2, 0x100')
    e('s_cbranch_scc1 L_exit')
    if cfg.stamps: e('s_memtime s[40:41]\ns_memrealtime s[48:49]')
    e('s_load_dwordx2 s[12:13], s[0:1], 24')
    e('s_load_dwordx2 s[16:17], s[0:1], 8')
    e('s_load_dwordx2 s[8:9], s[0:1], 0')
    e('s_load_dwordx2 s[68:69], s[0:1], 16')
    e('s_load_dwordx2 s[60:61], s[0:1], 48')
    e('s_load_dwordx2 s[20:21], s[0:1], 32')
    e('v_lshrrev_b32 v1, 6, v0')
    e('v_and_b32 v0, 63, v0')
    e('v_readfirstlane_b32 s3, v1')
    e('s_mov_b32 s10, 0x800000\ns_mov_b32 s11, 0x20000')
    e('s_mov_b32 s14, 0x200000\ns_mov_b32 s15, 0x20000')
    e('s_mov_b32 s18, 0x800\ns_mov_b32 s19, 0x20000')
    e('s_mov_b32 s70, 0x800\ns_mov_b32 s71, 0x20000')
    e('s_mov_b32 s22, 0x800000\ns_mov_b32 s23, 0x20000')
    e('s_mov_b32 s62, 0x300000\ns_mov_b32 s63, 0x20000')
    e('s_and_b32 s4, s2, 7')
    e('s_lshr_b32 s5, s2, 3')
    if cfg.xmap == 0:
        e('s_and_b32 s6, s5, 3\ns_lshl_b32 s4, s4, 2\ns_add_u32 s4, s4, s6\ns_lshr_b32 s5, s5, 2')
    else:
        e('s_and_b32 s6, s5, 7\ns_lshr_b32 s7, s4, 1\ns_lshl_b32 s7, s7, 3\ns_add_u32 s6, s6, s7')
        e('s_and_b32 s4, s4, 1\ns_lshl_b32 s4, s4, 2\ns_lshr_b32 s5, s5, 3\ns_add_u32 s5, s5, s4\ns_mov_b32 s4, s6')
    e('s_mov_b32 s66, s3')
    if cfg.krot: e(f's_and_b32 s67, s4, 3\ns_mul_i32 s67, s67, {cfg.krot}')
    e('s_mov_b32 s53, 0xffff0000')
    e('s_cmp_ge_u32 s3, 4')
    e('s_cbranch_scc1 L_dma')
    mark_compute = len(e.lines)

    def rot_off(dst, base, q, shift, extra=0):
        if not cfg.krot: return [f's_add_u32 s{dst}, s{base}, {(q << shift) + extra}']
        o = [f's_add_u32 s{dst}, s67, {q}', f's_and_b32 s{dst}, s{dst}, 15', f's_lshl_b32 s{dst}, s{dst}, {shift}', f's_add_u32 s{dst}, s{dst}, s{base}']
        if extra: o.append(f's_add_u32 s{dst}, s{dst}, {extra}')
        return o

    def tagstore(vtmp, addr_sgpr):
        e(f'v_mov_b32 v{vtmp}, s{addr_sgpr}')
        e(f'v_mov_b32 v{vtmp+1}, s64')
        e('s_mov_b64 exec, 1')
        e(f'buffer_store_dword v{vtmp+1}, v{vtmp}, s[60:63], 0 offen sc1')
        e('s_mov_b64 exec, -1')

    ACC = 0; FR = 64; XA = 96; WA = 108; LN = 114; TA_ = 115
    lg = Counter(e, 'lgkmcnt', 15); vm = Counter(e, 'vmcnt', 63)
    T = 116
    e(f'v_mov_b32 v{LN}, v0')
    X = 128; L = 160; A = 192; RW_ = 204; I16 = 205
    e(f'v_lshrrev_b32 v{T}, 4, v{LN}')
    e(f'v_and_b32 v{I16}, 15, v{LN}')
    e('s_lshl_b32 s38, s4, 7\ns_lshl_b32 s39, s5, 4\ns_add_u32 s38, s38, s39\ns_lshl_b32 s39, s3, 2\ns_add_u32 s38, s38, s39')
    e(f'v_add_u32 v{RW_}, s38, v{T}')
    e(f'v_lshlrev_b32 v{T+11}, 11, v{RW_}')
    e(f'v_lshl_add_u32 v{T+11}, v{I16}, 4, v{T+11}')
    e('s_and_b32 s6, s3, 1')
    e('s_lshr_b32 s7, s3, 1')
    e(f'v_and_b32 v{T+1}, 31, v{LN}')
    e(f'v_lshrrev_b32 v{T+2}, 5, v{LN}')
    e(f'v_bfe_u32 v{T+3}, v{LN}, 1, 3')
    e(f'v_xor_b32 v{T+3}, v{T+3}, v{T+2}')
    e(f'v_lshlrev_b32 v{T+3}, 4, v{T+3}')
    e('s_lshl_b32 s37, s6, 13')
    e(f'v_lshl_add_u32 v{T+9}, v{T+1}, 7, v{T+3}')
    e(f'v_add_u32 v{XA}, s37, v{T+9}')
    for ks in range(1, 4): e(f'v_xor_b32 v{XA+ks}, {32*ks}, v{XA}')
    for w in range(1, 3):
        for ks in range(4): e(f'v_add_u32 v{XA+4*w+ks}, {0x10000*w}, v{XA+ks}')
    e(f'v_lshrrev_b32 v{T+1}, 4, v{LN}')
    e(f'v_bfe_u32 v{T+2}, v{LN}, 2, 2')
    e(f'v_and_b32 v{T+3}, 3, v{LN}')
    e(f'v_lshrrev_b32 v{T+9}, 1, v{T+1}')
    e(f'v_lshl_add_u32 v{T+9}, v{T+9}, 3, v{T+2}')
    e(f'v_lshlrev_b32 v{T+9}, 8, v{T+9}')
    e(f'v_and_b32 v{T+1}, 1, v{T+1}')
    e(f'v_lshlrev_b32 v{T+1}, 1, v{T+1}')
    e(f'v_lshrrev_b32 v{T+10}, 1, v{T+3}')
    e(f'v_add_u32 v{T+1}, v{T+1}, v{T+10}')
    e('s_lshl_b32 s37, s7, 3')
    e(f'v_add_u32 v{T+1}, s37, v{T+1}')
    e(f'v_lshlrev_b32 v{T+2}, 2, v{T+2}')
    e(f'v_xor_b32 v{T+1}, v{T+1}, v{T+2}')
    e(f'v_lshlrev_b32 v{T+1}, 4, v{T+1}')
    e(f'v_and_b32 v{T+3}, 1, v{T+3}')
    e(f'v_lshl_add_u32 v{T+1}, v{T+3}, 3, v{T+1}')
    e(f'v_add_u32 v{T+1}, v{T+1}, v{T+9}')
    e(f'v_add_u32 v{WA}, 0x4000, v{T+1}')
    e(f'v_xor_b32 v{WA+1}, 64, v{WA}')
    for w in range(1, 3):
        for nb in range(2): e(f'v_add_u32 v{WA+2*w+nb}, {0x10000*w}, v{WA+nb}')
    e(f'v_lshrrev_b32 v{T+1}, 5, v{LN}')
    e(f'v_lshlrev_b32 v{T+1}, 4, v{T+1}')
    e(f's_lshl_b32 s37, s7, 8\ns_add_u32 s37, s37, {TAB}')
    e(f'v_add_u32 v{TA_}, s37, v{T+1}')
    e('s_waitcnt lgkmcnt(0)')
    st(0)
    e(f's_load_dword s64, s[60:61], {WS_EPOCH}')
    def sload(j):
        e(f'buffer_load_dwordx4 v[{X+4*j}:{X+4*j+3}], v{T+11}, s[8:11], 0 offen offset:{256*j}{cfg.ntstat}'); vm.issue(('sx', j))
    VX = 208
    e(f'v_lshrrev_b32 v{T+1}, 3, v{LN}')
    e(f'v_lshlrev_b32 v{T+1}, 11, v{T+1}')
    e(f'v_and_b32 v{T+2}, 7, v{LN}')
    e(f'v_lshrrev_b32 v{T+3}, 4, v{LN}')
    e(f'v_xor_b32 v{T+2}, v{T+2}, v{T+3}')
    e(f'v_lshl_add_u32 v{VX}, v{T+2}, 4, v{T+1}')
    e(f'v_xor_b32 v{VX+1}, 64, v{VX}')
    e(f'v_add_u32 v{VX+1}, {16384-1024}, v{VX+1}')
    e('s_lshl_b32 s37, s4, 18\ns_lshl_b32 s39, s3, 16\ns_add_u32 s50, s37, s39\ns_lshl_b32 s51, s3, 12')
    def cx(q):
        slot = q % NS
        e(f's_add_u32 m0, s51, {slot*32768}')
        for ins in rot_off(54, 50, q, 7): e(ins)
        e(f'buffer_load_dwordx4 v{VX}, s[8:11], s54 offen{cfg.ntx} lds'); vm.issue(('x', q))
        e(f'buffer_load_dwordx4 v{VX+1}, s[8:11], s54 offen offset:1024{cfg.ntx} lds'); vm.issue(('x', q))
        e(f's_add_u32 m0, s51, {slot*32768+2048}')
        e(f's_add_u32 s54, s54, 32768')
        e(f'buffer_load_dwordx4 v{VX}, s[8:11], s54 offen{cfg.ntx} lds'); vm.issue(('x', q))
        e(f'buffer_load_dwordx4 v{VX+1}, s[8:11], s54 offen offset:1024{cfg.ntx} lds'); vm.issue(('x', q))
    def stats_rest():
        M = A + 8; V = A + 10
        vm.need([('sx', 7)])
        e('s_mov_b32 s39, 0x3f803f80')
        for j in range(cfg.half, 8):
            for i in range(4): e(f'v_dot2c_f32_bf16 v{A+i}, s39, v{X+4*j+i}')
            for i in range(4): e(f'v_dot2c_f32_bf16 v{A+4+i}, v{X+4*j+i}, v{X+4*j+i}')
        e('s_nop 2')
        e(f'v_add_f32 v{A}, v{A}, v{A+1}\nv_add_f32 v{A+2}, v{A+2}, v{A+3}')
        e(f'v_add_f32 v{A+4}, v{A+4}, v{A+5}\nv_add_f32 v{A+6}, v{A+6}, v{A+7}')
        e(f'v_add_f32 v{M}, v{A}, v{A+2}\nv_add_f32 v{V+1}, v{A+4}, v{A+6}')
        for rot in (8, 4, 2, 1):
            e('s_nop 0')
            e(f'v_add_f32_dpp v{M}, v{M}, v{M} row_ror:{rot} row_mask:0xf bank_mask:0xf')
            e(f'v_add_f32_dpp v{V+1}, v{V+1}, v{V+1} row_ror:{rot} row_mask:0xf bank_mask:0xf')
            e('s_nop 0')
        e(f'v_mul_f32 v{M}, 0xba800000, v{M}')
        e(f'v_mul_f32 v{V+1}, 0x3a800000, v{V+1}')
        e(f'v_fma_f32 v{V+1}, -v{M}, v{M}, v{V+1}')
        e(f'v_max_f32 v{V+1}, 0, v{V+1}')
        e(f'v_add_f32 v{V+1}, 0x3727c5ac, v{V+1}')
        e(f'v_rsq_f32 v{V}, v{V+1}')
        e('s_nop 0')
        e(f'v_mul_f32 v{V+1}, v{M}, v{V}')
        e(f'v_lshlrev_b32 v{RW_}, 3, v{RW_}')
        e(f'v_cmp_eq_u32 vcc, 0, v{I16}')
        e('s_and_saveexec_b64 s[76:77], vcc')
        e(f'buffer_store_dwordx2 v[{V}:{V+1}], v{RW_}, s[60:63], 0 offen sc1'); vm.issue('st')
        e('s_mov_b64 exec, -1')
    def stats_tag():
        vm.need(['st'])
        e(f's_lshl_b32 s38, s4, 7\ns_lshl_b32 s39, s5, 4\ns_add_u32 s38, s38, s39\ns_lshl_b32 s39, s3, 2\ns_add_u32 s38, s38, s39\ns_add_u32 s38, s38, {WS_FR}')
        tagstore(T + 1, 38)
    if cfg.half:
        H = cfg.half
        e('s_barrier')
        for j in range(H): sload(j)
        e('s_barrier')
        st(1)
        e('s_mov_b32 s39, 0x3f803f80')
        for a in range(8): e(f'v_mov_b32 v{A+a}, 0')
        vm.need([('sx', H - 1)])
        st(2)
        for j in range(H):
            for i in range(4): e(f'v_dot2c_f32_bf16 v{A+i}, s39, v{X+4*j+i}')
            for i in range(4): e(f'v_dot2c_f32_bf16 v{A+4+i}, v{X+4*j+i}, v{X+4*j+i}')
        for q in range(cfg.prex): cx(q)
        e('s_waitcnt lgkmcnt(0)')
        e(f's_add_u32 s64, s64, {TAG_STEP}')
        st(3)
        e('s_barrier')
        e('s_waitcnt vmcnt(0)')
        vm.q = []
    else:
        if cfg.statwhen == '0':
            if cfg.statdelay0: e(f's_sleep {cfg.statdelay0}')
            for j in range(8): sload(j)
            e('s_barrier')
        else:
            if cfg.slate:
                assert cfg.statwhen == 's' and cfg.statsplit == 8
                e('s_cmp_lt_u32 s4, 16')
                e('s_cbranch_scc1 L_searly')
                for j in range(8): e(f'buffer_load_dwordx4 v[{X+4*j}:{X+4*j+3}], v{T+11}, s[8:11], 0 offen offset:{256*j}{cfg.ntstat}')
                e('s_barrier')
                e('s_branch L_sjoin')
                e('L_searly:')
                e('s_barrier')
                for j in range(8): sload(j)
                e('L_sjoin:')
                e('s_barrier')
            else:
                if cfg.statwhen == 's': e('s_barrier')
                else: e('s_barrier')
                for j in range(cfg.statsplit): sload(j)
                if cfg.statwhen == 's': e('s_barrier')
            if cfg.statsplit < 8:
                vm.need([('sx', 0)])
                for j in range(cfg.statsplit, 8): sload(j)
        for q in range(cfg.xearly): cx(q)
        st(1)
        if cfg.bwearly: e('s_barrier')
        vm.need([('sx', 7)])
        st(2)
        for q in range(cfg.xearly, cfg.prex1): cx(q)
        M = A + 8; V = A + 10
        if cfg.onepass:
            e('s_mov_b32 s39, 0x3f803f80')
            for a in range(8): e(f'v_mov_b32 v{A+a}, 0')
            for j in range(8):
                for i in range(4): e(f'v_dot2c_f32_bf16 v{A+i}, s39, v{X+4*j+i}')
                for i in range(4): e(f'v_dot2c_f32_bf16 v{A+4+i}, v{X+4*j+i}, v{X+4*j+i}')
            e('s_nop 2')
            e(f'v_add_f32 v{A}, v{A}, v{A+1}\nv_add_f32 v{A+2}, v{A+2}, v{A+3}')
            e(f'v_add_f32 v{A+4}, v{A+4}, v{A+5}\nv_add_f32 v{A+6}, v{A+6}, v{A+7}')
            e(f'v_add_f32 v{M}, v{A}, v{A+2}\nv_add_f32 v{V+1}, v{A+4}, v{A+6}')
            for rot in (8, 4, 2, 1):
                e('s_nop 0')
                e(f'v_add_f32_dpp v{M}, v{M}, v{M} row_ror:{rot} row_mask:0xf bank_mask:0xf')
                e(f'v_add_f32_dpp v{V+1}, v{V+1}, v{V+1} row_ror:{rot} row_mask:0xf bank_mask:0xf')
                e('s_nop 0')
            e(f'v_mul_f32 v{M}, 0xba800000, v{M}')
            e(f'v_mul_f32 v{V+1}, 0x3a800000, v{V+1}')
            e(f'v_fma_f32 v{V+1}, -v{M}, v{M}, v{V+1}')
            e(f'v_max_f32 v{V+1}, 0, v{V+1}')
            e(f'v_add_f32 v{V+1}, 0x3727c5ac, v{V+1}')
        else:
            for d in range(32):
                e(f'v_lshlrev_b32 v{L+d}, 16, v{X+d}')
                e(f'v_and_b32 v{X+d}, s53, v{X+d}')
            for a in range(4):
                e(f'v_pk_add_f32 v[{A+2*a}:{A+2*a+1}], v[{X+2*a}:{X+2*a+1}], v[{L+2*a}:{L+2*a+1}]')
            for d in range(8, 32, 2):
                a = (d // 2) % 4
                e(f'v_pk_add_f32 v[{A+2*a}:{A+2*a+1}], v[{A+2*a}:{A+2*a+1}], v[{X+d}:{X+d+1}]')
                e(f'v_pk_add_f32 v[{A+2*a}:{A+2*a+1}], v[{A+2*a}:{A+2*a+1}], v[{L+d}:{L+d+1}]')
            def fold(dst):
                e(f'v_pk_add_f32 v[{A}:{A+1}], v[{A}:{A+1}], v[{A+2}:{A+3}]')
                e(f'v_pk_add_f32 v[{A+4}:{A+5}], v[{A+4}:{A+5}], v[{A+6}:{A+7}]')
                e(f'v_pk_add_f32 v[{A}:{A+1}], v[{A}:{A+1}], v[{A+4}:{A+5}]')
                e(f'v_add_f32 v{dst}, v{A}, v{A+1}')
                for rot in (8, 4, 2, 1):
                    e('s_nop 1')
                    e(f'v_add_f32_dpp v{dst}, v{dst}, v{dst} row_ror:{rot} row_mask:0xf bank_mask:0xf')
            M = A + 8
            fold(M)
            e(f'v_mul_f32 v{M}, 0xba800000, v{M}')
            for d in range(0, 32, 2):
                e(f'v_pk_add_f32 v[{X+d}:{X+d+1}], v[{X+d}:{X+d+1}], v[{M}:{M+1}] op_sel_hi:[1,0]')
                e(f'v_pk_add_f32 v[{L+d}:{L+d+1}], v[{L+d}:{L+d+1}], v[{M}:{M+1}] op_sel_hi:[1,0]')
            for a in range(4):
                e(f'v_pk_mul_f32 v[{A+2*a}:{A+2*a+1}], v[{X+2*a}:{X+2*a+1}], v[{X+2*a}:{X+2*a+1}]')
            for d in range(8, 32, 2):
                a = (d // 2) % 4
                e(f'v_pk_fma_f32 v[{A+2*a}:{A+2*a+1}], v[{X+d}:{X+d+1}], v[{X+d}:{X+d+1}], v[{A+2*a}:{A+2*a+1}]')
            for d in range(0, 32, 2):
                a = (d // 2) % 4
                e(f'v_pk_fma_f32 v[{A+2*a}:{A+2*a+1}], v[{L+d}:{L+d+1}], v[{L+d}:{L+d+1}], v[{A+2*a}:{A+2*a+1}]')
            V = A + 10
            fold(V)
            e('s_mov_b32 s39, 0x3727c5ac')
            e(f'v_mov_b32 v{V+1}, s39')
            e(f'v_fmac_f32 v{V+1}, 0x3a800000, v{V}')
        e(f'v_rsq_f32 v{V}, v{V+1}')
        e('s_nop 0')
        e(f'v_mul_f32 v{V+1}, v{M}, v{V}')
        e(f'v_lshlrev_b32 v{RW_}, 3, v{RW_}')
        e(f'v_cmp_eq_u32 vcc, 0, v{I16}')
        e('s_and_saveexec_b64 s[76:77], vcc')
        e(f'buffer_store_dwordx2 v[{V}:{V+1}], v{RW_}, s[60:63], 0 offen sc1')
        e('s_mov_b64 exec, -1')
        if not cfg.xlate:
            for q in range(max(cfg.prex1, cfg.xearly), cfg.prex): cx(q)
        e('s_waitcnt lgkmcnt(0)')
        e(f's_add_u32 s64, s64, {TAG_STEP}')
        st(3)
        if not cfg.bwearly: e('s_barrier')
        if cfg.xlate:
            vm.q = []
            e('s_waitcnt vmcnt(0)')
            e(f's_lshl_b32 s38, s4, 7\ns_lshl_b32 s39, s5, 4\ns_add_u32 s38, s38, s39\ns_lshl_b32 s39, s3, 2\ns_add_u32 s38, s38, s39\ns_add_u32 s38, s38, {WS_FR}')
            tagstore(T + 1, 38)
            for q in range(cfg.prex1, cfg.prex): cx(q)
        if not cfg.xlate:
            e('s_waitcnt vmcnt(0)')
            e(f's_lshl_b32 s38, s4, 7\ns_lshl_b32 s39, s5, 4\ns_add_u32 s38, s38, s39\ns_lshl_b32 s39, s3, 2\ns_add_u32 s38, s38, s39\ns_add_u32 s38, s38, {WS_FR}')
            tagstore(T + 1, 38)
            vm.q = []

    def rd_list(p, ks):
        st_ = FR + 16 * (ks & 1)
        slot = p % NS
        win = slot // 2
        xo = (slot % 2) * 32768
        wo = (slot % 2) * 32768 + ks * 4096
        xr = XA + 4 * win + ks; wr = WA + 2 * win
        return [
            (f'ds_read_b64_tr_b16 v[{st_}:{st_+1}], v{wr} offset:{wo}', ('W0', p, ks)),
            (f'ds_read_b64_tr_b16 v[{st_+2}:{st_+3}], v{wr} offset:{wo+1024}', ('W0', p, ks)),
            (f'ds_read_b128 v[{st_+8}:{st_+11}], v{xr} offset:{xo}', ('x0', p, ks)),
            (f'ds_read_b128 v[{st_+12}:{st_+15}], v{xr} offset:{xo+4096}', ('x1', p, ks)),
            (f'ds_read_b64_tr_b16 v[{st_+4}:{st_+5}], v{wr+1} offset:{wo}', ('W1', p, ks)),
            (f'ds_read_b64_tr_b16 v[{st_+6}:{st_+7}], v{wr+1} offset:{wo+1024}', ('W1', p, ks)),
        ]
    def group(p, ks, reads, last_in_phase=False, order=None):
        st_ = FR + 16 * (ks & 1)
        order = order or [(0, 0), (0, 1), (1, 1), (1, 0)]
        split = [(0, 3), (3, 6), (6, 6), (6, 6)] if last_in_phase else [(0, 2), (2, 4), (4, 6), (6, 6)]
        for i, (nb, mb) in enumerate(order):
            if p >= 0:
                lg.need([(f'W{nb}', p, ks), (f'x{mb}', p, ks)])
                if last_in_phase and i == 3 and cfg.earlywait: lg.drain()
                a = ACC + 16 * (2 * nb + mb)
                c = '0' if (p == 0 and ks == 0) else f'v[{a}:{a+15}]'
                if cfg.mfma: e(f'v_mfma_f32_32x32x16_bf16 v[{a}:{a+15}], v[{st_+4*nb}:{st_+4*nb+3}], v[{st_+8+4*mb}:{st_+8+4*mb+3}], {c}')
                else: e('s_nop 7')
            for (ins, tag) in reads[split[i][0]:split[i][1]]:
                if cfg.reads:
                    e(ins); lg.issue(tag)
    GWR = 128; BWR = 160; RS = 192
    Y = 200; D = 208; SA = 212; SR = 213; GO = 214; XW = 216; SRD_ = 218
    def epi_addresses():
        e(f'v_and_b32 v{T}, 31, v{LN}')
        e(f's_lshl_b32 s38, s6, 9\ns_add_u32 s38, s38, {TAB+1024}')
        e(f'v_lshl_add_u32 v{SRD_}, v{T}, 3, s38')
        e(f'v_and_b32 v{Y}, 7, v{LN}')
        e(f'v_lshlrev_b32 v{Y}, 4, v{Y}')
        e(f'v_lshrrev_b32 v{Y+1}, 5, v{LN}')
        e(f'v_lshl_add_u32 v{Y}, v{Y+1}, 3, v{Y}')
        e(f'v_lshl_add_u32 v{SA}, v{T}, 7, v{Y}')
        e(f's_lshl_b32 s38, s3, 13\ns_add_u32 s38, s38, {STG}')
        e(f'v_add_u32 v{SA}, s38, v{SA}')
        e(f'v_lshrrev_b32 v{Y}, 3, v{LN}')
        e(f'v_and_b32 v{Y+1}, 7, v{LN}')
        e(f'v_xor_b32 v{Y+2}, v{Y+1}, v{Y}')
        e(f'v_lshlrev_b32 v{Y+2}, 4, v{Y+2}')
        e(f'v_lshl_add_u32 v{SR}, v{Y}, 7, v{Y+2}')
        e(f'v_add_u32 v{SR}, s38, v{SR}')
        e(f'v_lshlrev_b32 v{GO}, 11, v{Y}')
        e(f'v_lshl_add_u32 v{GO}, v{Y+1}, 4, v{GO}')
        e('s_lshl_b32 s38, s4, 18\ns_lshl_b32 s39, s6, 17\ns_add_u32 s38, s38, s39')
        e('s_lshl_b32 s39, s5, 8\ns_add_u32 s38, s38, s39\ns_lshl_b32 s39, s7, 7\ns_add_u32 s65, s38, s39')
    def table_reads():
        r = [(f'ds_read_b64 v[{RS}:{RS+1}], v{SRD_}', 'rs'), (f'ds_read_b64 v[{RS+2}:{RS+3}], v{SRD_} offset:256', 'rs')]
        for nb in range(2):
            for j in range(4):
                r.append((f'ds_read_b128 v[{GWR+16*nb+4*j}:{GWR+16*nb+4*j+3}], v{TA_} offset:{(nb*32+8*j)*4}', ('tg', nb, j)))
                r.append((f'ds_read_b128 v[{BWR+16*nb+4*j}:{BWR+16*nb+4*j+3}], v{TA_} offset:{512+(nb*32+8*j)*4}', ('tg', nb, j)))
        return r
    epi_addresses()
    e('s_barrier')
    if cfg.stamps: e('s_memtime s[42:43]')
    for p in range(NST):
        tr = table_reads() if (p == NST - 1 and cfg.epi2) else []
        def extra(k):
            for ins, tag in tr[6*k:6*k+6]:
                e(ins); lg.issue(tag)
        group(p - 1, 3, rd_list(p, 0))
        group(p, 0, rd_list(p, 1)); extra(0)
        group(p, 1, rd_list(p, 2)); extra(1)
        group(p, 2, rd_list(p, 3), last_in_phase=(p < NST - 1)); extra(2)
        if cfg.half:
            if p == cfg.SP:
                for j in range(cfg.half, 8): sload(j)
            if p == cfg.SB: stats_rest()
            if p == cfg.SB + 2: stats_tag()
        if p < NST - 1: e('s_barrier')
    group(NST - 1, 3, [], order=[(0, 0), (1, 0), (1, 1), (0, 1)] if cfg.epi2 else None)
    if not cfg.epi2:
        for ins, tag in table_reads():
            e(ins); lg.issue(tag)
    if cfg.stamps: e('s_memtime s[44:45]')
    def stage_reads(mb):
        r0 = ACC + 16 * mb
        for q in range(4):
            e(f'ds_read_b128 v[{r0+4*q}:{r0+4*q+3}], v{SR} offset:{mb*4096+q*1024}'); lg.issue(('sr', mb, q))
    def out_store(mb, q):
        r0 = ACC + 16 * mb
        lg.need([('sr', mb, q)])
        e(f's_add_u32 s51, s65, {(mb*32+8*q)*2048}')
        e(f'buffer_store_dwordx4 v[{r0+4*q}:{r0+4*q+3}], v{GO}, s[20:23], s51 offen{cfg.ntout}')
    if cfg.epi2: e('s_nop 7')
    for idx in range(16):
        mb, nb, j = idx >> 3, (idx >> 2) & 1, idx & 3
        rs = RS + 2 * mb
        a = ACC + 16 * (2 * nb + mb)
        gw = GWR + 16 * nb + 4 * j; bw = BWR + 16 * nb + 4 * j
        lg.need(['rs', ('tg', nb, j)])
        y = Y + 4 * (j & 1)
        for hh in range(2):
            e(f'v_pk_fma_f32 v[{y+2*hh}:{y+2*hh+1}], v[{gw+2*hh}:{gw+2*hh+1}], v[{rs}:{rs+1}], v[{bw+2*hh}:{bw+2*hh+1}] op_sel:[0,1,0] op_sel_hi:[1,1,1]')
        for hh in range(2):
            e(f'v_pk_fma_f32 v[{y+2*hh}:{y+2*hh+1}], v[{a+4*j+2*hh}:{a+4*j+2*hh+1}], v[{rs}:{rs+1}], v[{y+2*hh}:{y+2*hh+1}] op_sel_hi:[1,0,1]')
        d = D + 2 * (j & 1)
        e(f'v_xor_b32 v{XW+(j&1)}, {(nb*4+j)*16}, v{SA}')
        e(f'v_cvt_pk_bf16_f32 v{d}, v{y}, v{y+1}')
        e(f'v_cvt_pk_bf16_f32 v{d+1}, v{y+2}, v{y+3}')
        e(f'ds_write_b64 v{XW+(j&1)}, v[{d}:{d+1}] offset:{mb*4096}'); lg.issue(('sw', mb))
        if cfg.epi2:
            if idx == 7: stage_reads(0)
            if idx == 9: out_store(0, 0); out_store(0, 1)
            if idx == 10: out_store(0, 2); out_store(0, 3)
            if idx == 15:
                stage_reads(1)
                for q in range(4): out_store(1, q)
        elif idx % 8 == 7:
            lg.need([('sw', mb)])
            stage_reads(mb)
            for q in range(4): out_store(mb, q)
    e('s_branch L_end')

    mark_dma = len(e.lines)
    e('L_dma:')
    vm = Counter(e, 'vmcnt', 63); lg = Counter(e, 'lgkmcnt', 15)
    VXO = 2; FL = 4; VL16 = 10; PR = 16
    T = 96; PW = 64; PG = 72; U = 76; WPK = 84; X = 112; WD = 104
    e('s_sub_u32 s3, s3, 4')
    e(f'v_lshrrev_b32 v{T+4}, 2, v0')
    e(f'v_and_b32 v{T+5}, 3, v0')
    e(f'v_lshlrev_b32 v{T+6}, 11, v{T+4}')
    e(f'v_lshl_add_u32 v{T+6}, v{T+5}, 4, v{T+6}')
    e(f'v_lshlrev_b32 v{T+7}, 1, v{T+4}')
    for r in range(4): e(f'v_mov_b32 v{PG+r}, 0')
    e('s_lshl_b32 s38, s4, 16\ns_lshl_b32 s39, s5, 8\ns_add_u32 s38, s38, s39\ns_lshl_b32 s39, s3, 6\ns_add_u32 s38, s38, s39')
    e('s_add_u32 s39, s38, 0x8000')
    e('s_lshl_b32 s36, s4, 6')
    e('s_waitcnt lgkmcnt(0)')
    st(0)
    e(f'buffer_load_dwordx4 v[{PW}:{PW+3}], v{T+6}, s[12:15], s38 offen{cfg.ntslab}'); vm.issue('pw0')
    e(f'buffer_load_short_d16_hi v{PG}, v{T+7}, s[16:19], s36 offen'); vm.issue('pg0')
    e(f'buffer_load_dwordx4 v[{PW+4}:{PW+7}], v{T+6}, s[12:15], s39 offen{cfg.ntslab}'); vm.issue('pw1')
    e(f'buffer_load_short_d16_hi v{PG+1}, v{T+7}, s[16:19], s36 offen offset:32'); vm.issue('pg1')
    e(f'buffer_load_short_d16_hi v{PG+2}, v{T+7}, s[68:71], s36 offen'); vm.issue('pb')
    e(f'buffer_load_short_d16_hi v{PG+3}, v{T+7}, s[68:71], s36 offen offset:32'); vm.issue('pb')
    e(f's_load_dword s64, s[60:61], {WS_EPOCH}')
    e('v_lshrrev_b32 v8, 3, v0')
    e('v_lshlrev_b32 v8, 11, v8')
    e('v_and_b32 v9, 7, v0')
    e('v_lshrrev_b32 v11, 4, v0')
    e('v_xor_b32 v9, v9, v11')
    e(f'v_lshl_add_u32 v{VXO}, v9, 4, v8')
    e(f'v_xor_b32 v{VXO+1}, 64, v{VXO}')
    e(f'v_add_u32 v{VXO+1}, {16384-1024}, v{VXO+1}')
    e(f'v_lshlrev_b32 v{VL16}, 4, v0')
    e('s_lshl_b32 s37, s4, 18\ns_lshl_b32 s39, s3, 16\ns_add_u32 s50, s37, s39\ns_lshl_b32 s51, s3, 12')
    e(f's_lshl_b32 s37, s5, 18\ns_add_u32 s52, s37, s51\ns_add_u32 s52, s52, {WS_W}')
    def emit_ops(ops):
        for ins, tag in ops:
            e(ins)
            if tag: vm.issue(tag)
    def x_ops(q):
        slot = q % NS
        if not cfg.xdma: return []
        if cfg.xlin:
            o = [(f's_add_u32 m0, s51, {slot*32768}', None), (f's_lshl_b32 s54, s4, 18', None), (f's_add_u32 s54, s54, s51', None), (f's_add_u32 s54, s54, {q*16384}', None)]
            for j in range(4): o.append((f'buffer_load_dwordx4 v{VL16}, s[8:11], s54 offen offset:{1024*j} lds', ('x', q)))
            return o
        return [(f's_add_u32 m0, s51, {slot*32768}', None)] + [(i, None) for i in rot_off(54, 50, q, 7)] + [
                (f'buffer_load_dwordx4 v{VXO}, s[8:11], s54 offen{cfg.ntx} lds', ('x', q)),
                (f'buffer_load_dwordx4 v{VXO+1}, s[8:11], s54 offen offset:1024{cfg.ntx} lds', ('x', q)),
                (f's_add_u32 m0, s51, {slot*32768+2048}', None),
                (f's_add_u32 s54, s54, 32768', None),
                (f'buffer_load_dwordx4 v{VXO}, s[8:11], s54 offen{cfg.ntx} lds', ('x', q)),
                (f'buffer_load_dwordx4 v{VXO+1}, s[8:11], s54 offen offset:1024{cfg.ntx} lds', ('x', q))]
    wsc = '' if cfg.nosc1w else ' sc1'
    def w_ops(q):
        slot = q % NS
        if not cfg.wdma: return []
        o = [(f's_add_u32 m0, s51, {slot*32768+16384}', None)] + [(i, None) for i in rot_off(55, 52, q, 14)]
        for j in range(4):
            o.append((f'buffer_load_dwordx4 v{VL16}, s[60:63], s55 offen offset:{1024*j}{wsc}{cfg.ntw} lds', ('w', q)))
        return o
    e(f'v_and_b32 v{T+1}, 3, v{T+4}')
    e(f'v_lshlrev_b32 v{T+1}, 2, v{T+1}')
    e('s_lshl_b32 s37, s3, 2')
    e(f'v_add_u32 v{T+2}, s37, v{T+5}')
    e(f'v_xor_b32 v{T+1}, v{T+1}, v{T+2}')
    e(f'v_lshlrev_b32 v{T+1}, 4, v{T+1}')
    e(f'v_lshl_add_u32 v{WD}, v{T+4}, 8, v{T+1}')
    e(f's_lshl_b32 s38, s5, 18\ns_lshl_b32 s39, s4, 13\ns_add_u32 s38, s38, s39\ns_add_u32 s38, s38, {WS_W}')
    e('s_add_u32 s39, s38, 0x1000')
    for t in range(2):
        vm.need([f'pw{t}', f'pg{t}'])
        if t == 0: st(1)
        w = PW + 4 * t; gk = PG + t; u = U
        for i in range(4):
            e(f'v_lshlrev_b32 v{u+2*i}, 16, v{w+i}')
            e(f'v_and_b32 v{u+2*i+1}, s53, v{w+i}')
        for i in range(8): e(f'v_mul_f32 v{u+i}, v{gk}, v{u+i}')
        for i in range(4): e(f'v_cvt_pk_bf16_f32 v{WPK+4*t+i}, v{u+2*i}, v{u+2*i+1}')
        e(f'buffer_store_dwordx4 v[{WPK+4*t}:{WPK+4*t+3}], v{WD}, s[60:63], s{38+t} offen sc1'); vm.issue('wst')
    if cfg.statwhen == 's': e('s_barrier')
    st(2)
    vm.need(['wst'])
    st(3)
    e('s_waitcnt lgkmcnt(0)')
    e(f's_add_u32 s64, s64, {TAG_STEP}')
    e('s_barrier')
    e('s_cmp_lg_u32 s3, 0')
    e('s_cbranch_scc1 L_noflagw')
    e(f's_lshl_b32 s38, s5, 10\ns_lshl_b32 s39, s4, 2\ns_add_u32 s38, s38, s39\ns_add_u32 s38, s38, {WS_FW}')
    e(f'v_lshlrev_b32 v{T+1}, 7, v0')
    e(f'v_add_u32 v{T+1}, s38, v{T+1}')
    e(f'v_mov_b32 v{T+2}, s64')
    e('s_mov_b64 exec, 0xff')
    e(f'buffer_store_dword v{T+2}, v{T+1}, s[60:63], 0 offen sc1')
    e('s_mov_b64 exec, -1')
    e('L_noflagw:')
    st(4)
    ix = cfg.prex
    def partial_sums():
        for t in range(2):
            w = PW + 4 * t; bk = PG + 2 + t
            for i in range(4):
                e(f'v_lshlrev_b32 v{U+2*i}, 16, v{w+i}')
                e(f'v_and_b32 v{U+2*i+1}, s53, v{w+i}')
            for i in range(8):
                if t == 0: e(f'v_mul_f32 v{X+8+i}, v{bk}, v{U+i}')
                else: e(f'v_fmac_f32 v{X+8+i}, v{bk}, v{U+i}')
            for i in range(4):
                if t == 0:
                    e(f'v_lshlrev_b32 v{X+2*i}, 16, v{WPK+i}')
                    e(f'v_and_b32 v{X+2*i+1}, s53, v{WPK+i}')
                else:
                    e(f'v_lshlrev_b32 v{U+2*i}, 16, v{WPK+4+i}')
                    e(f'v_and_b32 v{U+2*i+1}, s53, v{WPK+4+i}')
            if t == 1:
                for i in range(8): e(f'v_add_f32 v{X+i}, v{X+i}, v{U+i}')
        e('s_nop 1')
        for j in range(8): e(f'v_permlane32_swap_b32 v{X+j}, v{X+8+j}')
        e('s_nop 1')
        for j in range(8): e(f'v_add_f32 v{X+j}, v{X+j}, v{X+8+j}')
        e('s_nop 1')
        for j in range(4): e(f'v_permlane16_swap_b32 v{X+j}, v{X+4+j}')
        e('s_nop 1')
        for j in range(4): e(f'v_add_f32 v{X+j}, v{X+j}, v{X+4+j}')
        for rot in (8, 4):
            e('s_nop 1')
            for j in range(4): e(f'v_add_f32_dpp v{X+j}, v{X+j}, v{X+j} row_ror:{rot} row_mask:0xf bank_mask:0xf')
        e(f'v_lshrrev_b32 v{T+1}, 4, v0')
        e(f'v_lshrrev_b32 v{T+2}, 1, v{T+1}')
        e(f'v_lshlrev_b32 v{T+2}, 9, v{T+2}')
        e(f'v_and_b32 v{T+1}, 1, v{T+1}')
        e(f'v_lshl_add_u32 v{T+2}, v{T+1}, 4, v{T+2}')
        e(f'v_lshl_add_u32 v{T+2}, v{T+5}, 5, v{T+2}')
        e('s_lshl_b32 s38, s5, 5\ns_add_u32 s38, s38, s4\ns_lshl_b32 s38, s38, 10\ns_lshl_b32 s39, s3, 7\ns_add_u32 s38, s38, s39')
        e(f's_add_u32 s38, s38, {WS_PART}')
        e(f'v_and_b32 v{T+1}, 15, v0')
        e(f'v_cmp_gt_u32 vcc, 4, v{T+1}')
        e('s_and_saveexec_b64 s[76:77], vcc')
        e(f'buffer_store_dwordx4 v[{X}:{X+3}], v{T+2}, s[60:63], s38 offen sc1'); vm.issue('pst')
        e('s_mov_b64 exec, -1')
    if not cfg.partlate: partial_sums()
    for q in range(cfg.prex, cfg.prex + cfg.xd):
        emit_ops(x_ops(q)); ix += 1
    if cfg.codepf:
        e('s_getpc_b64 s[78:79]')
        e('L_pc:')
        e('s_sub_u32 s78, s78, L_pc-' + KNAME)
        e('s_subb_u32 s79, s79, 0')
        e('v_lshlrev_b32 v12, 7, v0')
        e('s_lshl_b32 s38, s3, 13')
        e('v_add_u32 v12, s38, v12')
        e('CODEPF')
    e(f'v_lshlrev_b32 v{FL+2}, 2, v0')
    e('s_cmp_eq_u32 s3, 0')
    e('s_cselect_b32 s37, 0, 0x7fff0000')
    e(f's_lshl_b32 s38, s5, 9\ns_add_u32 s38, s38, {WS_FC}\ns_add_u32 s38, s38, s37')
    e('v_lshlrev_b32 v13, 3, v0')
    e(f'v_add_u32 v{FL+4}, s38, v13')
    e(f's_lshl_b32 s38, s4, 7\ns_add_u32 s38, s38, {WS_FR}\ns_add_u32 s38, s38, s37')
    e('v_and_b32 v13, 31, v0')
    e('v_lshlrev_b32 v13, 2, v13')
    e(f'v_add_u32 v{FL+5}, s38, v13')
    if cfg.wait_flags:
        e('s_cmp_lg_u32 s3, 0')
        e('s_cbranch_scc1 L_notpoller')
        e('v_and_b32 v12, 31, v0')
        if cfg.G1 < 32: e(f'v_min_u32 v12, {cfg.G1-1}, v12')
        e('v_lshlrev_b32 v12, 2, v12')
        e(f's_lshl_b32 s39, s5, 10\ns_lshr_b32 s37, s4, 2\ns_lshl_b32 s37, s37, 7\ns_add_u32 s39, s39, s37\ns_add_u32 s39, s39, {WS_FW}')
        e(f's_mov_b32 s38, {cfg.spin}')
        if cfg.polldelay: e(f's_sleep {cfg.polldelay}')
        n = cfg.pipepoll
        for i in range(n - 1):
            e(f'buffer_load_dword v{16+i}, v12, s[60:63], s39 offen sc1')
            e(f's_sleep {cfg.pollgap}')
        e('L_spin_w:')
        for i in range(n):
            e(f'buffer_load_dword v{16+(i+n-1)%n}, v12, s[60:63], s39 offen sc1')
            e(f's_waitcnt vmcnt({n-1})')
            e(f'v_cmp_eq_u32 vcc, s64, v{16+i}')
            e('s_cmp_eq_u64 vcc, -1')
            e('s_cbranch_scc1 L_found_w')
            if n > 1: e(f's_sleep {cfg.pollgap}')
            elif cfg.sleep: e(f's_sleep {cfg.sleep}')
        e('s_sub_u32 s38, s38, 1')
        e('s_cmp_lg_u32 s38, 0')
        e('s_cbranch_scc1 L_spin_w')
        e('L_found_w:')
        e('s_branch L_ready_w')
        e('L_notpoller:')
        if not cfg.partlate: e('s_waitcnt vmcnt(0)')
        e('L_ready_w:')
    if cfg.stamps: e('s_memtime s[58:59]')
    def fc_tag():
        e(f's_lshl_b32 s38, s5, 9\ns_lshl_b32 s39, s4, 4\ns_add_u32 s38, s38, s39\ns_lshl_b32 s39, s3, 2\ns_add_u32 s38, s38, s39\ns_add_u32 s38, s38, {WS_FC}')
        tagstore(T + 1, 38)
    if not cfg.partlate:
        if not cfg.wait_flags: e('s_waitcnt vmcnt(0)')
        vm.q = []
        fc_tag()
    else:
        vm.q = []
    e('s_barrier')
    iw = 0
    for q in range(cfg.prew):
        emit_ops(w_ops(q)); iw += 1
    if cfg.partlate: partial_sums()
    vm.need([('w', 0)])
    if cfg.prex == 0 and cfg.xd == 0:
        pass
    if cfg.dprio: e(f's_setprio {cfg.dprio}')
    e('s_barrier')
    if cfg.stamps: e('s_memtime s[42:43]')
    if cfg.G1 < 32:
        e('v_and_b32 v13, 31, v0')
        e('v_lshlrev_b32 v13, 2, v13')
        e('s_cmp_eq_u32 s3, 0')
        e('s_cselect_b32 s37, 0, 0x7fff0000')
        e(f's_lshl_b32 s39, s5, 10\ns_lshr_b32 s38, s4, 2\ns_lshl_b32 s38, s38, 7\ns_add_u32 s39, s39, s38\ns_add_u32 s39, s39, {WS_FW}\ns_add_u32 s39, s39, s37')
        e('v_add_u32 v57, s39, v13')
    P2C = cfg.G1 // 2 - cfg.LA - 1 if cfg.G1 < 32 else -1
    PO = 58
    def check_final():
        e(f'v_cmp_eq_u32 vcc, s64, v{PO}')
        e(f'v_cmp_eq_u32 s[76:77], s64, v{PO+1}')
        e(f'v_cmp_eq_u32 s[80:81], s64, v{PO+2}')
        e('s_and_b64 vcc, vcc, s[76:77]')
        e('s_and_b64 vcc, vcc, s[80:81]')
        e('s_cmp_eq_u64 vcc, -1')
    if cfg.two:
        e('s_cmp_eq_u32 s3, 0')
        e('s_cselect_b32 s37, 0, 0x7fff0000')
        e('v_lshrrev_b32 v12, 1, v0')
        e('v_lshlrev_b32 v12, 10, v12')
        e('v_and_b32 v13, 1, v0')
        e('v_lshl_add_u32 v12, v13, 4, v12')
        e(f's_lshl_b32 s38, s5, 15\ns_lshl_b32 s39, s4, 5\ns_add_u32 s38, s38, s39\ns_add_u32 s38, s38, {WS_PART}\ns_add_u32 s38, s38, s37')
        e('v_add_u32 v62, s38, v12')
        e(f's_lshl_b32 s38, s5, 10\ns_lshl_b32 s39, s4, 5\ns_add_u32 s38, s38, s39\ns_add_u32 s38, s38, {WS_FIN}\ns_add_u32 s38, s38, s37')
        e('v_lshlrev_b32 v13, 4, v13')
        e('v_add_u32 v63, s38, v13')
        e('v_and_b32 v13, 31, v0')
        e('v_lshlrev_b32 v13, 2, v13')
        e(f's_lshl_b32 s38, s5, 7\ns_add_u32 s38, s38, {WS_FT}\ns_add_u32 s38, s38, s37')
        e('v_add_u32 v92, s38, v13')
        e(f's_lshl_b32 s38, s5, 10\ns_add_u32 s38, s38, {WS_FIN}\ns_add_u32 s38, s38, s37')
        e(f'v_add_u32 v93, s38, v{VL16}')
        e(f's_lshl_b32 s38, s4, 10\ns_add_u32 s38, s38, s37')
        e(f'v_add_u32 v94, s38, v{VL16}')
    def spin_check(name, loads, cmps):
        e('s_cmp_lg_u32 s3, 0')
        e(f's_cbranch_scc1 L_ok_{name}')
        def chk():
            for i, r in enumerate(cmps):
                dst = 'vcc' if i == 0 else 's[76:77]'
                e(f'v_cmp_eq_u32 {dst}, s64, v{r}')
                if i: e('s_and_b64 vcc, vcc, s[76:77]')
            e('s_cmp_eq_u64 vcc, -1')
            e(f's_cbranch_scc1 L_ok_{name}')
        chk()
        if cfg.wait_flags:
            e(f's_mov_b32 s38, {cfg.spin}')
            e(f'L_spin_{name}:')
            for l in loads: e(l)
            e('s_waitcnt vmcnt(0)')
            chk()
            e('s_sub_u32 s38, s38, 1')
            e('s_cmp_lg_u32 s38, 0')
            e(f's_cbranch_scc1 L_spin_{name}')
        e(f'L_ok_{name}:')
    def two_stage(p):
        P = PR + 8
        la = [f'buffer_load_dwordx2 v[{PO}:{PO+1}], v{FL+4}, s[60:63], 0 offen sc1']
        lb = [f'buffer_load_dword v{PO}, v92, s[60:63], 0 offen sc1', f'buffer_load_dword v{PO+2}, v{FL+5}, s[60:63], 0 offen sc1']
        if p == cfg.TA[0]:
            for l in la:
                e(l); vm.issue('pollA')
        if p == cfg.TA[1]:
            vm.need(['pollA'])
            spin_check('a', la, [PO, PO + 1])
            e(f'buffer_load_dwordx4 v[{P}:{P+3}], v62, s[60:63], 0 offen sc1'); vm.issue('ldA')
        if p == cfg.TA[2]:
            vm.need(['ldA'])
            for rot in (2, 4, 8):
                e('s_nop 1')
                for i in range(4): e(f'v_add_f32_dpp v{P+i}, v{P+i}, v{P+i} row_ror:{rot} row_mask:0xf bank_mask:0xf')
            for sw in ('v_permlane16_swap_b32', 'v_permlane32_swap_b32'):
                for i in range(4): e(f'v_mov_b32 v{P+4+i}, v{P+i}')
                e('s_nop 1')
                for i in range(4): e(f'{sw} v{P+i}, v{P+4+i}')
                e('s_nop 1')
                for i in range(4): e(f'v_add_f32 v{P+i}, v{P+i}, v{P+4+i}')
            e('s_mov_b64 exec, 3')
            e(f'buffer_store_dwordx4 v[{P}:{P+3}], v63, s[60:63], 0 offen sc1'); vm.issue('stA')
            e('s_mov_b64 exec, -1')
        if p == cfg.TA[3]:
            vm.need(['stA'])
            e('s_cmp_lg_u32 s3, 0')
            e('s_cbranch_scc1 L_notagA')
            e(f's_lshl_b32 s38, s5, 7\ns_lshl_b32 s39, s4, 2\ns_add_u32 s38, s38, s39\ns_add_u32 s38, s38, {WS_FT}')
            tagstore(T + 1, 38)
            e('L_notagA:')
        if p == cfg.TBP[0]:
            for l in lb:
                e(l); vm.issue('pollB')
        if p == cfg.TBP[1]:
            vm.need(['pollB'])
            spin_check('b', lb, [PO, PO + 2])
            e(f'buffer_load_dwordx4 v[{P}:{P+3}], v93, s[60:63], 0 offen sc1'); vm.issue('ldB')
            e(f'buffer_load_dwordx4 v[{P+4}:{P+7}], v94, s[60:63], 0 offen sc1'); vm.issue('ldB')
        if p == cfg.TBP[2]:
            vm.need(['ldB'])
            e('s_cmp_lg_u32 s3, 0')
            e('s_cbranch_scc1 L_notab')
            e(f'v_add_u32 v12, {TAB}, v{VL16}')
            e(f'ds_write_b128 v12, v[{P}:{P+3}]')
            e(f'ds_write_b128 v12, v[{P+4}:{P+7}] offset:1024')
            e('s_waitcnt lgkmcnt(0)')
            e('L_notab:')
    for p in range(NST - 1):
        if cfg.wpf and p + cfg.wpf < NST:
            e(f's_add_u32 s56, s57, {(p + cfg.wpf) * 16384}')
            e(f'buffer_load_dwordx4 v[120:123], v{VL16}, s[60:63], s56 offen sc1'); vm.issue(('pf', p))
        if cfg.partlate and p == 2:
            vm.need(['pst']); fc_tag()
        lim = min(NST - 1, p + cfg.LA)
        for _ in range(2):
            if iw <= lim:
                assert iw < cfg.G1 // 2 or p > P2C, (p, iw)
                emit_ops(w_ops(iw)); iw += 1
            if ix <= lim:
                emit_ops(x_ops(ix)); ix += 1
        if p == cfg.P2I and cfg.G1 < 32:
            e('buffer_load_dword v61, v57, s[60:63], 0 offen sc1'); vm.issue('poll2')
        if p == P2C and cfg.G1 < 32:
            vm.need(['poll2'])
            e('s_cmp_lg_u32 s3, 0')
            e('s_cbranch_scc1 L_ready_w2')
            e('v_cmp_eq_u32 vcc, s64, v61')
            e('s_cmp_eq_u64 vcc, -1')
            e('s_cbranch_scc1 L_ready_w2')
            if cfg.wait_flags:
                e(f's_mov_b32 s38, {cfg.spin}')
                e('L_spin_w2:')
                e('buffer_load_dword v61, v57, s[60:63], 0 offen sc1')
                e('s_waitcnt vmcnt(0)')
                e('v_cmp_eq_u32 vcc, s64, v61')
                e('s_cmp_eq_u64 vcc, -1')
                e('s_cbranch_scc1 L_ready_w2')
                e('s_sub_u32 s38, s38, 1')
                e('s_cmp_lg_u32 s38, 0')
                e('s_cbranch_scc1 L_spin_w2')
            e('L_ready_w2:')
        if cfg.two: two_stage(p)
        else:
            if p == cfg.PP:
                e(f'buffer_load_dwordx2 v[{PO}:{PO+1}], v{FL+4}, s[60:63], 0 offen sc1'); vm.issue('poll')
                e(f'buffer_load_dword v{PO+2}, v{FL+5}, s[60:63], 0 offen sc1'); vm.issue('poll')
            if p == cfg.PC:
                vm.need(['poll'])
                e('s_cmp_lg_u32 s3, 0')
                e('s_cbranch_scc1 L_ready_a')
                check_final()
                e('s_cbranch_scc1 L_ready_a')
                if cfg.wait_flags:
                    e(f's_mov_b32 s38, {cfg.spin}')
                    e('L_spin_a:')
                    e(f'buffer_load_dwordx2 v[{PO}:{PO+1}], v{FL+4}, s[60:63], 0 offen sc1')
                    e(f'buffer_load_dword v{PO+2}, v{FL+5}, s[60:63], 0 offen sc1')
                    e('s_waitcnt vmcnt(0)')
                    check_final()
                    e('s_cbranch_scc1 L_ready_a')
                    e('s_sub_u32 s38, s38, 1')
                    e('s_cmp_lg_u32 s38, 0')
                    e('s_cbranch_scc1 L_spin_a')
                e('L_ready_a:')
            if p == cfg.PL:
                e('v_lshrrev_b32 v12, 4, v0')
                e('v_lshlrev_b32 v12, 10, v12')
                e('v_and_b32 v13, 15, v0')
                e('v_lshl_add_u32 v12, v13, 4, v12')
                e(f's_lshl_b32 s38, s5, 15\ns_lshl_b32 s39, s3, 8\ns_add_u32 s38, s38, s39\ns_add_u32 s38, s38, {WS_PART}')
                for t in range(cfg.npp):
                    if t: e('s_add_u32 s38, s38, 0x1000')
                    e(f'buffer_load_dwordx4 v[{PR+8+4*t}:{PR+8+4*t+3}], v12, s[60:63], s38 offen sc1'); vm.issue('pp')
                e('s_lshl_b32 s38, s4, 10\ns_lshl_b32 s39, s3, 8\ns_add_u32 s38, s38, s39')
                e(f'buffer_load_dword v{PR+40}, v{FL+2}, s[60:63], s38 offen sc1'); vm.issue('ps')
            if p == cfg.PS:
                vm.need(['pp', 'ps'])
                P = PR + 8
                for h in (16, 8, 4):
                    for i in range(h): e(f'v_add_f32 v{P+i}, v{P+i}, v{P+h+i}')
                e('s_nop 1')
                e(f'v_permlane32_swap_b32 v{P}, v{P+2}\nv_permlane32_swap_b32 v{P+1}, v{P+3}')
                e('s_nop 1')
                e(f'v_add_f32 v{P}, v{P}, v{P+2}\nv_add_f32 v{P+1}, v{P+1}, v{P+3}')
                e('s_nop 1')
                e(f'v_permlane16_swap_b32 v{P}, v{P+1}')
                e('s_nop 1')
                e(f'v_add_f32 v{P}, v{P}, v{P+1}')
                e('v_lshrrev_b32 v12, 4, v0')
                e('v_and_b32 v13, 15, v0')
                e('v_lshlrev_b32 v13, 4, v13')
                e('v_lshl_add_u32 v12, v12, 2, v13')
                e(f's_lshl_b32 s38, s3, 8\ns_add_u32 s39, s38, {TAB}')
                e('v_add_u32 v12, s39, v12')
                e(f'ds_write_b32 v12, v{P}'); lg.issue('tab')
                e(f's_add_u32 s39, s38, {TAB+1024}')
                e(f'v_add_u32 v13, s39, v{FL+2}')
                e(f'ds_write_b32 v13, v{PR+40}'); lg.issue('tab')
                lg.drain()
        vm.need([('w', p + 1)])
        if p + 1 >= cfg.prex: vm.need([('x', p + 1)])
        e('s_barrier')
    assert ix == NST and iw == NST
    if cfg.stamps: e('s_memtime s[44:45]')
    e('s_or_b32 s38, s2, s3')
    e('s_cmp_lg_u32 s38, 0')
    e('s_cbranch_scc1 L_noepoch')
    e('v_lshrrev_b32 v12, 3, v0')
    e('v_lshlrev_b32 v12, 10, v12')
    e('v_and_b32 v13, 7, v0')
    e('v_lshl_add_u32 v12, v13, 4, v12')
    e(f's_mov_b32 s38, {cfg.spin}')
    e('L_spin_e:')
    e(f's_mov_b32 s39, {WS_FW}')
    e('buffer_load_dwordx4 v[16:19], v12, s[60:63], s39 offen sc1')
    e('s_waitcnt vmcnt(0)')
    e('s_mov_b64 s[76:77], -1')
    for i in range(4):
        e(f'v_cmp_eq_u32 vcc, s64, v{16+i}')
        e('s_and_b64 s[76:77], s[76:77], vcc')
    e('s_cmp_eq_u64 s[76:77], -1')
    e('s_cbranch_scc1 L_doepoch')
    e('s_sub_u32 s38, s38, 1')
    e('s_cmp_lg_u32 s38, 0')
    e('s_cbranch_scc1 L_spin_e')
    e('L_doepoch:')
    e(f'v_mov_b32 v12, {WS_EPOCH}')
    e('v_mov_b32 v13, s64')
    e('s_mov_b64 exec, 1')
    e('buffer_store_dword v13, v12, s[60:63], 0 offen sc1')
    e('s_mov_b64 exec, -1')
    e('L_noepoch:')
    mark_end = len(e.lines)
    if cfg.dmafirst:
        head = e.lines[:mark_compute - 2]; comp = e.lines[mark_compute:mark_dma]; dma = e.lines[mark_dma:mark_end]
        assert comp[-1].strip() in ('s_branch L_end', ''), comp[-1]
        while comp[-1].strip() == '': comp.pop()
        comp.pop()
        e.lines = head + ['s_cmp_lt_u32 s3, 4', 's_cbranch_scc1 L_compute'] + dma + ['s_branch L_end', 'L_compute:'] + comp
    e('L_end:')
    if cfg.stamps:
        e('s_waitcnt vmcnt(0) lgkmcnt(0)')
        e('s_memtime s[46:47]')
        e('s_memrealtime s[56:57]')
        e('s_waitcnt lgkmcnt(0)')
        e('s_sub_u32 s42, s42, s40\ns_sub_u32 s44, s44, s40\ns_sub_u32 s46, s46, s40\ns_sub_u32 s58, s58, s40')
        e('v_mov_b32 v4, s42\nv_mov_b32 v5, s44\nv_mov_b32 v6, s46\nv_mov_b32 v7, s48\nv_mov_b32 v8, s56\nv_mov_b32 v9, s58\nv_mov_b32 v10, 0\nv_mov_b32 v11, 0')
        for i in range(5): e(f's_sub_u32 s{82+2*i}, s{82+2*i}, s40\nv_mov_b32 v{16+i}, s{82+2*i}')
        e(f's_lshl_b32 s65, s2, 3\ns_add_u32 s65, s65, s66\ns_lshl_b32 s65, s65, 6\ns_add_u32 s65, s65, {WS_STAMP}')
        e('v_mov_b32 v12, s65')
        e('s_mov_b64 exec, 1')
        e('buffer_store_dwordx4 v[4:7], v12, s[60:63], 0 offen')
        e('buffer_store_dwordx4 v[8:11], v12, s[60:63], 0 offen offset:16')
        e('buffer_store_dwordx4 v[16:19], v12, s[60:63], 0 offen offset:32')
        e('buffer_store_dwordx4 v[20:23], v12, s[60:63], 0 offen offset:48')
    e('L_exit:')
    e('s_endpgm')
    e('L_codeend:')
    e('.section .rodata,"a"')
    e(f'.p2align 6\n.amdhsa_kernel {KNAME}')
    e('  .amdhsa_next_free_vgpr 224\n  .amdhsa_next_free_sgpr 96\n  .amdhsa_accum_offset 224')
    e('  .amdhsa_group_segment_fixed_size 0\n  .amdhsa_kernarg_size 56\n  .amdhsa_user_sgpr_count 2')
    e('  .amdhsa_user_sgpr_kernarg_segment_ptr 1\n  .amdhsa_system_sgpr_workgroup_id_x 1\n.end_amdhsa_kernel')
    txt = e.text()
    pf = (f'v_cmp_gt_u32 vcc, L_codeend-{KNAME}, v12\n'
          's_and_saveexec_b64 s[80:81], vcc\n'
          's_cbranch_execz L_nopf\n'
          'global_load_dword v11, v12, s[78:79]\n'
          'L_nopf:\n'
          's_mov_b64 exec, -1')
    txt = txt.replace('CODEPF', pf)
    return txt

if __name__ == '__main__':
    import ast
    kw = {}
    for a in sys.argv[1:]:
        k, v = a.split('=')
        kw[k] = ast.literal_eval(v)
    print(gen(Cfg(**kw)))
```
